```python
import torch

def _softmax(x, axis=-1):
    return torch.softmax(x, dim=axis)
def _gelu(x):
    return torch.nn.functional.gelu(x, approximate="tanh")
def _silu(x):
    return torch.nn.functional.silu(x)
def _sigmoid(x):
    return torch.sigmoid(x)
def _layernorm(x, axis=-1, eps=1e-5):
    m = x.mean(dim=axis, keepdim=True)
    v = x.var(dim=axis, keepdim=True, unbiased=False)
    return (x - m) / torch.sqrt(v + eps)
def _scatter_add(tgt, idx, src, axis=0):
    return tgt.clone().index_add_(axis, idx, src)
def _segment_sum(src, seg, n):
    out = torch.zeros((n,) + src.shape[1:], dtype=src.dtype)
    return out.index_add_(0, seg, src)
def _pad(x, pw):
    flat = tuple(v for pair in reversed(pw) for v in pair)
    return torch.nn.functional.pad(x, flat)

kernel_name = 'recurrent_scan__ssm_conv_s5__glu_gated_geglu__prompt'

def setup_inputs():

    _w = (lambda a: (lambda t: t.to(torch.bfloat16) if t.is_floating_point() else t)(torch.as_tensor(a)))
    def _A_setup():
        B, S, D = 1, 2048, 1024
        P = D
        Lambda_re = -0.5 * (lambda _x: torch.exp(torch.as_tensor(_x)))((lambda *s: torch.randn(*s, dtype=torch.bfloat16) * 0.8)(P))
        Lambda_im = (lambda *s: torch.randn(*s, dtype=torch.bfloat16) * 0.8)(P) * 1.0
        B_re = (lambda *s: torch.randn(*s, dtype=torch.bfloat16) * 1.6)(P, D) * (D ** -0.5)
        B_im = (lambda *s: torch.randn(*s, dtype=torch.bfloat16) * 1.6)(P, D) * (D ** -0.5)
        C_re = (lambda *s: torch.randn(*s, dtype=torch.bfloat16) * 1.6)(D, P) * (P ** -0.5)
        C_im = (lambda *s: torch.randn(*s, dtype=torch.bfloat16) * 1.6)(D, P) * (P ** -0.5)
        log_dt = (lambda *s: torch.randn(*s, dtype=torch.bfloat16) * 0.8)(P) * 0.3 - 2.0
        Dskip = (lambda *s: torch.randn(*s, dtype=torch.bfloat16) * 0.8)(D)
        return {
            "x": _w((lambda *s: torch.randn(*s, dtype=torch.bfloat16) * 0.05)(B, S, D)),
            "Lambda_re": _w(Lambda_re),
            "Lambda_im": _w(Lambda_im),
            "B_re": _w(B_re),
            "B_im": _w(B_im),
            "C_re": _w(C_re),
            "C_im": _w(C_im),
            "log_dt": _w(log_dt),
            "Dskip": _w(Dskip),
        }
    _A_in = _A_setup()

    def _B_setup():
        B, S, Dm, Df = 1, 2048, 1024, 3584
        return {
            "x": _w((lambda *s: torch.randn(*s, dtype=torch.bfloat16) * 0.05)(B, S, Dm)),
            "w_gate": _w((lambda *s: torch.randn(*s, dtype=torch.bfloat16) * 0.2)(Dm, Df) * (Dm ** -0.5)),
            "w_up": _w((lambda *s: torch.randn(*s, dtype=torch.bfloat16) * 0.2)(Dm, Df) * (Dm ** -0.5)),
            "w_down": _w((lambda *s: torch.randn(*s, dtype=torch.bfloat16) * 0.2)(Df, Dm) * (Df ** -0.5)),
        }
    _B_in = _B_setup()

    return {
        "A_x": _A_in["x"],
        "A_Lambda_re": _A_in["Lambda_re"],
        "A_Lambda_im": _A_in["Lambda_im"],
        "A_B_re": _A_in["B_re"],
        "A_B_im": _A_in["B_im"],
        "A_C_re": _A_in["C_re"],
        "A_C_im": _A_in["C_im"],
        "A_log_dt": _A_in["log_dt"],
        "A_Dskip": _A_in["Dskip"],
        "B_x": _B_in["x"],
        "B_w_gate": _B_in["w_gate"],
        "B_w_up": _B_in["w_up"],
        "B_w_down": _B_in["w_down"],
    }

def reference(A_x, A_Lambda_re, A_Lambda_im, A_B_re, A_B_im, A_C_re, A_C_im, A_log_dt, A_Dskip, B_x, B_w_gate, B_w_up, B_w_down):
    def _A_ref(x, Lambda_re, Lambda_im, B_re, B_im, C_re, C_im, log_dt, Dskip):
        Bsz, L, H = x.shape
        Lam = Lambda_re + 1j * Lambda_im
        Bmat = B_re + 1j * B_im
        Cmat = C_re + 1j * C_im
        dt = torch.exp(log_dt)
        Lam_bar = torch.exp(dt * Lam)
        B_bar = ((Lam_bar - 1.0) / Lam)[:, None] * Bmat
        Bu = torch.einsum("bld,pd->blp", x + 0j, B_bar)
        h = torch.zeros_like(Bu[:, 0, :])
        hs = []
        for t in range(L):
            h = Lam_bar[None, :] * h + Bu[:, t, :]
            hs.append(h)
        hseq = torch.stack(hs, 1)
        y = 2.0 * torch.einsum("blp,dp->bld", hseq, Cmat).real + x * Dskip[None, None, :]
        return y

    def _B_ref(x, w_gate, w_up, w_down):
        g = torch.einsum("bsd,df->bsf", x, w_gate)
        u = torch.einsum("bsd,df->bsf", x, w_up)
        h = _gelu(g) * u
        return torch.einsum("bsf,fd->bsd", h, w_down)

    x = A_x
    xn = _layernorm(x, axis=-1)
    s = _A_ref(xn, A_Lambda_re, A_Lambda_im, A_B_re, A_B_im, A_C_re, A_C_im, A_log_dt, A_Dskip)
    g = _silu(_B_ref(xn, B_w_gate, B_w_up, B_w_down))
    return x + s * g
```

```python
from gen import *

def gen_k3(A, opt):
    kernel_head(A, "down_kernel")
    ACC = 128
    def acc(j, i): return ACC + (j*4+i)*4
    BF = 0; AB = 32
    vD = list(range(1, 9)); vA = 9; vR = list(range(10, 18)); L = 18
    t0, t1, t2, t3 = 19, 20, 21, 22
    vXL = 23
    XR = 64
    sB, sA, sWS, sO = 8, 12, 16, 20
    sRB, sCB, sWV, sKH, sMH, sTB, sTile = 24, 25, 26, 27, 28, 29, 30
    sBoff, sAoff, sM, sTrip, sRole = 31, 32, 33, 34, 35
    A("s_cmp_ge_u32 s2, 256\ns_cbranch_scc1 L_k3_end")
    stamp(A, opt, 0)
    A(f"s_load_dwordx4 s[40:43], s[0:1], {KA['cre']}")
    A(f"s_load_dwordx4 s[44:47], s[0:1], {KA['wd']}")
    A(f"s_load_dwordx2 s[48:49], s[0:1], {KA['ws']}")
    A(f"s_load_dwordx2 s[50:51], s[0:1], {KA['x']}")
    A(f"s_load_dwordx2 s[52:53], s[0:1], {KA['dsk']}")
    A(f"v_lshrrev_b32 v{t0}, 6, v0\nv_and_b32 v{L}, 63, v0")
    A(f"s_lshr_b32 s{sRole}, s2, 7")
    A(f"v_readfirstlane_b32 s{sWV}, v{t0}")
    A(f"s_bfe_u32 s3, s2, 0x20001\ns_lshl_b32 s3, s3, 2\ns_bfe_u32 s4, s2, 0x20005\ns_add_u32 s{sRB}, s3, s4")
    A(f"s_and_b32 s3, s2, 1\ns_lshl_b32 s3, s3, 2\ns_bfe_u32 s4, s2, 0x20003\ns_add_u32 s{sCB}, s3, s4")
    A(f"s_lshl_b32 s{sTile}, s{sRB}, 3\ns_add_u32 s{sTile}, s{sTile}, s{sCB}")
    A(f"s_lshr_b32 s{sKH}, s{sWV}, 1\ns_and_b32 s{sMH}, s{sWV}, 1\ns_lshl_b32 s{sTB}, s{sRB}, 1\ns_add_u32 s{sTB}, s{sTB}, s{sMH}")
    A(f"s_lshl_b32 s{sM}, s{sKH}, 16\ns_lshl_b32 s3, s{sMH}, 13\ns_add_u32 s{sM}, s{sM}, s3")
    A(f"v_lshlrev_b32 v{vA}, 4, v{L}")
    A(f"s_cmp_eq_u32 s{sRole}, 0\ns_cbranch_scc1 L_k3_ssm")

    def role(ffn):
        nm = "ffn" if ffn else "ssm"
        NTRIP = 7 if ffn else 4
        BSZ = 3584*1024*2 if ffn else 1024*1024*2
        BINC = 64*2048 if ffn else 128
        ASZ = (H_OFF + 2048*3584*2) if ffn else (HS_OFF + 2048*2048*2)
        if ffn:
            A(f"s_lshl_b32 s3, s{sMH}, 16\ns_lshl_b32 s4, s{sCB}, 8\ns_add_u32 s3, s3, s4")
            A(f"v_lshrrev_b32 v{t0}, 4, v{L}\nv_bfe_u32 v{t1}, v{L}, 1, 3\nv_xor_b32 v{t1}, v{t1}, v{t0}\nv_and_b32 v{t2}, 1, v{L}")
            A(f"v_lshlrev_b32 v{t2}, 4, v{t2}\nv_lshl_add_u32 v{t2}, v{t0}, 11, v{t2}\nv_add_u32 v{t2}, s3, v{t2}")
            A(f"v_lshl_add_u32 v{t0}, v{t1}, 5, v{t2}\nv_xor_b32 v{t1}, 4, v{t1}\nv_lshl_add_u32 v{t1}, v{t1}, 5, v{t2}")
            for n in range(8):
                A(f"v_add_u32 v{vD[n]}, {n*8192 - (n&3)*1024}, v{t1 if (n>>1)&1 else t0}")
        else:
            A(f"s_lshl_b32 s3, s{sCB}, 18\ns_lshl_b32 s4, s{sMH}, 17\ns_add_u32 s3, s3, s4")
            A(f"v_lshrrev_b32 v{t0}, 4, v{L}\nv_and_b32 v{t1}, 7, v{L}\nv_xor_b32 v{t1}, v{t1}, v{t0}\nv_lshrrev_b32 v{t2}, 3, v{L}")
            A(f"v_lshlrev_b32 v{t2}, 11, v{t2}\nv_add_u32 v{t2}, s3, v{t2}")
            A(f"v_lshl_add_u32 v{t0}, v{t1}, 4, v{t2}\nv_xor_b32 v{t1}, 4, v{t1}\nv_lshl_add_u32 v{t1}, v{t1}, 4, v{t2}")
            for n in range(8):
                A(f"v_add_u32 v{vD[n]}, {n*16384 - (n&3)*1024}, v{t1 if n&1 else t0}")
        if ffn:
            A(f"v_bfe_u32 v{t0}, v{L}, 2, 2\nv_and_b32 v{t1}, 3, v{L}\nv_lshl_add_u32 v{t0}, v{t0}, 4, v{t1}\nv_lshlrev_b32 v{t0}, 11, v{t0}")
            A(f"v_lshrrev_b32 v{t1}, 4, v{L}\nv_lshl_add_u32 v{vXL}, v{t1}, 3, v{t0}")
            A(f"s_lshl_b32 s54, s{sTB}, 17\ns_lshl_b32 s3, s{sCB}, 8\ns_add_u32 s54, s54, s3\ns_lshl_b32 s3, s{sKH}, 7\ns_add_u32 s54, s54, s3")
            A("s_add_u32 s55, s54, 8192\ns_add_u32 s56, s54, 16384\ns_add_u32 s57, s54, 24576")
        else:
            A(f"v_bfe_u32 v{t0}, v{L}, 5, 1\nv_and_b32 v{t1}, 15, v{L}\nv_lshlrev_b32 v{t0}, 8, v{t0}\nv_lshl_add_u32 v{t0}, v{t1}, 4, v{t0}")
            A(f"v_bfe_u32 v{t1}, v{L}, 4, 1\nv_lshl_add_u32 v{vXL}, v{t1}, 3, v{t0}")
            A(f"s_lshl_b32 s54, s{sTB}, 5\ns_lshl_b32 s3, s{sCB}, 2\ns_add_u32 s54, s54, s3\ns_lshl_b32 s3, s{sKH}, 1\ns_add_u32 s54, s54, s3\ns_lshl_b32 s54, s54, 12")
            if XN_OFF: A(f"s_add_u32 s54, s54, {XN_OFF}")
            A("s_add_u32 s55, s54, 4096")
            A(f"s_lshl_b32 s3, s{sCB}, 8\ns_lshl_b32 s4, s{sKH}, 7\ns_add_u32 s3, s3, s4\nv_lshrrev_b32 v{t3}, 4, v{L}\nv_lshl_add_u32 v{t3}, v{t3}, 3, s3")
        A("s_waitcnt lgkmcnt(0)")
        if ffn:
            srd(A, sB, 44, 45, BSZ)
            A(f"s_mul_i32 s{sBoff}, s{sKH}, {1792*2048}")
            A(f"s_mul_i32 s{sAoff}, s{sTB}, 112\ns_mul_i32 s3, s{sKH}, 56\ns_add_u32 s{sAoff}, s{sAoff}, s3\ns_lshl_b32 s{sAoff}, s{sAoff}, 12\ns_add_u32 s{sAoff}, s{sAoff}, {H_OFF}")
        else:
            A(f"s_cmp_eq_u32 s{sKH}, 0\ns_cselect_b32 s{sB}, s40, s42\ns_cselect_b32 s{sB+1}, s41, s43\ns_mov_b32 s{sB+2}, {BSZ}\ns_mov_b32 s{sB+3}, 0x00020000")
            A(f"s_mov_b32 s{sBoff}, 0")
            A(f"s_lshl_b32 s{sAoff}, s{sTB}, 1\ns_add_u32 s{sAoff}, s{sAoff}, s{sKH}\ns_lshl_b32 s{sAoff}, s{sAoff}, 17\ns_add_u32 s{sAoff}, s{sAoff}, {HS_OFF}")
        srd(A, sA, 48, 49, ASZ)
        srd(A, sWS, 48, 49, FL_OFF + 256*128)

        def dma_ops(st, part):
            o = [Op(f"s_add_u32 m0, s{sM}, {st*16384 + part*4096}")]
            for n in range(4*part, 4*part+4):
                o.append(Op(f"buffer_load_dwordx4 v{vD[n]}, s[{sB}:{sB+3}], s{sBoff} offen offset:{(n&3)*1024} lds", 'vm', f"d{st}"))
            if part == 1: o.append(Op(f"s_add_u32 s{sBoff}, s{sBoff}, {BINC}"))
            return o
        def a_ops(buf):
            o = []
            for i in range(4):
                r = AB + buf*16 + i*4
                o.append(Op(f"buffer_load_dwordx4 a[{r}:{r+3}], v{vA}, s[{sA}:{sA+3}], s{sAoff} offen offset:{i*1024}", 'vm', f"x{buf}"))
            o.append(Op(f"s_add_u32 s{sAoff}, s{sAoff}, 4096"))
            return o
        def step_vm(t):
            if t % 2 == 1: return a_ops((t+7) % 8), dma_ops(t >> 1, 0)
            return a_ops((t+7) % 8) + dma_ops(((t >> 1) + 3) % 4, 1), []
        def emit(ops):
            prev = False
            for o in ops:
                if prev and o.text.endswith('lds'): A("s_nop 0")
                A(o.text); prev = ' m0,' in o.text
        for t in range(1, 8):
            a, b = step_vm(t); emit(a + b)
        if ffn:
            A(f"v_bfe_u32 v{t0}, v{L}, 2, 2\nv_lshrrev_b32 v{t1}, 4, v{L}\nv_lshl_add_u32 v{t2}, v{t1}, 3, v{t0}\nv_lshlrev_b32 v{t2}, 8, v{t2}")
            A(f"v_and_b32 v{t3}, 3, v{L}\nv_lshl_add_u32 v{t2}, v{t3}, 3, v{t2}\ns_lshl_b32 s3, s{sKH}, 16\nv_add_u32 v{t2}, s3, v{t2}")
            A(f"v_bfe_u32 v{t0}, v{L}, 2, 3\ns_lshl_b32 s3, s{sKH}, 2\nv_xor_b32 v{t0}, s3, v{t0}")
            for j in range(8):
                A(f"v_xor_b32 v{t1}, {j}, v{t0}\nv_lshl_add_u32 v{vR[j]}, v{t1}, 5, v{t2}")
        else:
            A(f"v_and_b32 v{t0}, 15, v{L}\nv_lshrrev_b32 v{t1}, 1, v{t0}\nv_lshrrev_b32 v{t2}, 4, v{L}\nv_xor_b32 v{t1}, v{t1}, v{t2}\nv_lshlrev_b32 v{t1}, 4, v{t1}")
            A(f"v_lshl_add_u32 v{t0}, v{t0}, 7, v{t1}\ns_mul_i32 s3, s{sKH}, {65536+8192}\nv_add_u32 v{vR[0]}, s3, v{t0}\nv_xor_b32 v{vR[1]}, 64, v{vR[0]}")
            A(f"v_xor_b32 v{vR[2]}, 8192, v{vR[0]}\nv_xor_b32 v{vR[3]}, 8192, v{vR[1]}")
        for r in range(128, 256): A(f"v_mov_b32 v{r}, 0")
        def frag_reads(j, st, hk):
            d = BF + j*4
            if ffn:
                return [Op(f"ds_read_b64_tr_b16 a[{d+2*h}:{d+2*h+1}], v{vR[j]} offset:{st*16384 + hk*8192 + h*1024}", 'lds', f"f{j}") for h in range(2)]
            return [Op(f"ds_read_b128 a[{d}:{d+3}], v{vR[(j>>2)*2 + hk]} offset:{st*16384 + (j&3)*2048}", 'lds', f"f{j}")]
        stamp(A, opt, 1)
        A(f"s_waitcnt vmcnt({56-16})\ns_barrier")
        for j in range(8): emit(frag_reads(j, 0, 0))
        A(f"s_mov_b32 s{sTrip}, 0\ns_waitcnt lgkmcnt(0)")
        body = []
        BARG = opt.get('barg3', 2)
        for t in range(8):
            mf = []
            for j in range(8):
                order = range(4) if j % 2 == 0 else range(3, -1, -1)
                for n, i in enumerate(order):
                    c = f"v[{acc(j,i)}:{acc(j,i)+3}]"
                    mf.append(Op(f"v_mfma_f32_16x16x32_bf16 {c}, a[{BF+j*4}:{BF+j*4+3}], a[{AB+t*16+i*4}:{AB+t*16+i*4+3}], {c}",
                                 need_vm=(f"x{t}" if (j == 0 and n == 0) else None), need_lds=(f"f{j}" if n == 0 else None)))
            pre, post = step_vm(t)
            if t % 2 == 0: st, hk, first = t >> 1, 1, 0
            else: st, hk, first = ((t >> 1) + 1) % 4, 0, BARG*4 - 1
            rd = []
            for j in range(8):
                for o in frag_reads(j, st, hk): rd.append((max(j*4 + 3, first), o))
            if t % 2 == 1:
                vm = [(k, o) for k, o in enumerate(pre)] + [(first + 4 + 4*k, o) for k, o in enumerate(post)]
            else:
                vm = [(1 + 2*k, o) for k, o in enumerate(pre)]
            slots = spread(32, [rd, vm], per_gap=1)
            for m in range(32):
                body.append(mf[m])
                if t % 2 == 1 and m == first:
                    body.append(Op("s_waitcnt lgkmcnt(0)", 'lgkm0', need_vm=f"d{st}"))
                    body.append(Op("s_barrier"))
                body.extend(slots[m])
            if t == 0:
                body.append(Op(f"s_cmp_lt_u32 s{sTrip}, {NTRIP-1}"))
                body.append(Op(f"s_cselect_b32 s{sB+2}, {BSZ}, 0"))
                body.append(Op(f"s_cselect_b32 s{sA+2}, {ASZ}, 0"))
        lines = resolve_loop(body, lgkm_slack=4)
        stamp(A, opt, 2)
        A(f".p2align 6\nL_k3_{nm}_loop:")
        prev = ""
        for x in lines:
            if ' m0,' in prev and x.endswith('lds'): A("s_nop 0")
            A(x); prev = x
        A(f"s_add_u32 s{sTrip}, s{sTrip}, 1\ns_cmp_lt_u32 s{sTrip}, {NTRIP}\ns_cbranch_scc1 L_k3_{nm}_loop")
        stamp(A, opt, 3)
        A(f"s_lshl_b32 s58, s{sTile}, 7\ns_add_u32 s58, s58, {FL_OFF}")
        A(f"s_lshl_b32 s59, s{sTile}, 16\ns_lshl_b32 s3, s{sWV}, 14\ns_add_u32 s59, s59, s3\ns_add_u32 s59, s59, {S_OFF}")
        A("v_mov_b32 v1, 0")
        if ffn:
            srd(A, sB, 50, 51, 2048*1024*2)
            srd(A, sO, 46, 47, 2048*1024*4)
            A(f"buffer_load_dword v2, v1, s[{sWS}:{sWS+3}], s58 offen sc1")
            for m in range(4):
                for i in range(4):
                    r = 24 + (m*4+i)*2
                    A(f"buffer_load_dwordx2 v[{r}:{r+1}], v{vXL}, s[{sB}:{sB+3}], s{54+i} offen offset:{m*32}")
            A("s_waitcnt vmcnt(16) lgkmcnt(0)\ns_barrier")
            A("s_mov_b32 s44, 0x40000")
            A("L_k3_poll:\nv_readfirstlane_b32 s3, v2\ns_cmp_eq_u32 s3, 1\ns_cbranch_scc1 L_k3_got\ns_sleep 2")
            A(f"buffer_load_dword v2, v1, s[{sWS}:{sWS+3}], s58 offen sc1\ns_waitcnt vmcnt(0)")
            A("s_sub_u32 s44, s44, 1\ns_cmp_lg_u32 s44, 0\ns_cbranch_scc1 L_k3_poll\nL_k3_got:")
            for k in range(16):
                if k % 4 == 0 and k: A("s_add_u32 s59, s59, 4096")
                A(f"buffer_load_dwordx4 a[{k*4}:{k*4+3}], v{vA}, s[{sWS}:{sWS+3}], s59 offen offset:{(k&3)*1024} sc1")
        else:
            for m in range(4):
                for i in range(4):
                    r = 24 + (m*4+i)*2
                    A(f"buffer_load_dwordx2 v[{r}:{r+1}], v{vXL}, s[{sWS}:{sWS+3}], s{54+(m>>1)} offen offset:{i*1024+(m&1)*512}")
            for m in range(4):
                A(f"global_load_dwordx2 v[{56+m*2}:{57+m*2}], v{t3}, s[52:53] offset:{m*32}")
            A("s_waitcnt vmcnt(20) lgkmcnt(0)\ns_barrier")
        stamp(A, opt, 4)
        A(f"s_lshl_b32 s3, s{sWV}, 14\nv_add_u32 v2, s3, v{vA}\nv_xor_b32 v3, 0x8000, v2")
        for k in range(16):
            r = acc(4, 0) + k*4
            A(f"ds_write_b128 v2, v[{r}:{r+3}] offset:{k*1024}")
        A("s_waitcnt lgkmcnt(0)\ns_barrier")
        for k in range(16):
            A(f"ds_read_b128 v[{64+k*4}:{64+k*4+3}], v3 offset:{k*1024}")
        pk = lambda r: f"v[{r}:{r+1}]"
        stamp(A, opt, 5)
        if ffn:
            LOG2E = 1.4426950408889634
            A(f"s_mov_b32 s4, {hx(f2u(-LOG2E))}\ns_mov_b32 s5, s4")
            A(f"v_lshlrev_b32 v{vXL}, 1, v{vXL}")
            for i in range(4): A(f"s_lshl_b32 s{54+i}, s{54+i}, 1")
            for k in range(16):
                y = ACC + k*4; e = 64 + k*4
                A(f"s_waitcnt lgkmcnt({min(15, 15-k)})")
                for h in (0, 2): A(f"v_pk_add_f32 {pk(y+h)}, {pk(y+h)}, {pk(e+h)}")
                for h in (0, 2): A(f"v_pk_mul_f32 {pk(e+h)}, {pk(y+h)}, s[4:5]")
                for h in range(4): A(f"v_exp_f32 v{e+h}, v{e+h}")
                A("s_nop 0")
                for h in (0, 2): A(f"v_pk_add_f32 {pk(e+h)}, {pk(e+h)}, 1.0 op_sel_hi:[1,0]")
                for h in range(4): A(f"v_rcp_f32 v{e+h}, v{e+h}")
                A("s_nop 0")
                for h in (0, 2): A(f"v_pk_mul_f32 {pk(y+h)}, {pk(y+h)}, {pk(e+h)}")
            stamp(A, opt, 6)
            for k in range(16):
                m, i = k >> 2, k & 3
                y = ACC + k*4; e = 64 + k*4; xr = 24 + k*2
                A(f"s_waitcnt vmcnt({15})")
                for h in range(4): A(f"v_accvgpr_read_b32 v{4+h}, a{k*4+h}")
                A(f"v_lshlrev_b32 v{e}, 16, v{xr}\nv_and_b32 v{e+1}, 0xffff0000, v{xr}\nv_lshlrev_b32 v{e+2}, 16, v{xr+1}\nv_and_b32 v{e+3}, 0xffff0000, v{xr+1}")
                for h in (0, 2): A(f"v_pk_fma_f32 {pk(e+h)}, {pk(y+h)}, {pk(4+h)}, {pk(e+h)}")
                A(f"buffer_store_dwordx4 v[{e}:{e+3}], v{vXL}, s[{sO}:{sO+3}], s{54+i} offen offset:{m*64}")
        else:
            A(f"s_cmp_eq_u32 s{sKH}, 0\ns_cselect_b32 s4, 2.0, -2.0\ns_mov_b32 s5, s4")
            A(f"v_mov_b32 v14, v{vA}")
            A("s_waitcnt vmcnt(0)")
            for k in range(16):
                m, i = k >> 2, k & 3
                y = ACC + k*4; e = 64 + k*4; xr = 24 + k*2
                if i == 0:
                    d = 56 + m*2
                    A(f"v_lshlrev_b32 v8, 16, v{d}\nv_and_b32 v9, 0xffff0000, v{d}\nv_lshlrev_b32 v10, 16, v{d+1}\nv_and_b32 v11, 0xffff0000, v{d+1}")
                A(f"v_lshlrev_b32 v4, 16, v{xr}\nv_and_b32 v5, 0xffff0000, v{xr}\nv_lshlrev_b32 v6, 16, v{xr+1}\nv_and_b32 v7, 0xffff0000, v{xr+1}")
                A("v_pk_mul_f32 v[4:5], v[4:5], v[8:9]\nv_pk_mul_f32 v[6:7], v[6:7], v[10:11]")
                A("v_cvt_pk_bf16_f32 v12, v4, v5\nv_cvt_pk_bf16_f32 v13, v6, v7")
                A("v_lshlrev_b32 v4, 16, v12\nv_and_b32 v5, 0xffff0000, v12\nv_lshlrev_b32 v6, 16, v13\nv_and_b32 v7, 0xffff0000, v13")
                A(f"s_waitcnt lgkmcnt({min(15, 15-k)})")
                for h in (0, 2): A(f"v_pk_add_f32 {pk(y+h)}, {pk(y+h)}, {pk(e+h)} neg_lo:[0,1] neg_hi:[0,1]")
                for h in (0, 2): A(f"v_pk_fma_f32 {pk(y+h)}, {pk(y+h)}, s[4:5], {pk(4+h)}")
                if k % 4 == 0 and k: A("s_add_u32 s59, s59, 4096")
                A(f"buffer_store_dwordx4 v[{y}:{y+3}], v14, s[{sWS}:{sWS+3}], s59 offen offset:{(k&3)*1024} sc1".replace("v14", "v14"))
            stamp(A, opt, 6)
            A("s_waitcnt vmcnt(0)\ns_barrier")
            A(f"s_cmp_lg_u32 s{sWV}, 0\ns_cbranch_scc1 L_k3_ssm_done")
            A(f"v_mov_b32 v2, 1\ns_mov_b64 exec, 1\nbuffer_store_dword v2, v1, s[{sWS}:{sWS+3}], s58 offen sc1\ns_mov_b64 exec, -1")
            A("L_k3_ssm_done:")
        stamp_out(A, opt, 8, 2, sWV, 48, 49)
    role(True)
    A("s_endpgm")
    A("L_k3_ssm:")
    role(False)
    A("L_k3_end:\ns_endpgm")
    return kernel_desc("down_kernel", 256+160, 256, 102)
```

```python
import sys, struct
def f2u(x): return struct.unpack("<I", struct.pack("<f", x))[0]
def hx(x): return f"0x{x & 0xffffffff:08x}"
import math

import os
WSB = int(os.environ.get('WSB', '0'), 0)
XN_OFF = WSB + 0
H_OFF  = WSB + 0x400000
HS_OFF = WSB + 0x1200000
S_OFF  = WSB + 0x1A00000
EX_OFF = WSB + 0x2200000
FL_OFF = WSB + 0x2240000
WS_SIZE = 0x10000000
KA = dict(x=0, lre=8, lim=16, bre=24, bim=32, cre=40, cim=48, ldt=56, dsk=64, bx=72, wg=80, wu=88, wd=96, out=104, dbg=112, ws=120)

class Asm:
    def __init__(self): self.l = []
    def __call__(self, s):
        for x in s.split("\n"):
            x = x.strip()
            if x: self.l.append(("" if x.endswith(":") else "    ") + x)
    def text(self): return "\n".join(self.l) + "\n"

def kernel_head(A, name):
    A.l.append(f".globl {name}\n.p2align 8\n.type {name},@function\n{name}:")
def kernel_desc(name, vgpr, accum, sgpr=102):
    return f""".p2align 6
.amdhsa_kernel {name}
  .amdhsa_next_free_vgpr {vgpr}
  .amdhsa_next_free_sgpr {sgpr}
  .amdhsa_accum_offset {accum}
  .amdhsa_group_segment_fixed_size 0
  .amdhsa_kernarg_size 128
  .amdhsa_user_sgpr_count 2
  .amdhsa_user_sgpr_kernarg_segment_ptr 1
  .amdhsa_system_sgpr_workgroup_id_x 1
  .amdhsa_float_denorm_mode_32 3
.end_amdhsa_kernel
"""
def srd(A, d, lo, hi, size, add=None):
    if add is None:
        A(f"s_mov_b32 s{d}, s{lo}\ns_mov_b32 s{d+1}, s{hi}")
    else:
        A(f"s_add_u32 s{d}, s{lo}, {add}\ns_addc_u32 s{d+1}, s{hi}, 0")
    A(f"s_mov_b32 s{d+2}, {size}\ns_mov_b32 s{d+3}, 0x00020000")

PROF_OFF = 0x3000000
def stamp(A, opt, n):
    if opt.get('prof'):
        A(f"s_memtime s[{70+4*n}:{71+4*n}]\ns_memrealtime s[{72+4*n}:{73+4*n}]\ns_waitcnt lgkmcnt(0)")
def stamp_out(A, opt, nst, kidx, swv, lo, hi):
    if opt.get('prof'):
        A("s_waitcnt vmcnt(0)")
        stamp(A, opt, nst - 1)
        srd(A, 64, lo, hi, WS_SIZE)
        A(f"s_lshl_b32 s3, s2, 2\ns_add_u32 s3, s3, s{swv}\ns_lshl_b32 s3, s3, 6\ns_add_u32 s3, s3, {PROF_OFF + kidx*0x10000}")
        A("v_mov_b32 v1, 0")
        for n in range(nst):
            A(f"v_mov_b32 v2, s{70+4*n}\nv_mov_b32 v3, s{72+4*n}\nbuffer_store_dwordx2 v[2:3], v1, s[64:67], s3 offen offset:{n*8}\ns_nop 1")
def gen_k1(A, opt):
    kernel_head(A, "ln_kernel")
    A("s_cmp_ge_u32 s2, 256\ns_cbranch_scc1 L_k1_end")
    A(f"s_load_dwordx2 s[4:5], s[0:1], {KA['x']}\ns_load_dwordx2 s[6:7], s[0:1], {KA['ws']}")
    PF = opt.get('pf', 0)
    if PF:
        A(f"s_load_dwordx4 s[24:27], s[0:1], {KA['wg']}\ns_load_dwordx4 s[28:31], s[0:1], {KA['bre']}")
        A(f"s_load_dwordx4 s[32:35], s[0:1], {KA['cre']}\ns_load_dwordx2 s[36:37], s[0:1], {KA['wd']}")
    A("v_and_b32 v1, 7, v0\nv_lshrrev_b32 v2, 3, v0")
    A("s_lshr_b32 s16, s2, 3")
    A("s_bfe_u32 s17, s2, 0x10002")
    A("s_and_b32 s18, s2, 3")
    A("s_lshl_b32 s19, s16, 6\ns_lshl_b32 s20, s17, 5\ns_add_u32 s19, s19, s20\ns_lshl_b32 s20, s18, 2\ns_add_u32 s19, s19, s20")
    A("v_lshrrev_b32 v3, 2, v1\nv_lshlrev_b32 v3, 4, v3\nv_and_b32 v4, 3, v1\nv_add3_u32 v3, v3, v4, s19")
    A("v_lshlrev_b32 v3, 11, v3\nv_lshl_add_u32 v3, v2, 4, v3")
    A("s_waitcnt lgkmcnt(0)")
    srd(A, 8, 4, 5, 2048*1024*2)
    srd(A, 12, 6, 7, FL_OFF + 256*128)
    A("buffer_load_dwordx4 v[8:11], v3, s[8:11], 0 offen\nbuffer_load_dwordx4 v[12:15], v3, s[8:11], 0 offen offset:1024")
    NPF = 0
    if PF:
        fl = " nt" if PF & 2 else ""
        A("v_bfe_u32 v50, v0, 3, 5\nv_min_u32 v51, 6, v1\ns_lshr_b32 s38, s2, 3\ns_lshl_b32 s38, s38, 5\nv_add_u32 v50, s38, v50\ns_movk_i32 s39, 7168\nv_mul_lo_u32 v50, v50, s39")
        A("s_and_b32 s38, s2, 7\ns_mul_i32 s38, s38, 896\nv_lshl_add_u32 v50, v51, 7, v50\nv_add_u32 v50, s38, v50")
        A("v_lshrrev_b32 v51, 8, v0\ns_nop 0\nv_readfirstlane_b32 s38, v51\ns_cmp_eq_u32 s38, 0\ns_cselect_b32 s24, s24, s26\ns_cselect_b32 s25, s25, s27\ns_cselect_b32 s28, s28, s30\ns_cselect_b32 s29, s29, s31\ns_cselect_b32 s32, s32, s34\ns_cselect_b32 s33, s33, s35")
        A(f"global_load_dword v52, v50, s[24:25]{fl}")
        A("s_and_b32 s38, s2, 7\ns_lshl_b32 s38, s38, 18\ns_lshr_b32 s39, s2, 3\ns_lshl_b32 s39, s39, 13\ns_add_u32 s38, s38, s39\nv_and_b32 v50, 63, v0\nv_lshlrev_b32 v50, 7, v50\nv_add_u32 v50, s38, v50")
        A(f"global_load_dword v53, v50, s[28:29]{fl}")
        NPF = 2
        if PF & 4:
            A("s_lshl_b32 s38, s2, 13\nv_and_b32 v50, 63, v0\nv_lshlrev_b32 v50, 7, v50\nv_add_u32 v50, s38, v50")
            A(f"global_load_dword v54, v50, s[32:33]")
            A("s_mul_i32 s38, s2, 28672\nv_min_u32 v50, 223, v0\nv_lshlrev_b32 v50, 7, v50\nv_add_u32 v50, s38, v50")
            A(f"global_load_dword v55, v50, s[36:37]")
            NPF = 4
    A("s_lshl_b32 s19, s16, 17\ns_lshl_b32 s20, s18, 10\ns_add_u32 s19, s19, s20\ns_lshl_b32 s20, s17, 7\ns_add_u32 s19, s19, s20")
    A(f"s_add_u32 s19, s19, {XN_OFF}")
    A("v_lshrrev_b32 v4, 2, v2\nv_lshlrev_b32 v4, 12, v4\nv_and_b32 v5, 3, v2\nv_lshlrev_b32 v5, 8, v5\nv_add3_u32 v4, v4, v5, s19\nv_lshl_add_u32 v4, v1, 4, v4")
    A("s_and_b32 s20, s2, 7\ns_lshl_b32 s20, s20, 1")
    A("v_lshrrev_b32 v5, 5, v0\nv_add_u32 v5, s20, v5")
    A("v_cmp_gt_u32 vcc, 7, v5\nv_mov_b32 v40, 0\nv_mov_b32 v42, 0\nv_cndmask_b32 v41, 0, 1, vcc")
    A(f"s_lshl_b32 s20, s2, 10\ns_add_u32 s20, s20, {EX_OFF}\nv_lshl_add_u32 v6, v0, 4, s20")
    A(f"s_lshl_b32 s20, s2, 7\ns_add_u32 s20, s20, {FL_OFF}\nv_mov_b32 v7, s20")
    A("v_cmp_gt_u32 vcc, 64, v0\ns_nop 1\nv_cndmask_b32 v6, v7, v6, vcc\nv_cndmask_b32 v41, 0, v41, vcc\nv_mov_b32 v43, v41")
    A("v_cmp_gt_u32 vcc, 65, v0\ns_and_saveexec_b64 s[22:23], vcc\ns_cbranch_execz L_k1_noinit")
    A("buffer_store_dwordx4 v[40:43], v6, s[12:15], 0 offen")
    A("L_k1_noinit:\ns_mov_b64 exec, s[22:23]")
    A("v_lshrrev_b32 v5, 6, v0\nv_lshlrev_b32 v5, 2, v5\nv_lshl_add_u32 v5, v1, 5, v5\nv_lshlrev_b32 v6, 5, v1")
    A(f"s_waitcnt vmcnt({NPF})")
    for r in range(8):
        A(f"v_lshlrev_b32 v{16+2*r}, 16, v{8+r}\nv_and_b32 v{17+2*r}, 0xffff0000, v{8+r}")
    def reduce(src, ldsoff):
        A(f"s_nop 1\nv_add_f32_dpp v{src}, v{src}, v{src} row_ror:8 row_mask:0xf bank_mask:0xf")
        A(f"v_mov_b32 v33, v{src}\ns_nop 1\nv_permlane16_swap_b32 v{src}, v33\ns_nop 1\nv_add_f32 v{src}, v{src}, v33")
        A(f"v_mov_b32 v33, v{src}\ns_nop 1\nv_permlane32_swap_b32 v{src}, v33\ns_nop 1\nv_add_f32 v{src}, v{src}, v33")
        A(f"ds_write_b32 v5, v{src} offset:{ldsoff}")
        A("s_waitcnt lgkmcnt(0)\ns_barrier")
        A(f"ds_read_b128 v[36:39], v6 offset:{ldsoff}\nds_read_b128 v[40:43], v6 offset:{ldsoff+16}\ns_waitcnt lgkmcnt(0)")
        A("v_add_f32 v36, v36, v37\nv_add_f32 v38, v38, v39\nv_add_f32 v40, v40, v41\nv_add_f32 v42, v42, v43")
        A("v_add_f32 v36, v36, v38\nv_add_f32 v40, v40, v42\nv_add_f32 v32, v36, v40")
    A("v_add_f32 v34, v16, v17")
    for r in range(2, 16): A(f"v_add_f32 v34, v34, v{16+r}")
    reduce(34, 0)
    A(f"v_mul_f32 v44, {hx(f2u(1.0/1024))}, v32")
    A("v_sub_f32 v35, v16, v44\nv_mul_f32 v34, v35, v35")
    for r in range(1, 16): A(f"v_sub_f32 v35, v{16+r}, v44\nv_fmac_f32 v34, v35, v35")
    reduce(34, 256)
    A(f"v_mul_f32 v45, {hx(f2u(1.0/1024))}, v32")
    A("v_cvt_pk_bf16_f32 v46, v44, v45")
    A("v_lshlrev_b32 v44, 16, v46\nv_and_b32 v45, 0xffff0000, v46")
    A(f"v_add_f32 v45, {hx(f2u(1e-5))}, v45\nv_cvt_pk_bf16_f32 v45, v45, v45\nv_lshlrev_b32 v45, 16, v45")
    A("v_sqrt_f32 v45, v45\ns_nop 0\nv_cvt_pk_bf16_f32 v45, v45, v45\nv_lshlrev_b32 v45, 16, v45\nv_rcp_f32 v45, v45")
    for r in range(8):
        A(f"v_sub_f32 v{16+2*r}, v{16+2*r}, v44\nv_sub_f32 v{17+2*r}, v{17+2*r}, v44")
        A(f"v_cvt_pk_bf16_f32 v{8+r}, v{16+2*r}, v{17+2*r}")
        A(f"v_lshlrev_b32 v{16+2*r}, 16, v{8+r}\nv_and_b32 v{17+2*r}, 0xffff0000, v{8+r}")
        A(f"v_mul_f32 v{16+2*r}, v{16+2*r}, v45\nv_mul_f32 v{17+2*r}, v{17+2*r}, v45")
        A(f"v_cvt_pk_bf16_f32 v{8+r}, v{16+2*r}, v{17+2*r}")
    A("s_mov_b32 s20, 0x10000")
    A("buffer_store_dwordx4 v[8:11], v4, s[12:15], 0 offen\nbuffer_store_dwordx4 v[12:15], v4, s[12:15], s20 offen")
    A("L_k1_end:\ns_endpgm")
    return kernel_desc("ln_kernel", 56, 56, 48)

class Op:
    def __init__(self, text, kind=None, tag=None, need_vm=None, need_lds=None):
        self.text, self.kind, self.tag, self.need_vm, self.need_lds = text, kind, tag, need_vm, need_lds

def resolve_loop(ops, lgkm_slack=6):
    n = len(ops)
    out = []
    def count_after(i, tag, kind):
        c = 0
        for d in range(1, n + 1):
            o = ops[(i - d) % n]
            if o.kind == kind:
                if o.tag == tag: return c
                c += 1
        raise Exception(f"tag {tag} not found")
    bound = {'vm': 10**6, 'lds': 10**6}
    res = None
    for p in range(2):
        res = []
        for i, o in enumerate(ops):
            w = []
            if o.need_vm is not None:
                if isinstance(o.need_vm, tuple):
                    c = count_after(i, o.need_vm[0], 'vm') + o.need_vm[1] * sum(1 for z in ops if z.kind == 'vm')
                else:
                    c = count_after(i, o.need_vm, 'vm')
                if bound['vm'] > c:
                    assert c <= 63
                    w.append(f"vmcnt({c})"); bound['vm'] = c
            if o.need_lds is not None:
                c = count_after(i, o.need_lds, 'lds')
                if bound['lds'] > c:
                    c = min(c, lgkm_slack)
                    w.append(f"lgkmcnt({c})"); bound['lds'] = c
            if w: res.append("s_waitcnt " + " ".join(w))
            res.append(o.text)
            if o.kind == 'vm': bound['vm'] += 1
            if o.kind == 'lds': bound['lds'] += 1
            if o.kind == 'lgkm0': bound['lds'] = 0
        if p == 0: first = list(res)
    return first

def interleave(mfmas, fillers, per_gap=2):
    out = []; fi = 0
    for m, mf in enumerate(mfmas):
        out.append(mf)
        k = 0
        while fi < len(fillers) and fillers[fi][0] <= m and (k < per_gap or m == len(mfmas) - 1):
            out.append(fillers[fi][1]); fi += 1; k += 1
    assert fi == len(fillers)
    return out

def spread(nm, streams, per_gap=1):
    slots = [[] for _ in range(nm)]
    for st in streams:
        last = 0
        for e, op in st:
            m = max(e, last)
            while m < nm - 1 and len(slots[m]) >= per_gap: m += 1
            slots[m].append(op); last = m
    return slots

STAGE2 = 36864
def gen_k2(A, opt):
    kernel_head(A, "up_kernel")
    ACC_F = 32
    def accF(p, gu, i): b = ACC_F + ((p*2+gu)*4+i)*4; return b
    def accS(q, i): return (q*4+i)*4
    WF = 64
    XB = 136
    PAR = 200
    vWD = list(range(1, 8))
    vBD = [8, 9]
    vX = 10
    vRW = [11, 12]
    vRB = [[13, 14], [15, 16]]
    vT = 17
    sW, sB, sX, sWS = 8, 12, 16, 20
    sRB, sCB, sWV = 24, 25, 26
    sWoff, sBoff, sXoff = 27, 28, 29
    sM = [30, 31]
    sMB = [32, 33]
    sDelta, sTrip = 34, 35
    sTB = 36
    A("s_cmp_ge_u32 s2, 256\ns_cbranch_scc1 L_k2_end")
    stamp(A, opt, 0)
    A(f"s_load_dwordx4 s[40:43], s[0:1], {KA['wg']}")
    A(f"s_load_dwordx4 s[44:47], s[0:1], {KA['bre']}")
    A(f"s_load_dwordx2 s[48:49], s[0:1], {KA['ws']}")
    A(f"s_load_dwordx4 s[52:55], s[0:1], {KA['lre']}")
    A(f"s_load_dwordx2 s[56:57], s[0:1], {KA['ldt']}")
    A(f"v_lshrrev_b32 v{vT}, 6, v0\nv_and_b32 v{vT+1}, 63, v0")
    A(f"s_and_b32 s{sCB}, s2, 7\ns_lshl_b32 s{sCB}, s{sCB}, 2\ns_bfe_u32 s3, s2, 0x20003\ns_add_u32 s{sCB}, s{sCB}, s3")
    A(f"s_lshr_b32 s{sRB}, s2, 5")
    A(f"v_readfirstlane_b32 s{sWV}, v{vT}")
    L = vT + 1
    A(f"s_and_b32 s3, s{sWV}, 1\ns_mul_i32 s3, s3, {32*7168}\ns_mul_i32 s4, s{sCB}, 224\ns_add_u32 s3, s3, s4")
    A("s_movk_i32 s5, 4682\ns_movk_i32 s6, 7168")
    t0, t1, t2, t3 = vT+2, vT+3, vT+4, vT+5
    for n in range(7):
        A(f"v_add_u32 v{t0}, {n*64}, v{L}\nv_mul_u32_u24 v{t1}, s5, v{t0}\nv_lshrrev_b32 v{t1}, 16, v{t1}")
        A(f"v_mul_u32_u24 v{t2}, 14, v{t1}\nv_sub_u32 v{t0}, v{t0}, v{t2}")
        A(f"v_and_b32 v{t2}, 19, v{t1}\nv_bfe_u32 v{t3}, v{t1}, 2, 1\nv_lshl_or_b32 v{t2}, v{t3}, 3, v{t2}\nv_bfe_u32 v{t3}, v{t1}, 3, 1\nv_lshl_or_b32 v{t2}, v{t3}, 2, v{t2}")
        A(f"v_mul_u32_u24 v{t2}, s6, v{t2}\nv_lshl_add_u32 v{t2}, v{t0}, 4, v{t2}\nv_add_u32 v{t2}, s3, v{t2}")
        A(f"v_subrev_u32 v{vWD[n]}, {(n&3)*1024}, v{t2}")
    A(f"s_and_b32 s3, s{sWV}, 1\ns_lshl_b32 s3, s3, 4\ns_lshl_b32 s4, s{sCB}, 5\ns_add_u32 s3, s3, s4\ns_lshl_b32 s3, s3, 11")
    for n in range(2):
        A(f"v_lshrrev_b32 v{t0}, 3, v{L}\nv_add_u32 v{t0}, {n*8}, v{t0}\nv_lshrrev_b32 v{t1}, 1, v{t0}\nv_and_b32 v{t2}, 7, v{L}\nv_xor_b32 v{t1}, v{t1}, v{t2}")
        A(f"v_lshlrev_b32 v{t0}, 11, v{t0}\nv_lshl_add_u32 v{t0}, v{t1}, 4, v{t0}\nv_add_u32 v{t0}, s3, v{t0}\nv_subrev_u32 v{vBD[n]}, {n*1024}, v{t0}")
    A(f"v_lshlrev_b32 v{vX}, 4, v{L}")
    A(f"v_and_b32 v{t0}, 15, v{L}\ns_lshl_b32 s3, s{sCB}, 5\nv_add_lshl_u32 v{t0}, v{t0}, s3, 1")
    A("s_waitcnt lgkmcnt(0)")
    P0 = 40
    for q in range(2):
        A(f"global_load_ushort v{P0+q*3+0}, v{t0}, s[52:53] offset:{q*32}")
        A(f"global_load_ushort v{P0+q*3+1}, v{t0}, s[54:55] offset:{q*32}")
        A(f"global_load_ushort v{P0+q*3+2}, v{t0}, s[56:57] offset:{q*32}")
    A(f"s_cmp_lt_u32 s{sWV}, 2\ns_cselect_b32 s{sW}, s40, s42\ns_cselect_b32 s{sW+1}, s41, s43\ns_cselect_b32 s{sB}, s44, s46\ns_cselect_b32 s{sB+1}, s45, s47")
    A(f"s_mov_b32 s{sW+2}, {1024*3584*2}\ns_mov_b32 s{sW+3}, 0x00020000\ns_mov_b32 s{sB+2}, {1024*1024*2}\ns_mov_b32 s{sB+3}, 0x00020000")
    srd(A, sX, 48, 49, XN_OFF + 2048*1024*2)
    srd(A, sWS, 48, 49, FL_OFF + 256*128)
    A(f"s_lshl_b32 s{sTB}, s{sRB}, 2\ns_add_u32 s{sTB}, s{sTB}, s{sWV}")
    A(f"s_lshl_b32 s{sXoff}, s{sTB}, 17")
    if XN_OFF: A(f"s_add_u32 s{sXoff}, s{sXoff}, {XN_OFF}")
    A(f"s_mov_b32 s{sWoff}, 0\ns_mov_b32 s{sBoff}, 0")
    A(f"s_mul_i32 s{sM[0]}, s{sWV}, 7168\ns_add_u32 s{sM[1]}, s{sM[0]}, {STAGE2}")
    A(f"s_lshl_b32 s{sMB[0]}, s{sWV}, 11\ns_add_u32 s{sMB[0]}, s{sMB[0]}, 28672\ns_add_u32 s{sMB[1]}, s{sMB[0]}, {STAGE2}")

    def dma_ops(par, part, tag):
        o = []
        if part == 0:
            o.append(Op(f"s_mov_b32 m0, s{sM[par]}"))
            for n in range(4):
                o.append(Op(f"buffer_load_dwordx4 v{vWD[n]}, s[{sW}:{sW+3}], s{sWoff} offen offset:{n*1024} lds", 'vm', tag))
        else:
            o.append(Op(f"s_add_u32 m0, s{sM[par]}, 4096"))
            for n in range(4, 7):
                o.append(Op(f"buffer_load_dwordx4 v{vWD[n]}, s[{sW}:{sW+3}], s{sWoff} offen offset:{(n-4)*1024} lds", 'vm', tag))
            o.append(Op(f"s_mov_b32 m0, s{sMB[par]}"))
            o.append(Op(f"s_add_u32 s{sWoff}, s{sWoff}, {64*7168}"))
            for n in range(2):
                o.append(Op(f"buffer_load_dwordx4 v{vBD[n]}, s[{sB}:{sB+3}], s{sBoff} offen offset:{n*1024} lds", 'vm', tag))
            o.append(Op(f"s_add_u32 s{sBoff}, s{sBoff}, 128"))
        return o
    def x_ops(buf, tag):
        o = []
        for i in range(4):
            r = XB + buf*16 + i*4
            o.append(Op(f"buffer_load_dwordx4 a[{r}:{r+3}], v{vX}, s[{sX}:{sX+3}], s{sXoff} offen offset:{i*1024}", 'vm', tag))
        o.append(Op(f"s_add_u32 s{sXoff}, s{sXoff}, 4096"))
        return o
    def emit(ops):
        prev_m0 = False
        for o in ops:
            if prev_m0 and 'lds' in o.text: A("s_nop 0")
            A(o.text); prev_m0 = ' m0,' in o.text
    def toggle_m(par):
        return [Op(f"s_add_u32 s{sM[par]}, s{sM[par]}, s{sDelta}"), Op(f"s_add_u32 s{sMB[par]}, s{sMB[par]}, s{sDelta}")]
    A(f"s_mov_b32 s{sDelta}, {2*STAGE2}")
    emit(dma_ops(0, 0, 'd') + dma_ops(0, 1, 'd') + x_ops(0, 'x') + dma_ops(1, 0, 'd') + dma_ops(1, 1, 'd'))
    emit(toggle_m(0) + toggle_m(1))
    def step_vm(t):
        if t % 2 == 1:
            return x_ops((t+3) % 4, f"x{(t+3)%4}"), dma_ops(t >> 1, 0, f"d{t>>1}")
        else:
            par = ((t >> 1) + 1) % 2
            return x_ops((t+3) % 4, f"x{(t+3)%4}") + dma_ops(par, 1, f"d{par}") + toggle_m(par), []
    A(f"s_mov_b32 s{sDelta}, {hx(-2*STAGE2)}")
    emit(step_vm(1)[1])
    emit(step_vm(2)[0])
    emit(step_vm(3)[0] + step_vm(3)[1])
    NPRO = 9 + 4 + 9 + 4 + 4 + 5 + 4 + 4
    A(f"v_bfe_u32 v{t0}, v{L}, 2, 3\nv_bfe_u32 v{t1}, v{L}, 5, 1\nv_lshl_or_b32 v{t0}, v{t1}, 4, v{t0}\nv_mul_u32_u24 v{t0}, 224, v{t0}")
    A(f"v_and_b32 v{t1}, 3, v{L}\nv_lshl_add_u32 v{vRW[0]}, v{t1}, 3, v{t0}\nv_add_u32 v{vRW[1]}, {STAGE2}, v{vRW[0]}")
    A(f"v_and_b32 v{t0}, 15, v{L}\nv_lshrrev_b32 v{t1}, 1, v{t0}\nv_lshrrev_b32 v{t2}, 4, v{L}\nv_xor_b32 v{t1}, v{t1}, v{t2}\nv_lshlrev_b32 v{t1}, 4, v{t1}")
    A(f"v_lshl_add_u32 v{t0}, v{t0}, 7, v{t1}\nv_add_u32 v{vRB[0][0]}, 28672, v{t0}\nv_xor_b32 v{vRB[0][1]}, 64, v{vRB[0][0]}")
    A(f"v_add_u32 v{vRB[1][0]}, {STAGE2}, v{vRB[0][0]}\nv_add_u32 v{vRB[1][1]}, {STAGE2}, v{vRB[0][1]}")
    A(f"s_waitcnt vmcnt({NPRO})")
    LOG2E = 1.4426950408889634
    c_hi = struct.unpack("<f", struct.pack("<f", 1/(2*math.pi)))[0]; c_lo = 1/(2*math.pi) - c_hi
    A(f"s_mov_b32 s3, {hx(f2u(LOG2E))}\ns_mov_b32 s4, {hx(f2u(c_hi))}\ns_mov_b32 s5, {hx(f2u(c_lo))}")
    def cmul(dr, di, ar, ai, br, bi, tmp):
        A(f"v_mul_f32 v{tmp}, v{ai}, v{bi}\nv_mul_f32 v{tmp+1}, v{ai}, v{br}")
        A(f"v_fma_f32 v{tmp}, v{ar}, v{br}, -v{tmp}\nv_fma_f32 v{di}, v{ar}, v{bi}, v{tmp+1}\nv_mov_b32 v{dr}, v{tmp}")
    for q in range(2):
        lr, li, ld = P0+q*3, P0+q*3+1, P0+q*3+2
        b = 50
        dt, zr, zi, hi, lo, mag, la, lb = range(b, b+8)
        A(f"v_lshlrev_b32 v{lr}, 16, v{lr}\nv_lshlrev_b32 v{li}, 16, v{li}\nv_lshlrev_b32 v{ld}, 16, v{ld}")
        A(f"v_mul_f32 v{dt}, s3, v{ld}\nv_exp_f32 v{dt}, v{dt}\ns_nop 0\nv_cvt_pk_bf16_f32 v{dt}, v{dt}, v{dt}\nv_lshlrev_b32 v{dt}, 16, v{dt}")
        A(f"v_mul_f32 v{zr}, v{dt}, v{lr}\nv_mul_f32 v{zi}, v{dt}, v{li}")
        A(f"v_mul_f32 v{mag}, s3, v{zr}\nv_exp_f32 v{mag}, v{mag}")
        A(f"v_mul_f32 v{hi}, s4, v{zi}\nv_fma_f32 v{lo}, v{zi}, s4, -v{hi}\nv_fma_f32 v{lo}, v{zi}, s5, v{lo}")
        A(f"v_rndne_f32 v{la}, v{hi}\nv_sub_f32 v{hi}, v{hi}, v{la}\nv_add_f32 v{hi}, v{hi}, v{lo}")
        A(f"v_cos_f32 v{la}, v{hi}\nv_sin_f32 v{lb}, v{hi}\ns_nop 0\nv_mul_f32 v{la}, v{la}, v{mag}\nv_mul_f32 v{lb}, v{lb}, v{mag}")
        pa = PAR + q*10
        A(f"v_accvgpr_write_b32 a{pa}, v{la}\nv_accvgpr_write_b32 a{pa+1}, v{lb}")
        am1, den, cr, ci = dt, zr, zi, hi
        A(f"v_add_f32 v{am1}, -1.0, v{la}\nv_mul_f32 v{den}, v{lr}, v{lr}\nv_fmac_f32 v{den}, v{li}, v{li}\nv_rcp_f32 v{den}, v{den}")
        A(f"v_mul_f32 v{cr}, v{am1}, v{lr}\nv_fmac_f32 v{cr}, v{lb}, v{li}\nv_mul_f32 v{ci}, v{lb}, v{lr}\nv_fma_f32 v{ci}, -v{am1}, v{li}, v{ci}")
        A(f"v_mul_f32 v{cr}, v{cr}, v{den}\nv_mul_f32 v{ci}, v{ci}, v{den}")
        A(f"v_accvgpr_write_b32 a{pa+2}, v{cr}\nv_accvgpr_write_b32 a{pa+3}, v{ci}")
        tmp = 60; pr, pi, sr, si = 62, 63, 64, 65
        for _ in range(4): cmul(la, lb, la, lb, la, lb, tmp)
        A(f"v_accvgpr_write_b32 a{pa+4}, v{la}\nv_accvgpr_write_b32 a{pa+5}, v{lb}")
        A(f"v_mov_b32 v{pr}, 1.0\nv_mov_b32 v{pi}, 0")
        for k in range(4):
            A(f"v_and_b32 v{sr}, {16<<k}, v0\nv_cmp_ne_u32 vcc, 0, v{sr}\nv_mov_b32 v{si}, 1.0\ns_nop 0")
            A(f"v_cndmask_b32 v{sr}, v{si}, v{la}, vcc\nv_cndmask_b32 v{si}, 0, v{lb}, vcc")
            cmul(pr, pi, pr, pi, sr, si, tmp)
            cmul(la, lb, la, lb, la, lb, tmp)
        A(f"v_accvgpr_write_b32 a{pa+6}, v{pr}\nv_accvgpr_write_b32 a{pa+7}, v{pi}")
        A(f"v_accvgpr_write_b32 a{pa+8}, v{la}\nv_accvgpr_write_b32 a{pa+9}, v{lb}")
    for r in range(32, 256): A(f"v_mov_b32 v{r}, 0")
    for r in range(64): A(f"v_accvgpr_write_b32 a{r}, 0")

    def frag_reads(j, par, kh, tag):
        d = WF + j*4
        if j < 14:
            p, gu = j >> 1, j & 1
            o = []
            for h in range(2):
                off = (8*h + 32*kh)*224 + p*32 + gu*14336
                o.append(Op(f"ds_read_b64_tr_b16 a[{d+2*h}:{d+2*h+1}], v{vRW[par]} offset:{off}", 'lds', tag))
            return o
        q = j - 14
        return [Op(f"ds_read_b128 a[{d}:{d+3}], v{vRB[par][kh]} offset:{q*2048}", 'lds', tag)]
    stamp(A, opt, 1)
    A(f"s_waitcnt vmcnt({NPRO-13})\ns_barrier")
    cnt = 0
    for j in range(18):
        emit(frag_reads(j, 0, 0, None))
    A(f"s_mov_b32 s{sTrip}, 0")
    A(f"s_waitcnt lgkmcnt(0)")

    body = []
    BARG = opt.get('barg', 3)
    for t in range(4):
        mf = []
        for j in range(18):
            order = range(4) if j % 2 == 0 else range(3, -1, -1)
            for n, i in enumerate(order):
                w = f"a[{WF+j*4}:{WF+j*4+3}]"; x = f"a[{XB+t*16+i*4}:{XB+t*16+i*4+3}]"
                if j < 14:
                    b = accF(j >> 1, j & 1, i); c = f"v[{b}:{b+3}]"
                    txt = f"v_mfma_f32_16x16x32_bf16 {c}, {w}, {x}, {c}"
                else:
                    b = accS(j - 14, i); c = f"a[{b}:{b+3}]"
                    txt = f"v_mfma_f32_16x16x32_bf16 {c}, {x}, {w}, {c}"
                mf.append(Op(txt, need_vm=(f"x{t}" if (j == 0 and n == 0) else None), need_lds=(f"f{j}" if n == 0 else None)))
        pre, post = step_vm(t)
        if t % 2 == 0:
            par, kh, first = t >> 1, 1, 0
        else:
            par, kh, first = ((t >> 1) + 1) % 2, 0, BARG*4 - 1
        rd = []
        for j in range(18):
            for o in frag_reads(j, par, kh, f"f{j}"): rd.append((max(j*4 + 3, first), o))
        misc = []
        if t % 2 == 1:
            vm = [(1 + 2*k, o) for k, o in enumerate(pre)]
            vm += [(first + 6 + 8*k, o) for k, o in enumerate(post)]
        else:
            vm = [(1 + 4*k, o) for k, o in enumerate(pre)]
        if t == 2:
            misc += [(40, Op(f"v_add_u32 v{r}, s{sDelta}, v{r}")) for r in (vRW[0], vRB[0][0], vRB[0][1])]
        if t == 3:
            misc += [(2, Op(f"v_add_u32 v{r}, s{sDelta}, v{r}")) for r in (vRW[1], vRB[1][0], vRB[1][1])]
        if t == 0:
            pass
        slots = spread(72, [rd, vm, misc], per_gap=1)
        for m in range(72):
            body.append(mf[m])
            if t % 2 == 1 and m == first:
                body.append(Op("s_waitcnt lgkmcnt(0)", 'lgkm0', need_vm=(f"d{par}", 1)))
                body.append(Op("s_barrier"))
            body.extend(slots[m])
        if t == 0:
            body.append(Op(f"s_sub_u32 s{sDelta}, 0, s{sDelta}"))
            body.append(Op(f"s_cmp_lt_u32 s{sTrip}, 6"))
            body.append(Op(f"s_cselect_b32 s{sW+2}, {1024*3584*2}, 0"))
            body.append(Op(f"s_cselect_b32 s{sB+2}, {1024*1024*2}, 0"))
            body.append(Op(f"s_cmp_lt_u32 s{sTrip}, 7"))
            body.append(Op(f"s_cselect_b32 s{sX+2}, {XN_OFF + 2048*1024*2}, 0"))
    lines = resolve_loop(body)
    stamp(A, opt, 2)
    A(".p2align 6\nL_k2_loop:")
    prev = ""
    for x in lines:
        if ' m0,' in prev and x.endswith('lds'): A("s_nop 0")
        A(x); prev = x
    A(f"s_add_u32 s{sTrip}, s{sTrip}, 1\ns_cmp_lt_u32 s{sTrip}, 8\ns_cbranch_scc1 L_k2_loop")

    stamp(A, opt, 3)
    A("s_waitcnt vmcnt(0) lgkmcnt(0)\ns_barrier")
    A("s_nop 7")
    la = [1, 4]; lb = [2, 5]; nb = [3, 6]
    for q in range(2):
        A(f"v_accvgpr_read_b32 v{la[q]}, a{PAR+q*10}\nv_accvgpr_read_b32 v{lb[q]}, a{PAR+q*10+1}\nv_sub_f32 v{nb[q]}, 0, v{lb[q]}")
    T = [[(8, 9), (10, 11)], [(12, 13), (14, 15)]]
    for n in range(16):
        i, r = n >> 2, n & 3
        for q in range(2):
            cr, ci = T[q][n & 1]
            A(f"v_accvgpr_read_b32 v{cr}, a{accS(q, i)+r}\nv_accvgpr_read_b32 v{ci}, a{accS(q+2, i)+r}")
        if n > 0:
            for q in range(2):
                cr, ci = T[q][n & 1]; pr, pi = T[q][(n-1) & 1]
                A(f"v_fmac_f32 v{cr}, v{la[q]}, v{pr}\nv_fmac_f32 v{ci}, v{la[q]}, v{pi}")
            for q in range(2):
                cr, ci = T[q][n & 1]; pr, pi = T[q][(n-1) & 1]
                A(f"v_fmac_f32 v{cr}, v{nb[q]}, v{pi}\nv_fmac_f32 v{ci}, v{lb[q]}, v{pr}")
    vE = 7
    A(f"v_lshrrev_b32 v16, 4, v0\nv_lshlrev_b32 v16, 8, v16\nv_and_b32 v{vE}, 15, v0\nv_lshl_add_u32 v{vE}, v{vE}, 3, v16")
    A(f"ds_write_b64 v{vE}, v[10:11]\nds_write_b64 v{vE}, v[14:15] offset:128")
    A("s_waitcnt lgkmcnt(0)\ns_barrier")
    A(f"s_cmp_lg_u32 s{sWV}, 0\ns_cbranch_scc1 L_k2_nohorner")
    A(f"v_and_b32 v16, 31, v0\nv_lshlrev_b32 v16, 3, v16")
    for h in range(2):
        pass
    A(f"v_accvgpr_read_b32 v8, a{PAR+4}\nv_accvgpr_read_b32 v9, a{PAR+5}\nv_accvgpr_read_b32 v10, a{PAR+14}\nv_accvgpr_read_b32 v11, a{PAR+15}")
    A("v_and_b32 v12, 16, v0\nv_cmp_ne_u32 vcc, 0, v12\ns_nop 1\nv_cndmask_b32 v8, v8, v10, vcc\nv_cndmask_b32 v9, v9, v11, vcc\nv_sub_f32 v10, 0, v9")
    for s_ in range(16): A(f"ds_read_b64 a[{WF+2*s_}:{WF+2*s_+1}], v16 offset:{s_*256}")
    A("v_mov_b32 v12, 0\nv_mov_b32 v13, 0\nds_write_b64 v16, v[12:13] offset:4096\ns_waitcnt lgkmcnt(0)")
    R = [(12, 13), (14, 15), (18, 19), (20, 21)]
    for s_ in range(16):
        pr, pi = R[s_ % 4]; cr, ci = R[(s_+1) % 4]
        A(f"v_accvgpr_read_b32 v{cr}, a{WF+2*s_}\nv_accvgpr_read_b32 v{ci}, a{WF+2*s_+1}")
        A(f"v_fmac_f32 v{cr}, v8, v{pr}\nv_fmac_f32 v{ci}, v8, v{pi}\nv_fmac_f32 v{cr}, v10, v{pi}\nv_fmac_f32 v{ci}, v9, v{pr}")
        if s_ < 15: A(f"ds_write_b64 v16, v[{cr}:{ci}] offset:{4096+(s_+1)*256}")
    A("v_mov_b32 v18, v12\nv_mov_b32 v19, 1\nv_mov_b32 v20, v13\nv_mov_b32 v21, 1")
    A(f"s_lshl_b32 s3, s{sCB}, 4\ns_add_u32 s3, s3, s{sRB}\ns_add_u32 s3, s3, 7\ns_lshl_b32 s3, s3, 9\ns_add_u32 s3, s3, {EX_OFF}")
    A("v_lshlrev_b32 v16, 1, v16")
    A(f"buffer_store_dwordx4 v[18:21], v16, s[{sWS}:{sWS+3}], s3 offen sc1")
    A("s_waitcnt lgkmcnt(0)")
    A("L_k2_nohorner:")
    stamp(A, opt, 4)
    C1 = -2.0*math.sqrt(2/math.pi)*LOG2E; C2 = C1*0.044715
    A(f"s_mov_b32 s4, {hx(f2u(C1))}\ns_mov_b32 s5, s4\ns_mov_b32 s6, {hx(f2u(C2))}\ns_mov_b32 s7, s6")
    A("v_mov_b32 v22, s4\nv_mov_b32 v23, s4")
    vH = 16
    A(f"v_bfe_u32 v8, v0, 4, 1\nv_bfe_u32 v9, v0, 5, 1\nv_and_b32 v10, 15, v0\nv_lshlrev_b32 v{vH}, 10, v8\nv_lshl_add_u32 v{vH}, v9, 8, v{vH}\nv_lshl_add_u32 v{vH}, v10, 4, v{vH}")
    A(f"s_mul_i32 s40, s{sTB}, {112*4096}\ns_add_u32 s40, s40, {H_OFF}\ns_mul_i32 s41, s{sCB}, 7")
    TT = [(8, 10), (12, 14)]
    for p in range(7):
        A(f"s_add_u32 s42, s41, {p}\ns_lshr_b32 s43, s42, 1\ns_lshl_b32 s43, s43, 12\ns_and_b32 s42, s42, 1\ns_lshl_b32 s42, s42, 9\ns_add_u32 s43, s43, s42\ns_add_u32 s43, s43, s40")
        for i0 in (0, 2):
            OUT = 24 + (i0 >> 1)*4
            G = [accF(p, 0, i0), accF(p, 0, i0+1)]; U = [accF(p, 1, i0), accF(p, 1, i0+1)]
            prs = [(G[a]+2*h, U[a]+2*h, TT[a][h], OUT + 2*a + h) for a in range(2) for h in range(2)]
            pk = lambda r: f"v[{r}:{r+1}]"
            for g, u, t, o in prs: A(f"v_pk_mul_f32 {pk(t)}, {pk(g)}, {pk(g)}")
            for g, u, t, o in prs: A(f"v_pk_fma_f32 {pk(t)}, {pk(t)}, s[6:7], v[22:23]")
            for g, u, t, o in prs: A(f"v_pk_mul_f32 {pk(t)}, {pk(t)}, {pk(g)}")
            for g, u, t, o in prs: A(f"v_exp_f32 v{t}, v{t}\nv_exp_f32 v{t+1}, v{t+1}")
            for g, u, t, o in prs: A(f"v_pk_mul_f32 {pk(g)}, {pk(g)}, {pk(u)}")
            for g, u, t, o in prs: A(f"v_pk_add_f32 {pk(t)}, {pk(t)}, 1.0 op_sel_hi:[1,0]")
            for g, u, t, o in prs: A(f"v_rcp_f32 v{t}, v{t}\nv_rcp_f32 v{t+1}, v{t+1}")
            A("s_nop 0")
            for g, u, t, o in prs: A(f"v_pk_mul_f32 {pk(g)}, {pk(g)}, {pk(t)}")
            for g, u, t, o in prs: A(f"v_cvt_pk_bf16_f32 v{o}, v{g}, v{g+1}")
            A(f"s_nop 1\nv_permlane16_swap_b32 v{OUT}, v{OUT+2}\nv_permlane16_swap_b32 v{OUT+1}, v{OUT+3}")
            A(f"buffer_store_dwordx4 v[{OUT}:{OUT+3}], v{vH}, s[{sWS}:{sWS+3}], s43 offen offset:{i0*1024}")
    stamp(A, opt, 5)
    EB = 32
    A(f"s_lshl_b32 s3, s{sCB}, 4\ns_add_u32 s3, s3, s{sRB}\ns_lshl_b32 s3, s3, 9\ns_add_u32 s3, s3, {EX_OFF}")
    A("v_and_b32 v8, 15, v0\nv_lshlrev_b32 v8, 4, v8")
    A("s_barrier")
    A("s_mov_b32 s44, 0x40000")
    A("L_k2_poll:")
    for d in range(7):
        for q in range(2):
            r = EB + (d*2+q)*4
            A(f"buffer_load_dwordx4 v[{r}:{r+3}], v8, s[{sWS}:{sWS+3}], s3 offen offset:{d*512+q*256} sc1")
    A("v_mov_b32 v9, 1\ns_waitcnt vmcnt(0)")
    for k in range(14):
        r = EB + k*4
        A(f"v_min3_u32 v9, v9, v{r+1}, v{r+3}")
    A("v_cmp_ne_u32 vcc, 1, v9\ns_cbranch_vccz L_k2_got\ns_sleep 2\ns_sub_u32 s44, s44, 1\ns_cmp_lg_u32 s44, 0\ns_cbranch_scc1 L_k2_poll\nL_k2_got:")
    stamp(A, opt, 6)
    A(f"ds_read_b64 v[90:91], v{vE} offset:4096\nds_read_b64 v[92:93], v{vE} offset:{4096+128}")
    for q in range(2):
        a_, b_, n_ = 8, 9, 10
        A(f"v_accvgpr_read_b32 v{a_}, a{PAR+q*10+8}\nv_accvgpr_read_b32 v{b_}, a{PAR+q*10+9}\nv_sub_f32 v{n_}, 0, v{b_}")
        for d in range(1, 7):
            p_ = EB + ((d-1)*2+q)*4; c_ = EB + (d*2+q)*4
            A(f"v_fmac_f32 v{c_}, v{a_}, v{p_}\nv_fmac_f32 v{c_+2}, v{a_}, v{p_+2}\nv_fmac_f32 v{c_}, v{n_}, v{p_+2}\nv_fmac_f32 v{c_+2}, v{b_}, v{p_}")
        h_ = EB + (12+q)*4
        A(f"v_accvgpr_read_b32 v{a_}, a{PAR+q*10+6}\nv_accvgpr_read_b32 v{b_}, a{PAR+q*10+7}\nv_sub_f32 v{n_}, 0, v{b_}")
        if q == 0: A("s_waitcnt lgkmcnt(0)")
        c_ = 90 + 2*q
        A(f"v_fmac_f32 v{c_}, v{a_}, v{h_}\nv_fmac_f32 v{c_+1}, v{a_}, v{h_+2}\nv_fmac_f32 v{c_}, v{n_}, v{h_+2}\nv_fmac_f32 v{c_+1}, v{b_}, v{h_}")
    HR = lambda q, n: 96 + q*16 + n
    HI = lambda q, n: 128 + q*16 + n
    for n in range(16):
        i, r = n >> 2, n & 3
        for q in range(2):
            A(f"v_accvgpr_read_b32 v{HR(q,n)}, a{accS(q, i)+r}\nv_accvgpr_read_b32 v{HI(q,n)}, a{accS(q+2, i)+r}")
        pv = [(90+2*q, 91+2*q) if n == 0 else (HR(q, n-1), HI(q, n-1)) for q in range(2)]
        for q in range(2):
            A(f"v_fmac_f32 v{HR(q,n)}, v{la[q]}, v{pv[q][0]}\nv_fmac_f32 v{HI(q,n)}, v{la[q]}, v{pv[q][1]}")
        for q in range(2):
            A(f"v_fmac_f32 v{HR(q,n)}, v{nb[q]}, v{pv[q][1]}\nv_fmac_f32 v{HI(q,n)}, v{lb[q]}, v{pv[q][0]}")
    for q in range(2):
        A(f"v_accvgpr_read_b32 v8, a{PAR+q*10+2}\nv_accvgpr_read_b32 v10, a{PAR+q*10+3}\nv_mov_b32 v9, v8\nv_mov_b32 v11, v10")
        for m in range(8):
            hr, hi = HR(q, 2*m), HI(q, 2*m)
            t = 12 + (m & 1)*4
            A(f"v_pk_mul_f32 v[{t}:{t+1}], v[{hr}:{hr+1}], v[8:9]\nv_pk_mul_f32 v[{t+2}:{t+3}], v[{hr}:{hr+1}], v[10:11]")
            A(f"v_pk_fma_f32 v[{t}:{t+1}], v[{hi}:{hi+1}], v[10:11], v[{t}:{t+1}] neg_lo:[1,0,0] neg_hi:[1,0,0]")
            A(f"v_pk_fma_f32 v[{t+2}:{t+3}], v[{hi}:{hi+1}], v[8:9], v[{t+2}:{t+3}]")
            A(f"v_cvt_pk_bf16_f32 v{160+q*8+m}, v{t}, v{t+1}\nv_cvt_pk_bf16_f32 v{176+q*8+m}, v{t+2}, v{t+3}")
    A(f"s_mul_i32 s3, s{sWV}, 9216\ns_add_u32 s3, s3, 8192")
    A("v_and_b32 v8, 15, v0\nv_mul_u32_u24 v8, 144, v8\nv_bfe_u32 v9, v0, 4, 2\nv_lshl_add_u32 v8, v9, 5, v8\nv_add_u32 v8, s3, v8")
    for part in range(2):
        for q in range(2):
            b = 160 + part*16 + q*8
            off = (part*32 + q*16)*144
            A(f"ds_write_b128 v8, v[{b}:{b+3}] offset:{off}\nds_write_b128 v8, v[{b+4}:{b+7}] offset:{off+16}")
    A("v_bfe_u32 v10, v0, 2, 2\nv_lshl_add_u32 v10, v9, 3, v10\nv_mul_u32_u24 v10, 144, v10\nv_and_b32 v11, 3, v0\nv_lshl_add_u32 v10, v11, 5, v10\nv_add_u32 v10, s3, v10")
    A("s_waitcnt lgkmcnt(0)")
    for part in range(2):
        for i in range(4):
            d = 192 + (part*4+i)*4
            for h in range(2):
                A(f"ds_read_b64_tr_b16 v[{d+2*h}:{d+2*h+1}], v10 offset:{(part*32+4*h)*144 + i*8}")
    A(f"v_and_b32 v11, 63, v0\nv_lshlrev_b32 v11, 4, v11")
    A(f"s_lshl_b32 s3, s{sTB}, 6\ns_add_u32 s3, s3, s{sCB}\ns_lshl_b32 s3, s3, 12\ns_add_u32 s3, s3, {HS_OFF}\ns_add_u32 s4, s3, {32*4096}")
    for part in range(2):
        A(f"s_waitcnt lgkmcnt({8*(1-part)})")
        for i in range(4):
            d = 192 + (part*4+i)*4
            A(f"buffer_store_dwordx4 v[{d}:{d+3}], v11, s[{sWS}:{sWS+3}], s{3+part} offen offset:{i*1024}")
    stamp_out(A, opt, 8, 1, sWV, 48, 49)
    A("L_k2_end:\ns_endpgm")
    return kernel_desc("up_kernel", 256+224, 256, 102)

def main(path, opt={}):
    A = Asm()
    head = ["; generated by gen.py",
            "; @launch kernel=ln_kernel grid=(256,1,1) block=(512,1,1) lds=512",
            f"; @launch kernel=up_kernel grid=(256,1,1) block=(256,1,1) lds={4*STAGE2}"]
    if opt.get('k3', True):
        head.append("; @launch kernel=down_kernel grid=(256,1,1) block=(256,1,1) lds=131072")
    descs = [gen_k1(A, opt), gen_k2(A, opt)]
    if opt.get('k3', True):
        from gen3 import gen_k3
        descs.append(gen_k3(A, opt))
    txt = "\n".join(head) + '\n.amdgcn_target "amdgcn-amd-amdhsa--gfx950"\n.text\n' + A.text() + '.section .rodata,"a"\n' + "".join(descs)
    open(path, "w").write(txt)

if __name__ == "__main__":
    opt = {}
    for a in sys.argv[2:]:
        k, v = a.split("="); opt[k] = int(v)
    main(sys.argv[1], opt)
```

```python
from gen import *

def gen_k2(A, opt):
    kernel_head(A, "up_kernel")
    WF = 64; XB = 136; PAR = 200
    vWD = list(range(1, 10)); vX = 10
    vRW = [11, 12]; vRB = [[13, 14], [15, 16]]
    vT = 17; L = 18
    t0, t1, t2, t3 = 19, 20, 21, 22
    vP = [23, 24]; vPD = 25
    sW, sB, sX, sWS = 8, 12, 16, 20
    sRB, sU, sWV = 24, 25, 26
    sWoff, sBoff, sXoff = 27, 28, 29
    sM = [30, 31]; sMB = [32, 33]
    sDelta, sTB, sCol, sCh = 34, 36, 37, 38
    XD = 3
    WNT = " nt" if opt.get('wnt', 1) else ""
    SC = " sc1" if opt.get('sc1', 1) else ""
    PF = opt.get('pft', 9) == 9
    pk = lambda r: f"v[{r}:{r+1}]"
    A("s_cmp_ge_u32 s2, 256\ns_cbranch_scc1 L_k2_end")
    stamp(A, opt, 0)
    A(f"s_load_dwordx4 s[40:43], s[0:1], {KA['wg']}")
    A(f"s_load_dwordx4 s[44:47], s[0:1], {KA['bre']}")
    A(f"s_load_dwordx2 s[48:49], s[0:1], {KA['ws']}")
    A(f"s_load_dwordx4 s[52:55], s[0:1], {KA['cre']}")
    A(f"s_load_dwordx2 s[56:57], s[0:1], {KA['wd']}")
    A(f"v_lshrrev_b32 v{vT}, 6, v0\nv_and_b32 v{L}, 63, v0")
    A(f"s_and_b32 s3, s2, 7\ns_bfe_u32 s{sU}, s2, 0x20003\ns_lshr_b32 s{sRB}, s2, 5")
    A(f"v_readfirstlane_b32 s{sWV}, v{vT}")
    A(f"s_mul_i32 s{sCol}, s3, 448\ns_lshl_b32 s4, s{sU}, 7\ns_add_u32 s{sCol}, s{sCol}, s4")
    A(f"s_lshl_b32 s{sCh}, s3, 7\ns_lshl_b32 s4, s{sU}, 4\ns_add_u32 s{sCh}, s{sCh}, s4")
    A(f"v_lshlrev_b32 v{vX}, 4, v{L}")
    A(f"s_lshl_b32 s{sTB}, s{sRB}, 2\ns_add_u32 s{sTB}, s{sTB}, s{sWV}\ns_lshl_b32 s{sXoff}, s{sTB}, 17")
    if XN_OFF: A(f"s_add_u32 s{sXoff}, s{sXoff}, {XN_OFF}")
    A(f"s_mov_b32 s{sWoff}, 0\ns_mov_b32 s{sBoff}, 0\ns_mov_b32 s{sDelta}, {2*STAGE2}")
    A(f"s_mov_b32 s{sW+2}, {1024*3584*2}\ns_mov_b32 s{sW+3}, 0x00020000\ns_mov_b32 s{sB+2}, {1024*1024*2}\ns_mov_b32 s{sB+3}, 0x00020000")
    A(f"s_and_b32 s5, s{sWV}, 1\ns_mul_i32 s6, s5, {32*7168}\ns_lshl_b32 s7, s{sCol}, 1\ns_add_u32 s6, s6, s7\ns_movk_i32 s7, 7168")
    A(f"s_cmp_eq_u32 s{sU}, 3\ns_cbranch_scc1 L_k2_B")

    def body(NP, NS, nm):
        NT = 2*NP + 2*NS
        NWI = 8 if NP == 8 else 4
        WB = 8448 if NP == 8 else 4224
        BOFF = 4*WB
        NCH = 16*NS
        def acc(j, i):
            return ('v', 32 + (j*4+i)*4) if j < 14 else ('a', ((j-14)*4+i)*4)
        def rd(dst, j, i, r):
            f, b = acc(j, i)
            return f"v_mov_b32 v{dst}, v{b+r}" if f == 'v' else f"v_accvgpr_read_b32 v{dst}, a{b+r}"
        jre = lambda q: 2*NP + q
        jim = lambda q: 2*NP + NS + q
        if NP == 8:
            A(f"v_bfe_u32 v{t0}, v{L}, 4, 1\nv_bfe_u32 v{t1}, v{L}, 5, 1\nv_lshlrev_b32 v{t0}, 2, v{t0}\nv_lshl_or_b32 v{t0}, v{t1}, 4, v{t0}\nv_and_b32 v{t1}, 15, v{L}")
        else:
            A(f"v_bfe_u32 v{t0}, v{L}, 3, 1\nv_bfe_u32 v{t1}, v{L}, 4, 1\nv_lshlrev_b32 v{t0}, 3, v{t0}\nv_lshl_or_b32 v{t0}, v{t1}, 2, v{t0}\nv_bfe_u32 v{t1}, v{L}, 5, 1\nv_lshl_or_b32 v{t0}, v{t1}, 4, v{t0}\nv_and_b32 v{t1}, 7, v{L}")
        A(f"v_mul_u32_u24 v{t0}, s7, v{t0}\nv_lshl_add_u32 v{t0}, v{t1}, 4, v{t0}\nv_add_u32 v{vWD[0]}, s6, v{t0}")
        for n in range(1, NWI):
            A(f"v_add_u32 v{vWD[n]}, {((n&3) + 8*(n>>2))*7168 - (n&3)*1056}, v{vWD[0]}")
        vBD = vWD[NWI:NWI+NS]
        A(f"s_mul_i32 s3, s5, {8*NS}\ns_add_u32 s3, s3, s{sCh}\ns_lshl_b32 s3, s3, 11\ns_lshl_b32 s4, s5, 2")
        A(f"v_lshrrev_b32 v{t0}, 4, v{L}\nv_and_b32 v{t1}, 7, v{L}\nv_xor_b32 v{t1}, v{t1}, v{t0}\nv_xor_b32 v{t1}, s4, v{t1}\nv_lshrrev_b32 v{t2}, 3, v{L}\nv_lshlrev_b32 v{t2}, 11, v{t2}\nv_add_u32 v{t2}, s3, v{t2}")
        A(f"v_lshl_add_u32 v{vBD[0]}, v{t1}, 4, v{t2}")
        if NS > 1:
            A(f"v_xor_b32 v{t1}, 64, v{vBD[0]}")
            for n in range(1, NS): A(f"v_add_u32 v{vBD[n]}, {n*16384 - (n&3)*1024}, v{t1 if n&1 else vBD[0]}")
        A(f"s_mul_i32 s{sM[0]}, s{sWV}, {WB}\ns_add_u32 s{sM[1]}, s{sM[0]}, {STAGE2}")
        A(f"s_mul_i32 s{sMB[0]}, s{sWV}, {NS*1024}\ns_add_u32 s{sMB[0]}, s{sMB[0]}, {BOFF}\ns_add_u32 s{sMB[1]}, s{sMB[0]}, {STAGE2}")
        A("s_waitcnt lgkmcnt(0)")
        A(f"s_cmp_lt_u32 s{sWV}, 2\ns_cselect_b32 s{sW}, s40, s42\ns_cselect_b32 s{sW+1}, s41, s43\ns_cselect_b32 s{sB}, s44, s46\ns_cselect_b32 s{sB+1}, s45, s47")
        A(f"s_cselect_b32 s52, s52, s54\ns_cselect_b32 s53, s53, s55")
        srd(A, sX, 48, 49, XN_OFF + 2048*1024*2)

        def dma_ops(par, part):
            tag = f"d{par}"
            wl = lambda n: Op(f"buffer_load_dwordx4 v{vWD[n]}, s[{sW}:{sW+3}], s{sWoff} offen offset:{(n&3)*1056}{WNT} lds", 'vm', tag)
            bl = lambda n: Op(f"buffer_load_dwordx4 v{vBD[n]}, s[{sB}:{sB+3}], s{sBoff} offen offset:{(n&3)*1024}{WNT} lds", 'vm', tag + "e")
            o = []
            if part == 0:
                o.append(Op(f"s_mov_b32 m0, s{sM[par]}"))
                o += [wl(n) for n in range(4)]
            else:
                if NWI == 8:
                    o.append(Op(f"s_add_u32 m0, s{sM[par]}, {4*1056}"))
                    o += [wl(n) for n in range(4, 8)]
                o.append(Op(f"s_mov_b32 m0, s{sMB[par]}"))
                o.append(Op(f"s_add_u32 s{sWoff}, s{sWoff}, {64*7168}"))
                o += [bl(n) for n in range(min(NS, 4))]
                if NS == 5:
                    o.append(Op(f"s_add_u32 m0, s{sMB[par]}, 4096"))
                    o.append(bl(4))
                o.append(Op(f"s_add_u32 s{sBoff}, s{sBoff}, 128"))
                o.append(Op(f"s_add_u32 s{sM[par]}, s{sM[par]}, s{sDelta}"))
                o.append(Op(f"s_add_u32 s{sMB[par]}, s{sMB[par]}, s{sDelta}"))
            return o
        def x_ops(buf):
            o = []
            for i in range(4):
                r = XB + buf*16 + i*4
                o.append(Op(f"buffer_load_dwordx4 a[{r}:{r+3}], v{vX}, s[{sX}:{sX+3}], s{sXoff} offen offset:{i*1024}", 'vm', f"x{buf}"))
            o.append(Op(f"s_add_u32 s{sXoff}, s{sXoff}, 4096"))
            return o
        def put(lines):
            prev = ""
            for x in lines:
                if ' m0,' in prev and x.endswith('lds'): A("s_nop 0")
                A(x); prev = x
        emit = lambda ops: put([o.text for o in ops])
        emit(dma_ops(0, 0) + dma_ops(0, 1) + x_ops(0))
        srd(A, sWS, 48, 49, WS_END)
        for r in range(32, 256): A(f"v_mov_b32 v{r}, 0")
        A(f"v_and_b32 v{t0}, 15, v{L}\nv_add_u32 v{t0}, s{sCh}, v{t0}\nv_lshlrev_b32 v{t1}, 5, v{t0}")
        A(f"v_lshrrev_b32 v{t2}, 4, v0\nv_lshlrev_b32 v{t2}, 13, v{t2}\nv_lshl_add_u32 v{t2}, v{t0}, 3, v{t2}\ns_mov_b32 s3, {PT_OFF}\ns_mov_b32 s4, {PW_OFF}")
        A(f"v_min_u32 v{t3}, {NCH-1}, v0\nv_add_lshl_u32 v{t3}, v{t3}, s{sCh}, 5")
        for q in range(NS):
            pa = PAR + q*6
            A(f"buffer_load_dwordx4 a[{pa}:{pa+3}], v{t1}, s[{sWS}:{sWS+3}], s3 offen offset:{q*512}")
            A(f"buffer_load_dwordx2 a[{pa+4}:{pa+5}], v{t2}, s[{sWS}:{sWS+3}], s4 offen offset:{q*128}")
        A(f"buffer_load_dwordx4 a[{PAR+30}:{PAR+33}], v{t3}, s[{sWS}:{sWS+3}], s3 offen offset:16")
        NPAR = 2*NS + 1
        for r in range(64): A(f"v_accvgpr_write_b32 a{r}, 0")
        if NP == 8:
            A(f"v_bfe_u32 v{t0}, v{L}, 2, 3\nv_mul_u32_u24 v{t0}, 1056, v{t0}")
        else:
            A(f"v_bfe_u32 v{t0}, v{L}, 2, 2\nv_mul_u32_u24 v{t0}, 1056, v{t0}\nv_bfe_u32 v{t1}, v{L}, 4, 1\nv_lshl_add_u32 v{t0}, v{t1}, 7, v{t0}")
        A(f"v_bfe_u32 v{t1}, v{L}, 5, 1\nv_lshl_add_u32 v{t0}, v{t1}, 9, v{t0}\nv_and_b32 v{t1}, 3, v{L}\nv_lshl_add_u32 v{vRW[0]}, v{t1}, 3, v{t0}\nv_add_u32 v{vRW[1]}, {STAGE2}, v{vRW[0]}")
        A(f"v_and_b32 v{t0}, 15, v{L}\nv_lshrrev_b32 v{t1}, 1, v{t0}\nv_lshrrev_b32 v{t2}, 4, v{L}\nv_xor_b32 v{t1}, v{t1}, v{t2}\nv_lshlrev_b32 v{t1}, 4, v{t1}")
        A(f"v_lshl_add_u32 v{t0}, v{t0}, 7, v{t1}\nv_xor_b32 v{t1}, 64, v{t0}\nv_add_u32 v{vRB[0][0]}, {BOFF}, v{t0}\nv_add_u32 v{vRB[0][1]}, {BOFF}, v{t1}")
        A(f"v_add_u32 v{vRB[1][0]}, {STAGE2}, v{vRB[0][0]}\nv_add_u32 v{vRB[1][1]}, {STAGE2}, v{vRB[0][1]}")
        if PF:
            A(f"s_lshl_b32 s3, s2, 2\ns_add_u32 s3, s3, s{sWV}\ns_mul_i32 s4, s3, 7\nv_min_u32 v{t0}, 6, v{L}\nv_add_lshl_u32 v{vP[0]}, v{t0}, s4, 7")
            A(f"s_lshl_b32 s3, s2, 1\ns_add_u32 s3, s3, s5\ns_lshl_b32 s3, s3, 2\nv_and_b32 v{t0}, 3, v{L}\nv_add_lshl_u32 v{vP[1]}, v{t0}, s3, 7")
        def frag_reads(j, par, kh, tag, d=None):
            if d is None: d = WF + j*4
            if j < 2*NP:
                p, gu = j >> 1, j & 1
                return [Op(f"ds_read_b64_tr_b16 a[{d+2*h}:{d+2*h+1}], v{vRW[par]} offset:{gu*2*WB + kh*WB + h*256 + p*32}", 'lds', tag) for h in range(2)]
            return [Op(f"ds_read_b128 a[{d}:{d+3}], v{vRB[par][kh]} offset:{(j-2*NP)*2048}", 'lds', tag)]
        rest = []
        for t in range(-3, 0):
            if 1 <= t + XD: rest += x_ops(t + XD)
            rest += dma_ops(((t + 5) >> 1) % 2, (t + 1) % 2)
            if PF and t == -1: rest.append(Op(f"global_load_dword a236, v{vP[1]}, s[52:53]", 'vm', 'pf'))
        stamp(A, opt, 1)
        A(f"s_waitcnt vmcnt({NPAR})\ns_barrier")
        for j in range(NT): emit(frag_reads(j, 0, 0, None))
        emit(rest)
        A(f"s_mov_b32 s{sDelta}, {hx(-2*STAGE2)}")
        A(f"s_waitcnt lgkmcnt(0)")
        BARG = opt.get('barg', 3)
        def mfma(j, i, wreg, xreg, **kw):
            f, b = acc(j, i); c = f"{f}[{b}:{b+3}]"
            w = f"a[{wreg}:{wreg+3}]"; x = f"a[{xreg}:{xreg+3}]"
            return Op(f"v_mfma_f32_16x16x32_bf16 {c}, {w}, {x}, {c}" if j < 2*NP else f"v_mfma_f32_16x16x32_bf16 {c}, {x}, {w}, {c}", **kw)
        def trip(n):
            out = []
            for t in range(4):
                gs = 4*n + t
                mf = []
                for j in range(NT):
                    order = range(4) if j % 2 == 0 else range(3, -1, -1)
                    for k, i in enumerate(order):
                        mf.append(mfma(j, i, WF+j*4, XB+t*16+i*4, need_vm=(f"x{t}" if (j == 0 and k == 0) else None), need_lds=(f"f{j}" if k == 0 else None)))
                if t % 2 == 0: par, kh, firstm = t >> 1, 1, 0
                else: par, kh, firstm = ((t >> 1) + 1) % 2, 0, BARG*4 - 1
                fin = gs == 31
                rds = []
                if not fin:
                    for j in range(NT):
                        for o in frag_reads(j, par, kh, f"f{j}"): rds.append((max(j*4 + 3, firstm), o))
                vmo = []
                if gs + XD < 32: vmo += x_ops((t + XD) % 4)
                if (gs + 5) >> 1 < 16: vmo += dma_ops(((t + 5) >> 1) % 2, (t + 1) % 2)
                if PF and t == 1: vmo += [Op(f"global_load_dword a236, v{vP[0]}, s[56:57]", 'vm', 'pf'), Op(f"v_add_u32 v{vP[0]}, {7168*128}, v{vP[0]}")]
                if PF and t == 3 - (n == 7): vmo += [Op(f"global_load_dword a236, v{vP[1]}, s[52:53]", 'vm', 'pf'), Op(f"v_add_u32 v{vP[1]}, {2048*128}, v{vP[1]}")]
                sp = 68.0 / max(1, len(vmo))
                vm = [(1 + int(k*sp), o) for k, o in enumerate(vmo)]
                misc = []
                if n != 7:
                    if t == 2: misc += [(40, Op(f"v_subrev_u32 v{r}, s{sDelta}, v{r}")) for r in (vRW[0], vRB[0][0], vRB[0][1])]
                    if t == 3: misc += [(2, Op(f"v_subrev_u32 v{r}, s{sDelta}, v{r}")) for r in (vRW[1], vRB[1][0], vRB[1][1])]
                    if t == 3: misc += [(60, Op(f"s_sub_u32 s{sDelta}, 0, s{sDelta}"))]
                slots = spread(72, [rds, vm, misc], per_gap=1)
                for m in range(72):
                    out.append(mf[m])
                    if t % 2 == 1 and m == firstm and not fin:
                        out.append(Op("s_waitcnt lgkmcnt(0)", 'lgkm0', need_vm=f"d{par}e"))
                        out.append(Op("s_barrier"))
                    out.extend(slots[m])
            return out
        b0, b6, b7 = trip(0), trip(6), trip(7)
        stamp(A, opt, 2)
        if opt.get('rept', 0):
            A(".rept 6"); put(resolve_loop(b0)); A(".endr")
        else:
            A(f"s_mov_b32 s35, 0\n.p2align 6\nL_k2_loop{nm}:"); put(resolve_loop(b0))
            A(f"s_add_u32 s35, s35, 1\ns_cmp_lt_u32 s35, 6\ns_cbranch_scc1 L_k2_loop{nm}")
        put(resolve_seq(b0, b6))
        if opt.get('cpf', 1): code_prefetch(A, "down_kernel", "L_text_end", 58, t0, "a237", opt.get("cpfn3", 8), "2" + nm)
        if opt.get('cpf', 1):
            A(f"s_getpc_b64 s[58:59]\nL_pce{nm}:\ns_add_u32 s58, s58, L_k2_epi{nm}-L_pce{nm}\ns_addc_u32 s59, s59, 0\nv_lshlrev_b32 v{t0}, 6, v0\nglobal_load_dword a238, v{t0}, s[58:59]")
        put(resolve_seq(b6, b7))
        A(f"L_k2_epi{nm}:")
        stamp(A, opt, 3)
        LAM = [2 + 2*q for q in range(NS)]
        for q in range(NS):
            A(f"v_accvgpr_read_b32 v{LAM[q]}, a{PAR+q*6}\nv_accvgpr_read_b32 v{LAM[q]+1}, a{PAR+q*6+1}")
        def cfma(d, h, c):
            return [f"v_pk_fma_f32 {pk(d)}, {pk(h)}, {pk(c)}, {pk(d)} op_sel_hi:[1,0,1]",
                    f"v_pk_fma_f32 {pk(d)}, {pk(h)}, {pk(c)}, {pk(d)} op_sel:[1,1,0] op_sel_hi:[0,1,1] neg_lo:[0,1,0]"]
        A("s_nop 7")
        T = lambda q, n: 12 + 4*q + 2*(n & 1)
        for n in range(16):
            i, r = n >> 2, n & 3
            for q in range(NS): A(rd(T(q, n), jre(q), i, r) + "\n" + rd(T(q, n)+1, jim(q), i, r))
            if n > 0:
                for h in range(2):
                    for q in range(NS): A(cfma(T(q, n), T(q, n-1), LAM[q])[h])
        vE = 1
        A(f"v_lshrrev_b32 v12, 4, v0\nv_lshlrev_b32 v12, 10, v12\nv_and_b32 v{vE}, 15, v0\nv_lshl_add_u32 v{vE}, v{vE}, 3, v12")
        for q in range(NS): A(f"ds_write_b64 v{vE}, {pk(T(q, 15))} offset:{q*128}")
        A("s_waitcnt lgkmcnt(0)\ns_barrier")
        NXW = (NCH + 63) // 64
        vC = 12
        A(f"v_min_u32 v{vC}, {NCH-1}, v0\nv_lshlrev_b32 v{vC}, 3, v{vC}")
        A(f"s_lshl_b32 s39, s{sRB}, 14\ns_lshl_b32 s3, s{sCh}, 4\ns_add_u32 s39, s39, s3\ns_add_u32 s39, s39, {EX_OFF}")
        A(f"s_cmp_ge_u32 s{sWV}, {NXW}\ns_cbranch_scc1 L_k2_nox1{nm}")
        for s_ in range(16): A(f"ds_read_b64 a[{WF+2*s_}:{WF+2*s_+1}], v{vC} offset:{s_*1024}")
        A(f"v_accvgpr_read_b32 v14, a{PAR+30}\nv_accvgpr_read_b32 v15, a{PAR+31}")
        A(f"v_mov_b32 v16, 0\nv_mov_b32 v17, 0\nds_write_b64 v{vC}, v[16:17] offset:16384\ns_waitcnt lgkmcnt(0)")
        R = [16, 18, 20, 22]
        for s_ in range(16):
            p_ = R[s_ % 4]; c_ = R[(s_+1) % 4]
            A(f"v_accvgpr_read_b32 v{c_}, a{WF+2*s_}\nv_accvgpr_read_b32 v{c_+1}, a{WF+2*s_+1}")
            for x in cfma(c_, p_, 14): A(x)
            if s_ < 15: A(f"ds_write_b64 v{vC}, {pk(c_)} offset:{16384+(s_+1)*1024}")
        A(f"v_mov_b32 v24, v16\nv_mov_b32 v25, 1\nv_mov_b32 v26, v17\nv_mov_b32 v27, 1\nv_lshlrev_b32 v13, 1, v{vC}\ns_add_u32 s3, s39, {7*16384}")
        A(f"buffer_store_dwordx4 v[24:27], v13, s[{sWS}:{sWS+3}], s3 offen sc1")
        A(f"L_k2_nox1{nm}:")
        stamp(A, opt, 4)
        C1 = -2.0*math.sqrt(2/math.pi)*LOG2E; C2 = C1*0.044715
        A(f"s_mov_b32 s4, {hx(f2u(C1))}\ns_mov_b32 s6, {hx(f2u(C2))}\ns_mov_b32 s7, s6")
        vH = 14
        A(f"v_bfe_u32 v16, v0, 4, 1\nv_bfe_u32 v17, v0, 5, 1\nv_and_b32 v18, 15, v0\nv_lshlrev_b32 v{vH}, 10, v16\nv_lshl_add_u32 v{vH}, v17, 8, v{vH}\nv_lshl_add_u32 v{vH}, v18, 4, v{vH}")
        A("v_mov_b32 v16, s4\nv_lshlrev_b32 v13, 1, v12")
        A(f"s_mul_i32 s40, s{sTB}, {112*4096}\ns_add_u32 s40, s40, {H_OFF}\ns_lshl_b32 s41, s{sCol}, 7\ns_add_u32 s40, s40, s41")
        for k in range(1, NP // 2): A(f"s_add_u32 s{40+k}, s40, {k*4096}")
        TMP = [18, 20, 22, 28]
        NB = 2*NP
        ER = 32
        eloads = []
        for d in range(7):
            eloads.append(f"s_add_u32 s3, s39, {d*16384}")
            eloads.append(f"buffer_load_dwordx4 v[{ER+4*d}:{ER+4*d+3}], v13, s[{sWS}:{sWS+3}], s3 offen sc1")
        ESLOT = NB - opt.get('eslot', 4)
        nst_after = 0
        for b in range(NB):
            p, i0 = b >> 1, (b & 1)*2
            if 2*p < 14:
                G = acc(2*p, i0)[1]; U = acc(2*p+1, i0)[1]
            else:
                G = acc(4, i0)[1]; U = acc(5, i0)[1]
                for h in range(8): A(rd(G+h, 2*p, i0 + (h >> 2), h & 3) + "\n" + rd(U+h, 2*p+1, i0 + (h >> 2), h & 3))
            if b == ESLOT:
                A(f"s_cmp_ge_u32 s{sWV}, {NXW}\ns_cbranch_scc1 L_k2_noel{nm}")
                for x in eloads: A(x)
                A(f"L_k2_noel{nm}:")
            for h in range(4): A(f"v_pk_mul_f32 {pk(TMP[h])}, {pk(G+2*h)}, {pk(G+2*h)}")
            for h in range(4): A(f"v_pk_mul_f32 {pk(U+2*h)}, {pk(U+2*h)}, {pk(G+2*h)}")
            for h in range(4): A(f"v_pk_fma_f32 {pk(TMP[h])}, {pk(TMP[h])}, s[6:7], v[16:17] op_sel_hi:[1,1,0]")
            for h in range(4): A(f"v_pk_mul_f32 {pk(G+2*h)}, {pk(G+2*h)}, {pk(TMP[h])}")
            for h in range(8): A(f"v_exp_f32 v{G+h}, v{G+h}")
            for h in range(4): A(f"v_pk_add_f32 {pk(G+2*h)}, {pk(G+2*h)}, 1.0 op_sel_hi:[1,0]")
            for h in range(8): A(f"v_rcp_f32 v{G+h}, v{G+h}")
            for h in range(4): A(f"v_pk_mul_f32 {pk(U+2*h)}, {pk(U+2*h)}, {pk(G+2*h)}")
            for h in (0, 2, 1, 3): A(f"v_cvt_pk_bf16_f32 v{G+h}, v{U+2*h}, v{U+2*h+1}")
            A(f"v_permlane16_swap_b32 v{G}, v{G+2}\ns_nop 0\nv_permlane16_swap_b32 v{G+1}, v{G+3}")
            A(f"buffer_store_dwordx4 v[{G}:{G+3}], v{vH}, s[{sWS}:{sWS+3}], s{40+(p>>1)} offen offset:{(p&1)*512 + i0*1024}{SC}")
            if b >= ESLOT: nst_after += 1
        stamp(A, opt, 5)
        A(f"s_cmp_ge_u32 s{sWV}, {NXW}\ns_cbranch_scc1 L_k2_nox2{nm}")
        A(f"s_mov_b32 s44, 0x40000\ns_waitcnt vmcnt({nst_after})")
        A(f"L_k2_poll{nm}:\nv_mov_b32 v18, 1")
        for d in range(7): A(f"v_min3_u32 v18, v18, v{ER+4*d+1}, v{ER+4*d+3}")
        A(f"v_cmp_ne_u32 vcc, 1, v18\ns_cbranch_vccz L_k2_got{nm}\ns_sleep 1")
        for x in eloads: A(x)
        A(f"s_waitcnt vmcnt(0)\ns_sub_u32 s44, s44, 1\ns_cmp_lg_u32 s44, 0\ns_cbranch_scc1 L_k2_poll{nm}\nL_k2_got{nm}:")
        A(f"v_accvgpr_read_b32 v18, a{PAR+32}\nv_accvgpr_read_b32 v19, a{PAR+33}")
        for d in range(7): A(f"v_mov_b32 v{ER+4*d+1}, v{ER+4*d+2}")
        for d in range(1, 7):
            for x in cfma(ER+4*d, ER+4*(d-1), 18): A(x)
        A(f"ds_write_b64 v{vC}, {pk(ER+24)} offset:32768\ns_waitcnt lgkmcnt(0)")
        A(f"L_k2_nox2{nm}:\ns_barrier")
        stamp(A, opt, 6)
        CY = 32; HH = 44; PW_ = 56; CF = 68
        A("v_and_b32 v13, 15, v0\nv_lshlrev_b32 v13, 3, v13")
        for q in range(NS):
            A(f"ds_read_b64 {pk(CY+2*q)}, v{vE} offset:{16384+q*128}\nds_read_b64 {pk(HH+2*q)}, v13 offset:{32768+q*128}")
        for q in range(NS):
            for h in range(2): A(f"v_accvgpr_read_b32 v{PW_+2*q+h}, a{PAR+q*6+4+h}\nv_accvgpr_read_b32 v{CF+2*q+h}, a{PAR+q*6+2+h}")
        TB0 = 36864
        A(f"s_mul_i32 s3, s{sWV}, {2*NCH*144}\ns_add_u32 s3, s3, {TB0}")
        A("v_and_b32 v16, 15, v0\nv_mul_u32_u24 v16, 144, v16\nv_bfe_u32 v17, v0, 4, 2\nv_lshl_add_u32 v16, v17, 5, v16\nv_add_u32 v16, s3, v16")
        A("v_bfe_u32 v17, v0, 5, 1\nv_bfe_u32 v18, v0, 2, 2\nv_lshl_add_u32 v17, v17, 3, v18\nv_mul_u32_u24 v17, 144, v17\nv_and_b32 v18, 3, v0\nv_lshl_add_u32 v17, v18, 5, v17\nv_bfe_u32 v18, v0, 4, 1\nv_lshl_add_u32 v17, v18, 3, v17\nv_add_u32 v17, s3, v17")
        A(f"s_lshl_b32 s40, s{sTB}, 18\ns_add_u32 s40, s40, {HS_OFF}\ns_lshr_b32 s41, s{sCh}, 4")
        A("s_waitcnt lgkmcnt(0)")
        for h in range(2):
            for q in range(NS): A(cfma(CY+2*q, HH+2*q, PW_+2*q)[h])
        ST = 80
        for q in range(NS):
            OR_, OI_ = 88 + (q & 1)*32, 96 + (q & 1)*32
            for n in range(16):
                i, r = n >> 2, n & 3
                c_ = ST + 2*(n & 1); p_ = CY + 2*q if n == 0 else ST + 2*((n-1) & 1); o_ = 84 + 2*(n & 1)
                A(rd(c_, jre(q), i, r) + "\n" + rd(c_+1, jim(q), i, r))
                for x in cfma(c_, p_, LAM[q]): A(x)
                A(f"v_pk_mul_f32 {pk(o_)}, {pk(c_)}, {pk(CF+2*q)} op_sel_hi:[1,0]")
                A(cfma(o_, c_, CF+2*q)[1])
                if n & 1: A(f"v_cvt_pk_bf16_f32 v{OR_+(n>>1)}, v84, v86\nv_cvt_pk_bf16_f32 v{OI_+(n>>1)}, v85, v87")
            for part, b in ((0, OR_), (1, OI_)):
                off = (part*NCH + q*16)*144
                A(f"ds_write_b128 v16, v[{b}:{b+3}] offset:{off}\nds_write_b128 v16, v[{b+4}:{b+7}] offset:{off+16}")
            def flush(qq, wait):
                LD = 104 + (qq & 1)*32
                A(f"s_add_u32 s42, s41, {qq}\ns_lshr_b32 s43, s42, 1\ns_lshl_b32 s43, s43, 12\ns_and_b32 s42, s42, 1\ns_lshl_b32 s42, s42, 9\ns_add_u32 s43, s43, s42\ns_add_u32 s43, s43, s40\ns_add_u32 s42, s43, {32*4096}")
                A(f"s_waitcnt lgkmcnt({wait})")
                for part in range(2):
                    for k in range(2):
                        d = LD + (part*2+k)*4
                        A(f"buffer_store_dwordx4 v[{d}:{d+3}], v{vH}, s[{sWS}:{sWS+3}], s{43-part} offen offset:{k*2048}{SC}")
            if q > 0: flush(q-1, 4)
            LD = 104 + (q & 1)*32
            for part in range(2):
                for k in range(2):
                    d = LD + (part*2+k)*4
                    for h in range(2):
                        A(f"ds_read_b64_tr_b16 v[{d+2*h}:{d+2*h+1}], v17 offset:{(part*NCH + q*16 + 4*h)*144 + k*16}")
        flush(NS-1, 0)
        stamp_out(A, opt, 8, 1, sWV, 48, 49)
    body(8, 1, "A")
    A("s_endpgm\nL_k2_B:")
    body(4, 5, "B")
    A("L_k2_end:\ns_endpgm")
    return kernel_desc("up_kernel", 256+240, 256, 102)
```

```python
from gen import *

def gen_k3(A, opt):
    kernel_head(A, "down_kernel")
    ACC = 128
    def acc(j, i): return ACC + (j*4+i)*4
    BF = 0; AB = 32
    NB = 8
    AD = opt.get('ad3', 3)
    ROT = opt.get('rot3', 0)
    vD = list(range(1, 9)); vA = 9; vR = list(range(10, 18)); L = 18
    t0, t1, t2, t3 = 19, 20, 21, 22
    vXL, vXD, vXR, vFL = 23, 24, 25, 26
    SR = 64
    XLDS = 131072
    sB, sA, sWS, sO = 8, 12, 16, 20
    sRB, sCB, sWV, sKH, sMH, sTB, sTile = 24, 25, 26, 27, 28, 29, 30
    sBoff, sAoff, sM, sTrip, sRole = 31, 32, 33, 34, 35
    sAb, sBb = 36, 37
    sPA = [60, 61, 62, 63]; sPB = [4, 5, 6, 7]
    sFL, sS, sXo = 58, 59, 54
    A("s_cmp_ge_u32 s2, 256\ns_cbranch_scc1 L_k3_end")
    stamp(A, opt, 0)
    A(f"s_load_dwordx4 s[40:43], s[0:1], {KA['cre']}")
    A(f"s_load_dwordx4 s[44:47], s[0:1], {KA['wd']}")
    A(f"s_load_dwordx2 s[48:49], s[0:1], {KA['ws']}")
    A(f"s_load_dwordx2 s[50:51], s[0:1], {KA['x']}")
    A(f"s_load_dwordx2 s[52:53], s[0:1], {KA['dsk']}")
    A(f"v_lshrrev_b32 v{t0}, 6, v0\nv_and_b32 v{L}, 63, v0")
    A(f"s_lshr_b32 s{sRole}, s2, 7")
    A(f"v_readfirstlane_b32 s{sWV}, v{t0}")
    A(f"s_bfe_u32 s3, s2, 0x20001\ns_lshl_b32 s3, s3, 2\ns_bfe_u32 s38, s2, 0x20005\ns_add_u32 s{sRB}, s3, s38")
    A(f"s_and_b32 s3, s2, 1\ns_lshl_b32 s3, s3, 2\ns_bfe_u32 s39, s2, 0x20003\ns_add_u32 s{sCB}, s3, s39")
    if opt.get('x_same'): A(f"s_mov_b32 s{sRB}, 0\ns_mov_b32 s{sCB}, 0")
    if ROT: A("s_add_u32 s38, s38, s39\ns_and_b32 s38, s38, 3")
    else: A("s_mov_b32 s38, 0")
    A(f"s_lshl_b32 s{sTile}, s{sRB}, 3\ns_add_u32 s{sTile}, s{sTile}, s{sCB}")
    A(f"s_lshr_b32 s{sKH}, s{sWV}, 1\ns_and_b32 s{sMH}, s{sWV}, 1\ns_lshl_b32 s{sTB}, s{sRB}, 1\ns_add_u32 s{sTB}, s{sTB}, s{sMH}")
    A(f"s_lshl_b32 s{sM}, s{sKH}, 16\ns_lshl_b32 s3, s{sMH}, 13\ns_add_u32 s{sM}, s{sM}, s3")
    A(f"v_lshlrev_b32 v{vA}, 4, v{L}")
    for n in range(4): A(f"s_xor_b32 s{sPB[n]}, s38, {n}\ns_lshl_b32 s{sPA[n]}, s{sPB[n]}, 13")
    A(f"s_lshl_b32 s{sFL}, s{sTile}, 7\ns_add_u32 s{sFL}, s{sFL}, {FL_OFF}")
    A(f"s_lshl_b32 s{sS}, s{sTile}, 16\ns_lshl_b32 s3, s{sWV}, 14\ns_add_u32 s{sS}, s{sS}, s3\ns_add_u32 s{sS}, s{sS}, {S_OFF}")
    A(f"s_cmp_eq_u32 s{sRole}, 0\ns_cbranch_scc1 L_k3_ssm")

    def role(ffn):
        nm = "ffn" if ffn else "ssm"
        NTRIP = 7 if ffn else 4
        BSZ = 3584*1024*2 if ffn else 1024*1024*2
        BSH = 17 if ffn else 7
        ASZ = (H_OFF + 2048*3584*2) if ffn else (HS_OFF + 2048*2048*2)
        for n in range(4): A(f"s_lshl_b32 s{sPB[n]}, s{sPB[n]}, {BSH}")
        if ffn:
            A(f"s_lshl_b32 s3, s{sMH}, 16\ns_lshl_b32 s39, s{sCB}, 8\ns_add_u32 s3, s3, s39")
            A(f"v_lshrrev_b32 v{t0}, 4, v{L}\nv_bfe_u32 v{t1}, v{L}, 1, 3\nv_xor_b32 v{t1}, v{t1}, v{t0}\nv_and_b32 v{t2}, 1, v{L}")
            A(f"v_lshlrev_b32 v{t2}, 4, v{t2}\nv_lshl_add_u32 v{t2}, v{t0}, 11, v{t2}\nv_add_u32 v{t2}, s3, v{t2}")
            A(f"v_lshl_add_u32 v{t0}, v{t1}, 5, v{t2}\nv_xor_b32 v{t1}, 4, v{t1}\nv_lshl_add_u32 v{t1}, v{t1}, 5, v{t2}")
            for n in range(8):
                A(f"v_add_u32 v{vD[n]}, {n*8192 - (n&3)*1024}, v{t1 if (n>>1)&1 else t0}")
            A(f"s_mul_i32 s{sBb}, s{sKH}, {1792*2048}")
            A(f"s_mul_i32 s{sAb}, s{sTB}, 112\ns_mul_i32 s3, s{sKH}, 56\ns_add_u32 s{sAb}, s{sAb}, s3\ns_lshl_b32 s{sAb}, s{sAb}, 12\ns_add_u32 s{sAb}, s{sAb}, {H_OFF}")
        else:
            A(f"s_lshl_b32 s3, s{sCB}, 18\ns_lshl_b32 s39, s{sMH}, 17\ns_add_u32 s3, s3, s39")
            A(f"v_lshrrev_b32 v{t0}, 4, v{L}\nv_and_b32 v{t1}, 7, v{L}\nv_xor_b32 v{t1}, v{t1}, v{t0}\nv_lshrrev_b32 v{t2}, 3, v{L}")
            A(f"v_lshlrev_b32 v{t2}, 11, v{t2}\nv_add_u32 v{t2}, s3, v{t2}")
            A(f"v_lshl_add_u32 v{t0}, v{t1}, 4, v{t2}\nv_xor_b32 v{t1}, 4, v{t1}\nv_lshl_add_u32 v{t1}, v{t1}, 4, v{t2}")
            for n in range(8):
                A(f"v_add_u32 v{vD[n]}, {n*16384 - (n&3)*1024}, v{t1 if n&1 else t0}")
            A(f"s_mov_b32 s{sBb}, 0")
            A(f"s_lshl_b32 s{sAb}, s{sTB}, 1\ns_add_u32 s{sAb}, s{sAb}, s{sKH}\ns_lshl_b32 s{sAb}, s{sAb}, 17\ns_add_u32 s{sAb}, s{sAb}, {HS_OFF}")
        A("s_waitcnt lgkmcnt(0)")
        if ffn: srd(A, sB, 44, 45, BSZ)
        else: A(f"s_cmp_eq_u32 s{sKH}, 0\ns_cselect_b32 s{sB}, s40, s42\ns_cselect_b32 s{sB+1}, s41, s43\ns_mov_b32 s{sB+2}, {BSZ}\ns_mov_b32 s{sB+3}, 0x00020000")
        srd(A, sA, 48, 49, ASZ)

        def dma_ops(st, part):
            o = []
            if part == 0: o.append(Op(f"s_add_u32 s{sBoff}, s{sBb}, s{sPB[st]}"))
            o.append(Op(f"s_add_u32 m0, s{sM}, {st*16384 + part*4096}"))
            for n in range(4*part, 4*part+4):
                o.append(Op(f"buffer_load_dwordx4 v{vD[n]}, s[{sB}:{sB+3}], s{sBoff} offen offset:{(n&3)*1024} lds", 'vm', f"d{st}"))
            if part == 1 and st == 3: o.append(Op(f"s_add_u32 s{sBb}, s{sBb}, {4 << BSH}"))
            return o
        def a_ops(ts):
            ts %= 8
            o = []
            if ts % 2 == 0: o.append(Op(f"s_add_u32 s{sAoff}, s{sAb}, s{sPA[ts >> 1]}"))
            else: o.append(Op(f"s_add_u32 s{sAoff}, s{sAoff}, 4096"))
            for i in range(4):
                r = AB + ts*16 + i*4
                o.append(Op(f"buffer_load_dwordx4 a[{r}:{r+3}], v{vA}, s[{sA}:{sA+3}], s{sAoff} offen offset:{i*1024}", 'vm', f"x{ts}"))
            if ts == 7: o.append(Op(f"s_add_u32 s{sAb}, s{sAb}, 32768"))
            return o
        def step_vm(t, last=False):
            o = []
            if not (last and t + AD >= 8): o += a_ops(t + AD)
            sg = (t + 5) >> 1
            if not (last and sg >= 4): o += dma_ops(sg % 4, (t + 1) % 2)
            return o
        def emit(ops):
            prev = False
            for o in ops:
                if prev and o.text.endswith('lds'): A("s_nop 0")
                A(o.text); prev = ' m0,' in o.text
        pro = []
        for t in range(-max(5, AD), 0):
            if t + AD >= 0: pro += a_ops(t + AD)
            if t >= -5: pro += dma_ops((t + 5) >> 1, (t + 1) % 2)
        emit(pro)
        vms = [o for o in pro if o.kind == 'vm']
        lastneed = max(i for i, o in enumerate(vms) if o.tag in ('x0', 'd0'))
        if ffn:
            A(f"v_bfe_u32 v{t0}, v{L}, 2, 2\nv_lshrrev_b32 v{t1}, 4, v{L}\nv_lshl_add_u32 v{t2}, v{t1}, 3, v{t0}\nv_lshlrev_b32 v{t2}, 8, v{t2}")
            A(f"v_and_b32 v{t3}, 3, v{L}\nv_lshl_add_u32 v{t2}, v{t3}, 3, v{t2}\ns_lshl_b32 s3, s{sKH}, 16\nv_add_u32 v{t2}, s3, v{t2}")
            A(f"v_bfe_u32 v{t0}, v{L}, 2, 3\ns_lshl_b32 s3, s{sKH}, 2\nv_xor_b32 v{t0}, s3, v{t0}")
            for j in range(8):
                A(f"v_xor_b32 v{t1}, {j}, v{t0}\nv_lshl_add_u32 v{vR[j]}, v{t1}, 5, v{t2}")
        else:
            A(f"v_and_b32 v{t0}, 15, v{L}\nv_lshrrev_b32 v{t1}, 1, v{t0}\nv_lshrrev_b32 v{t2}, 4, v{L}\nv_xor_b32 v{t1}, v{t1}, v{t2}\nv_lshlrev_b32 v{t1}, 4, v{t1}")
            A(f"v_lshl_add_u32 v{t0}, v{t0}, 7, v{t1}\ns_mul_i32 s3, s{sKH}, {65536+8192}\nv_add_u32 v{vR[0]}, s3, v{t0}\nv_xor_b32 v{vR[1]}, 64, v{vR[0]}")
            A(f"v_xor_b32 v{vR[2]}, 8192, v{vR[0]}\nv_xor_b32 v{vR[3]}, 8192, v{vR[1]}")
        for r in range(128, 256): A(f"v_mov_b32 v{r}, 0")
        srd(A, sWS, 48, 49, WS_END)
        A(f"s_lshl_b32 s39, s{sWV}, 13\ns_add_u32 s39, s39, {XLDS}")
        if ffn:
            srd(A, sO, 50, 51, 2048*1024*2)
            A(f"v_lshrrev_b32 v{t0}, 3, v{L}\nv_and_b32 v{t1}, 7, v{L}\nv_lshlrev_b32 v{t0}, 11, v{t0}\nv_lshl_add_u32 v{vXD}, v{t1}, 4, v{t0}")
            A(f"s_lshl_b32 s{sXo}, s{sTB}, 17\ns_lshl_b32 s3, s{sCB}, 8\ns_add_u32 s{sXo}, s{sXo}, s3\ns_lshl_b32 s3, s{sKH}, 7\ns_add_u32 s{sXo}, s{sXo}, s3")
            A(f"v_lshrrev_b32 v{t0}, 4, v{L}\nv_bfe_u32 v{t1}, v{L}, 2, 2\nv_lshl_add_u32 v{t0}, v{t0}, 4, v{t1}\nv_lshlrev_b32 v{t0}, 7, v{t0}")
            A(f"v_and_b32 v{t1}, 3, v{L}\nv_lshl_add_u32 v{t0}, v{t1}, 3, v{t0}\nv_add_u32 v{vXR}, s39, v{t0}")
            A(f"v_lshrrev_b32 v{t0}, 4, v{L}\nv_lshlrev_b32 v{t0}, 16, v{t0}\nv_and_b32 v{t1}, 15, v{L}\nv_lshl_add_u32 v{vXL}, v{t1}, 2, v{t0}")
            A(f"v_mov_b32 v{vFL}, 0\nv_mov_b32 v{vFL+1}, 0")
            xops = []
            for n in range(8):
                xops.append(Op(f"s_add_u32 m0, s39, {n*1024}"))
                xops.append(Op(f"s_add_u32 s3, s{sXo}, {n*16384}"))
                xops.append(Op(f"buffer_load_dwordx4 v{vXD}, s[{sO}:{sO+3}], s3 offen lds", 'vm', 'e'))
            sops = []
            for k in range(16):
                if k % 4 == 0 and k: sops.append(Op(f"s_add_u32 s{sS}, s{sS}, 4096"))
                sops.append(Op(f"buffer_load_dwordx4 v[{SR+k*4}:{SR+k*4+3}], v{vA}, s[{sWS}:{sWS+3}], s{sS} offen offset:{(k&3)*1024} sc1", 'vm', 'e'))
            extra = xops + sops
        else:
            A(f"s_lshl_b32 s{sXo}, s{sTB}, 5\ns_lshl_b32 s3, s{sCB}, 2\ns_add_u32 s{sXo}, s{sXo}, s3\ns_lshl_b32 s3, s{sKH}, 1\ns_add_u32 s{sXo}, s{sXo}, s3\ns_lshl_b32 s{sXo}, s{sXo}, 12")
            if XN_OFF: A(f"s_add_u32 s{sXo}, s{sXo}, {XN_OFF}")
            A(f"v_bfe_u32 v{t0}, v{L}, 1, 1\nv_lshlrev_b32 v{t0}, 8, v{t0}\nv_lshrrev_b32 v{t1}, 2, v{L}\nv_lshl_add_u32 v{t0}, v{t1}, 4, v{t0}")
            A(f"v_and_b32 v{t1}, 1, v{L}\nv_lshl_add_u32 v{t0}, v{t1}, 3, v{t0}\nv_add_u32 v{vXR}, s39, v{t0}")
            A(f"s_lshl_b32 s3, s{sCB}, 8\ns_lshl_b32 s38, s{sKH}, 7\ns_add_u32 s3, s3, s38\nv_and_b32 v{t0}, 15, v{L}\nv_lshl_add_u32 v{vXL}, v{t0}, 1, s3")
            extra = []
            for h in range(2):
                extra.append(Op(f"s_add_u32 m0, s39, {h*4096}"))
                if h: extra.append(Op(f"s_add_u32 s{sXo}, s{sXo}, 4096"))
                for n in range(4):
                    extra.append(Op(f"buffer_load_dwordx4 v{vA}, s[{sWS}:{sWS+3}], s{sXo} offen offset:{n*1024} lds", 'vm', 'e'))
            for m in range(4):
                extra.append(Op(f"global_load_ushort v{28+m}, v{vXL}, s[52:53] offset:{m*32}", 'vm', 'e'))
        def frag_reads(j, st, hk):
            d = BF + j*4
            if ffn:
                return [Op(f"ds_read_b64_tr_b16 a[{d+2*h}:{d+2*h+1}], v{vR[j]} offset:{st*16384 + hk*8192 + h*1024}", 'lds', f"f{j}") for h in range(2)]
            return [Op(f"ds_read_b128 a[{d}:{d+3}], v{vR[(j>>2)*2 + hk]} offset:{st*16384 + (j&3)*2048}", 'lds', f"f{j}")]
        stamp(A, opt, 1)
        A(f"s_waitcnt vmcnt({len(vms)-1-lastneed})\ns_barrier")
        for j in range(8): emit(frag_reads(j, 0, 0))
        A(f"s_mov_b32 s{sTrip}, 0\ns_waitcnt lgkmcnt(0)")
        BARG = opt.get('barg3', 2)
        def trip(last):
            body = []
            ex = list(extra)
            for t in range(8):
                mf = []
                for j in range(8):
                    order = range(4) if j % 2 == 0 else range(3, -1, -1)
                    for n, i in enumerate(order):
                        c = f"v[{acc(j,i)}:{acc(j,i)+3}]"
                        mf.append(Op(f"v_mfma_f32_16x16x32_bf16 {c}, a[{AB+t*16+i*4}:{AB+t*16+i*4+3}], a[{BF+j*4}:{BF+j*4+3}], {c}",
                                     need_vm=(f"x{t}" if (j == 0 and n == 0) else None), need_lds=(f"f{j}" if n == 0 else None)))
                vmo = step_vm(t, last)
                if ffn and not last and t == 2:
                    vmo = vmo + [Op(f"buffer_load_dword v{vFL+1}, v{vFL}, s[{sWS}:{sWS+3}], s{sFL} offen sc1", 'vm', 'fl')]
                if last:
                    nv = sum(1 for o in vmo if o.kind == 'vm')
                    while ex and nv < 8 and t >= 3:
                        o = ex.pop(0); vmo.append(o); nv += o.kind == 'vm'
                fin = last and t == 7
                if t % 2 == 0: st, hk, first = t >> 1, 1, 0
                else: st, hk, first = ((t >> 1) + 1) % 4, 0, BARG*4 - 1
                rd = []
                if not fin:
                    for j in range(8):
                        for o in frag_reads(j, st, hk): rd.append((max(j*4 + 3, first), o))
                sp = 30.0 / max(1, len(vmo))
                vm = [(int(k*sp), o) for k, o in enumerate(vmo)]
                slots = spread(32, [rd, vm], per_gap=1)
                for m in range(32):
                    body.append(mf[m])
                    if t % 2 == 1 and m == first and not fin:
                        body.append(Op("s_waitcnt lgkmcnt(0)", 'lgkm0', need_vm=f"d{st}"))
                        body.append(Op("s_barrier"))
                    body.extend(slots[m])
            assert not (last and ex), len(ex)
            return body
        def put(lines):
            prev = ""
            for x in lines:
                if opt.get('x_nolds') and x.startswith('ds_read'): continue
                if opt.get('x_noa') and x.startswith('buffer_load_dwordx4 a['): continue
                if opt.get('x_nodma') and x.endswith('lds') and 's[8:11]' in x: continue
                if opt.get('x_nobar') and x == 's_barrier': continue
                if ' m0,' in prev and x.endswith('lds'): A("s_nop 0")
                A(x); prev = x
        loop = trip(False); fin = trip(True)
        stamp(A, opt, 2)
        A(f".p2align 6\nL_k3_{nm}_loop:")
        put(resolve_loop(loop, lgkm_slack=4))
        A(f"s_add_u32 s{sTrip}, s{sTrip}, 1\ns_cmp_lt_u32 s{sTrip}, {NTRIP-1}\ns_cbranch_scc1 L_k3_{nm}_loop")
        if ffn:
            nafter = 0
            for o in reversed(loop):
                if o.tag == 'fl': break
                nafter += o.kind == 'vm'
            A(f"s_waitcnt vmcnt({nafter})\ns_mov_b32 s44, 0x40000")
            A(f"L_k3_poll:\nv_readfirstlane_b32 s3, v{vFL+1}\ns_cmp_eq_u32 s3, 1\ns_cbranch_scc1 L_k3_got\ns_sleep 2")
            A(f"buffer_load_dword v{vFL+1}, v{vFL}, s[{sWS}:{sWS+3}], s{sFL} offen sc1\ns_waitcnt vmcnt(0)")
            A("s_sub_u32 s44, s44, 1\ns_cmp_lg_u32 s44, 0\ns_cbranch_scc1 L_k3_poll\nL_k3_got:")
        put(resolve_seq(loop, fin, lgkm_slack=4))
        stamp(A, opt, 3)
        A(f"s_lshl_b32 s3, s{sKH}, 16\ns_lshl_b32 s38, s{sMH}, 14\ns_add_u32 s3, s3, s38\nv_add_u32 v2, s3, v{vA}\nv_xor_b32 v3, 0x10000, v2")
        A("s_nop 4")
        for k in range(16):
            r = acc(4, 0) + k*4
            A(f"ds_write_b128 v2, v[{r}:{r+3}] offset:{k*1024}")
        XR = 32
        A("s_waitcnt vmcnt(0)")
        for k in range(16):
            m, i = k >> 2, k & 3
            off = (i*512 + m*32) if ffn else ((m >> 1)*4096 + i*1024 + (m & 1)*512)
            A(f"ds_read_b64_tr_b16 v[{XR+2*k}:{XR+2*k+1}], v{vXR} offset:{off}")
        A("s_waitcnt lgkmcnt(0)\ns_barrier")
        stamp(A, opt, 4)
        E = acc(4, 0)
        for k in range(16):
            A(f"ds_read_b128 v[{E+k*4}:{E+k*4+3}], v3 offset:{k*1024}")
        pk = lambda r: f"v[{r}:{r+1}]"
        stamp(A, opt, 5)
        if ffn:
            LOG2E = 1.4426950408889634
            srd(A, sO, 46, 47, 2048*1024*4)
            A(f"s_mov_b32 s4, {hx(f2u(-LOG2E))}\ns_mov_b32 s5, s4")
            A(f"s_lshl_b32 s{sXo}, s{sXo}, 1")
            def ph1(k):
                y = ACC + k*4; e = E + k*4
                o = [f"s_waitcnt lgkmcnt({15-k})"]
                o += [f"v_pk_add_f32 {pk(y+h)}, {pk(y+h)}, {pk(e+h)}" for h in (0, 2)]
                o += [f"v_pk_mul_f32 {pk(e+h)}, {pk(y+h)}, s[4:5]" for h in (0, 2)]
                return o
            def tr1(k): return [f"v_exp_f32 v{E+k*4+h}, v{E+k*4+h}" for h in range(4)]
            def ph2(k):
                y = ACC + k*4; e = E + k*4; s_ = SR + k*4
                o = [f"v_pk_add_f32 {pk(e+h)}, {pk(e+h)}, 1.0 op_sel_hi:[1,0]" for h in (0, 2)]
                o += [f"v_pk_mul_f32 {pk(y+h)}, {pk(y+h)}, {pk(s_+h)}" for h in (0, 2)]
                return o
            def tr2(k): return [f"v_rcp_f32 v{E+k*4+h}, v{E+k*4+h}" for h in range(4)]
            def ph3(k):
                m, i = k >> 2, k & 3
                y = ACC + k*4; e = E + k*4; s_ = SR + k*4; xr = XR + 2*k
                o = [f"v_lshlrev_b32 v{s_}, 16, v{xr}", f"v_and_b32 v{s_+1}, 0xffff0000, v{xr}", f"v_lshlrev_b32 v{s_+2}, 16, v{xr+1}", f"v_and_b32 v{s_+3}, 0xffff0000, v{xr+1}"]
                o += [f"v_pk_fma_f32 {pk(s_+h)}, {pk(y+h)}, {pk(e+h)}, {pk(s_+h)}" for h in (0, 2)]
                st_ = []
                for r in range(4):
                    st_.append(f"s_add_u32 s3, s{sXo}, {(4*i+r)*4096}\nbuffer_store_dword v{s_+r}, v{vXL}, s[{sO}:{sO+3}], s3 offen offset:{m*64}")
                return o, st_
            pend = []
            for n in range(16 + 4):
                plain = []; trans = []
                if n < 16: plain += ph1(n)
                if 0 <= n-1 < 16: trans += tr1(n-1)
                if 0 <= n-2 < 16: plain += ph2(n-2)
                if 0 <= n-3 < 16: trans += tr2(n-3)
                newst = []
                if 0 <= n-4 < 16:
                    o, newst = ph3(n-4); plain += o
                plain = pend + plain; pend = newst
                while plain or trans:
                    if trans: A(trans.pop(0))
                    for _ in range(2):
                        if plain: A(plain.pop(0))
                A("s_nop 0")
            for x in pend: A(x)
            stamp(A, opt, 6)
        else:
            A(f"s_cmp_eq_u32 s{sKH}, 0\ns_cselect_b32 s4, 2.0, -2.0\ns_mov_b32 s5, s4")
            for k in range(16):
                m, i = k >> 2, k & 3
                y = ACC + k*4; e = E + k*4; xr = XR + 2*k
                if i == 0: A(f"v_lshlrev_b32 v10, 16, v{28+m}\nv_mov_b32 v11, v10")
                A(f"v_lshlrev_b32 v4, 16, v{xr}\nv_and_b32 v5, 0xffff0000, v{xr}\nv_lshlrev_b32 v6, 16, v{xr+1}\nv_and_b32 v7, 0xffff0000, v{xr+1}")
                A("v_pk_mul_f32 v[4:5], v[4:5], v[10:11]\nv_pk_mul_f32 v[6:7], v[6:7], v[10:11]")
                A("v_cvt_pk_bf16_f32 v12, v4, v5\nv_cvt_pk_bf16_f32 v13, v6, v7")
                A("v_lshlrev_b32 v4, 16, v12\nv_and_b32 v5, 0xffff0000, v12\nv_lshlrev_b32 v6, 16, v13\nv_and_b32 v7, 0xffff0000, v13")
                A(f"s_waitcnt lgkmcnt({15-k})")
                for h in (0, 2): A(f"v_pk_add_f32 {pk(y+h)}, {pk(y+h)}, {pk(e+h)} neg_lo:[0,1] neg_hi:[0,1]")
                for h in (0, 2): A(f"v_pk_fma_f32 {pk(y+h)}, {pk(y+h)}, s[4:5], {pk(4+h)}")
                if k % 4 == 0 and k: A(f"s_add_u32 s{sS}, s{sS}, 4096")
                A(f"buffer_store_dwordx4 v[{y}:{y+3}], v{vA}, s[{sWS}:{sWS+3}], s{sS} offen offset:{(k&3)*1024} sc1")
            stamp(A, opt, 6)
            A("s_waitcnt vmcnt(0)\ns_barrier")
            A(f"s_cmp_lg_u32 s{sWV}, 0\ns_cbranch_scc1 L_k3_ssm_done")
            A(f"v_mov_b32 v1, 0\nv_mov_b32 v2, 1\ns_mov_b64 exec, 1\nbuffer_store_dword v2, v1, s[{sWS}:{sWS+3}], s{sFL} offen sc1\ns_mov_b64 exec, -1")
            A("L_k3_ssm_done:")
            NW = opt.get('tailpf', 0)
            if NW:
                srd(A, sB, 44, 45, 3584*1024*2)
                A(f"v_lshlrev_b32 v4, 7, v{L}")
                A(f"v_lshrrev_b32 v5, 1, v{L}\nv_lshlrev_b32 v5, 11, v5\nv_and_b32 v6, 1, v{L}\nv_lshl_add_u32 v5, v6, 7, v5")
                A(f"s_mul_i32 s3, s{sTB}, 112\ns_mul_i32 s38, s{sKH}, 56\ns_add_u32 s3, s3, s38\ns_and_b32 s38, s{sCB}, 3\ns_lshl_b32 s38, s38, 1\ns_add_u32 s3, s3, s38\ns_lshl_b32 s3, s3, 12\ns_add_u32 s3, s3, {H_OFF + (7-NW)*32768}")
                A(f"s_mul_i32 s39, s{sKH}, 1792\ns_and_b32 s38, s{sRB}, 3\ns_lshl_b32 s38, s38, 6\ns_add_u32 s39, s39, s38\ns_lshl_b32 s38, s{sMH}, 5\ns_add_u32 s39, s39, s38\ns_lshl_b32 s39, s39, 11\ns_lshl_b32 s38, s{sCB}, 8\ns_add_u32 s39, s39, s38\ns_add_u32 s39, s39, {(7-NW)*256*2048}")
                for w in range(NW):
                    A(f"buffer_load_dword v{8+2*w}, v4, s[{sWS}:{sWS+3}], s3 offen\nbuffer_load_dword v{9+2*w}, v5, s[{sB}:{sB+3}], s39 offen")
                    A(f"s_add_u32 s3, s3, 32768\ns_add_u32 s39, s39, {256*2048}")
        stamp_out(A, opt, 8, 2, sWV, 48, 49)
    role(True)
    A("s_endpgm")
    A("L_k3_ssm:")
    role(False)
    A("L_k3_end:\ns_endpgm")
    return kernel_desc("down_kernel", 256+160, 256, 102)
```

```python
import sys, struct
def f2u(x): return struct.unpack("<I", struct.pack("<f", x))[0]
def hx(x): return f"0x{x & 0xffffffff:08x}"
import math

import os
WSB = int(os.environ.get('WSB', '0'), 0)
XN_OFF = WSB + 0
H_OFF  = WSB + 0x400000
HS_OFF = WSB + 0x1200000
S_OFF  = WSB + 0x1A00000
EX_OFF = WSB + 0x2200000
FL_OFF = WSB + 0x2240000
PT_OFF = WSB + 0x2250000
PW_OFF = WSB + 0x2260000
WS_END = WSB + 0x2280000
WS_SIZE = 0x10000000
KA = dict(x=0, lre=8, lim=16, bre=24, bim=32, cre=40, cim=48, ldt=56, dsk=64, bx=72, wg=80, wu=88, wd=96, out=104, dbg=112, ws=120)

class Asm:
    def __init__(self): self.l = []
    def __call__(self, s):
        for x in s.split("\n"):
            x = x.strip()
            if x: self.l.append(("" if x.endswith(":") else "    ") + x)
    def text(self): return "\n".join(self.l) + "\n"

def kernel_head(A, name):
    A.l.append(f".globl {name}\n.p2align 8\n.type {name},@function\n{name}:")
def kernel_desc(name, vgpr, accum, sgpr=102):
    return f""".p2align 6
.amdhsa_kernel {name}
  .amdhsa_next_free_vgpr {vgpr}
  .amdhsa_next_free_sgpr {sgpr}
  .amdhsa_accum_offset {accum}
  .amdhsa_group_segment_fixed_size 0
  .amdhsa_kernarg_size 128
  .amdhsa_user_sgpr_count 2
  .amdhsa_user_sgpr_kernarg_segment_ptr 1
  .amdhsa_system_sgpr_workgroup_id_x 1
  .amdhsa_float_denorm_mode_32 3
.end_amdhsa_kernel
"""
def srd(A, d, lo, hi, size, add=None):
    if add is None:
        A(f"s_mov_b32 s{d}, s{lo}\ns_mov_b32 s{d+1}, s{hi}")
    else:
        A(f"s_add_u32 s{d}, s{lo}, {add}\ns_addc_u32 s{d+1}, s{hi}, 0")
    A(f"s_mov_b32 s{d+2}, {size}\ns_mov_b32 s{d+3}, 0x00020000")

PROF_OFF = 0x3000000
def stamp(A, opt, n):
    if opt.get('prof'):
        A(f"s_memtime s[{70+4*n}:{71+4*n}]\ns_memrealtime s[{72+4*n}:{73+4*n}]\ns_waitcnt lgkmcnt(0)")
def stamp_out(A, opt, nst, kidx, swv, lo, hi):
    if opt.get('prof'):
        A("s_waitcnt vmcnt(0)")
        stamp(A, opt, nst - 1)
        srd(A, 64, lo, hi, WS_SIZE)
        A(f"s_lshl_b32 s3, s2, 2\ns_add_u32 s3, s3, s{swv}\ns_lshl_b32 s3, s3, 6\ns_add_u32 s3, s3, {PROF_OFF + kidx*0x10000}")
        A("v_mov_b32 v1, 0")
        for n in range(nst):
            A(f"v_mov_b32 v2, s{70+4*n}\nv_mov_b32 v3, s{72+4*n}\nbuffer_store_dwordx2 v[2:3], v1, s[64:67], s3 offen offset:{n*8}\ns_nop 1")
def code_prefetch(A, lab0, lab1, sp, vt, vd, share, uid, nthreads_shift=None):
    A(f"s_getpc_b64 s[{sp}:{sp+1}]\nL_pc{uid}:\ns_add_u32 s{sp}, s{sp}, {lab0}-L_pc{uid}\ns_addc_u32 s{sp+1}, s{sp+1}, 0")
    A(f"v_and_b32 v{vt}, 63, v0\nv_min_u32 v{vt}, {share-1}, v{vt}\ns_lshr_b32 s3, s2, 3\ns_mul_i32 s3, s3, {share}\nv_add_lshl_u32 v{vt}, v{vt}, s3, 7")
    A(f"v_min_u32 v{vt}, {lab1}-{lab0}-4, v{vt}\nglobal_load_dword {vd if isinstance(vd, str) else 'v%d' % vd}, v{vt}, s[{sp}:{sp+1}]")

LOG2E = 1.4426950408889634
def gen_k1(A, opt):
    kernel_head(A, "ln_kernel")
    A("s_cmp_ge_u32 s2, 256\ns_cbranch_scc1 L_k1_end")
    for n in range(7): stamp(A, opt, n)
    A(f"s_load_dwordx2 s[4:5], s[0:1], {KA['x']}\ns_load_dwordx2 s[6:7], s[0:1], {KA['ws']}")
    PFK = opt.get('pfk', 0)
    A(f"s_load_dwordx4 s[24:27], s[0:1], {KA['wg']}\ns_load_dwordx4 s[28:31], s[0:1], {KA['bre']}")
    A(f"s_load_dwordx4 s[32:35], s[0:1], {KA['lre']}\ns_load_dwordx2 s[36:37], s[0:1], {KA['ldt']}")
    A("v_and_b32 v1, 7, v0\nv_lshrrev_b32 v2, 3, v0")
    A("s_lshr_b32 s16, s2, 3")
    A("s_bfe_u32 s17, s2, 0x10002")
    A("s_and_b32 s18, s2, 3")
    A("s_lshl_b32 s19, s16, 6\ns_lshl_b32 s20, s17, 5\ns_add_u32 s19, s19, s20\ns_lshl_b32 s20, s18, 2\ns_add_u32 s19, s19, s20")
    A("v_lshrrev_b32 v3, 2, v1\nv_lshlrev_b32 v3, 4, v3\nv_and_b32 v4, 3, v1\nv_add3_u32 v3, v3, v4, s19")
    A("v_lshlrev_b32 v3, 11, v3\nv_lshl_add_u32 v3, v2, 4, v3")
    A("v_lshrrev_b32 v51, 6, v0\nv_and_b32 v56, 3, v0\ns_lshl_b32 s21, s2, 2\nv_add_u32 v56, s21, v56")
    A("v_readfirstlane_b32 s40, v51\nv_lshlrev_b32 v57, 1, v56")
    A("s_waitcnt lgkmcnt(0)")
    srd(A, 8, 4, 5, 2048*1024*2)
    srd(A, 12, 6, 7, WS_END)
    A("buffer_load_dwordx4 v[8:11], v3, s[8:11], 0 offen\nbuffer_load_dwordx4 v[12:15], v3, s[8:11], 0 offen offset:1024")
    A("global_load_ushort v58, v57, s[32:33]\nglobal_load_ushort v59, v57, s[34:35]\nglobal_load_ushort v60, v57, s[36:37]")
    NPF = 3
    if opt.get('cpf', 1):
        code_prefetch(A, "up_kernel", "L_text_end", 42, 50, 52, opt.get("cpfn", 20), 1); NPF += 1
    if PFK:
        fl = " nt" if opt.get('pfnt') else ""
        R = 4*PFK
        A(f"v_bfe_u32 v50, v0, 3, 5\nv_min_u32 v50, {R-1}, v50\nv_min_u32 v51, 6, v1\ns_mul_i32 s38, s16, {R}\nv_add_u32 v50, s38, v50\ns_movk_i32 s39, 7168\nv_mul_lo_u32 v50, v50, s39")
        A("s_and_b32 s38, s2, 7\ns_mul_i32 s38, s38, 896\nv_lshl_add_u32 v50, v51, 7, v50\nv_add_u32 v50, s38, v50")
        A("s_cmp_lt_u32 s40, 4\ns_cselect_b32 s24, s24, s26\ns_cselect_b32 s25, s25, s27\ns_cselect_b32 s28, s28, s30\ns_cselect_b32 s29, s29, s31")
        A(f"global_load_dword v53, v50, s[24:25]{fl}")
        A(f"s_and_b32 s38, s2, 7\ns_lshl_b32 s38, s38, 18\ns_lshl_b32 s39, s16, 13\ns_add_u32 s38, s38, s39\nv_and_b32 v50, 15, v0\nv_min_u32 v50, {2*PFK-1}, v50\nv_bfe_u32 v51, v0, 4, 2\nv_lshlrev_b32 v51, 11, v51\nv_lshl_add_u32 v50, v50, 7, v51\nv_add_u32 v50, s38, v50")
        A(f"global_load_dword v54, v50, s[28:29]{fl}")
        NPF += 2
    A("s_lshl_b32 s19, s16, 17\ns_lshl_b32 s20, s18, 10\ns_add_u32 s19, s19, s20\ns_lshl_b32 s20, s17, 7\ns_add_u32 s19, s19, s20")
    if XN_OFF: A(f"s_add_u32 s19, s19, {XN_OFF}")
    A("v_lshrrev_b32 v4, 2, v2\nv_lshlrev_b32 v4, 12, v4\nv_and_b32 v5, 3, v2\nv_lshlrev_b32 v5, 8, v5\nv_add3_u32 v4, v4, v5, s19\nv_lshl_add_u32 v4, v1, 4, v4")
    A("v_lshrrev_b32 v5, 6, v0\nv_lshlrev_b32 v5, 2, v5\nv_lshl_add_u32 v5, v1, 5, v5\nv_lshlrev_b32 v6, 5, v1")
    A(f"s_waitcnt vmcnt({NPF})")
    stamp(A, opt, 1)
    for r in range(8):
        A(f"v_lshlrev_b32 v{16+2*r}, 16, v{8+r}\nv_and_b32 v{17+2*r}, 0xffff0000, v{8+r}")
    def reduce(src, ldsoff):
        A(f"s_nop 1\nv_add_f32_dpp v{src}, v{src}, v{src} row_ror:8 row_mask:0xf bank_mask:0xf")
        A(f"v_mov_b32 v33, v{src}\ns_nop 1\nv_permlane16_swap_b32 v{src}, v33\ns_nop 1\nv_add_f32 v{src}, v{src}, v33")
        A(f"v_mov_b32 v33, v{src}\ns_nop 1\nv_permlane32_swap_b32 v{src}, v33\ns_nop 1\nv_add_f32 v{src}, v{src}, v33")
        A(f"ds_write_b32 v5, v{src} offset:{ldsoff}")
        A("s_waitcnt lgkmcnt(0)\ns_barrier")
        A(f"ds_read_b128 v[36:39], v6 offset:{ldsoff}\nds_read_b128 v[40:43], v6 offset:{ldsoff+16}\ns_waitcnt lgkmcnt(0)")
        A("v_pk_add_f32 v[36:37], v[36:37], v[38:39]\nv_pk_add_f32 v[40:41], v[40:41], v[42:43]\nv_pk_add_f32 v[36:37], v[36:37], v[40:41]\nv_add_f32 v32, v36, v37")
    A("v_pk_add_f32 v[34:35], v[16:17], v[18:19]\nv_pk_add_f32 v[36:37], v[20:21], v[22:23]\nv_pk_add_f32 v[38:39], v[24:25], v[26:27]\nv_pk_add_f32 v[40:41], v[28:29], v[30:31]")
    A("v_pk_add_f32 v[34:35], v[34:35], v[36:37]\nv_pk_add_f32 v[38:39], v[38:39], v[40:41]\nv_pk_add_f32 v[34:35], v[34:35], v[38:39]\nv_add_f32 v34, v34, v35")
    reduce(34, 0)
    A(f"v_mul_f32 v44, {hx(f2u(-1.0/1024))}, v32")
    for r in range(8):
        t = 36 + (r & 1)*2
        A(f"v_pk_add_f32 v[{t}:{t+1}], v[{16+2*r}:{17+2*r}], v[44:45] op_sel_hi:[1,0]")
        d = 34 if (r & 1) == 0 else 40
        if r < 2: A(f"v_pk_mul_f32 v[{d}:{d+1}], v[{t}:{t+1}], v[{t}:{t+1}]")
        else: A(f"v_pk_fma_f32 v[{d}:{d+1}], v[{t}:{t+1}], v[{t}:{t+1}], v[{d}:{d+1}]")
    A("v_pk_add_f32 v[34:35], v[34:35], v[40:41]\nv_add_f32 v34, v34, v35")
    reduce(34, 256)
    A(f"v_mul_f32 v45, {hx(f2u(1.0/1024))}, v32")
    A("v_cvt_pk_bf16_f32 v46, v44, v45")
    A("v_lshlrev_b32 v44, 16, v46\nv_and_b32 v46, 0xffff0000, v46")
    A(f"v_add_f32 v46, {hx(f2u(1e-5))}, v46\nv_cvt_pk_bf16_f32 v46, v46, v46\nv_lshlrev_b32 v46, 16, v46")
    A("v_sqrt_f32 v46, v46\ns_nop 0\nv_cvt_pk_bf16_f32 v46, v46, v46\nv_lshlrev_b32 v46, 16, v46\nv_rcp_f32 v46, v46")
    for r in range(8): A(f"v_pk_add_f32 v[{16+2*r}:{17+2*r}], v[{16+2*r}:{17+2*r}], v[44:45] op_sel_hi:[1,0]")
    for r in range(8): A(f"v_cvt_pk_bf16_f32 v{8+r}, v{16+2*r}, v{17+2*r}")
    for r in range(8): A(f"v_lshlrev_b32 v{16+2*r}, 16, v{8+r}\nv_and_b32 v{17+2*r}, 0xffff0000, v{8+r}")
    for r in range(8): A(f"v_pk_mul_f32 v[{16+2*r}:{17+2*r}], v[{16+2*r}:{17+2*r}], v[46:47] op_sel_hi:[1,0]")
    for r in range(8): A(f"v_cvt_pk_bf16_f32 v{8+r}, v{16+2*r}, v{17+2*r}")
    A("s_mov_b32 s20, 0x10000")
    SC = " sc1" if opt.get('sc1', 1) else ""
    A(f"buffer_store_dwordx4 v[8:11], v4, s[12:15], 0 offen{SC}\nbuffer_store_dwordx4 v[12:15], v4, s[12:15], s20 offen{SC}")
    A("s_cmp_gt_u32 s40, 1\ns_cbranch_scc1 L_k1_fin")
    A("s_cmp_eq_u32 s40, 0\ns_cbranch_scc1 L_k1_par")
    A("s_cmp_lt_u32 s2, 112\ns_cselect_b32 s20, 1, 0\nv_mov_b32 v40, 0\nv_mov_b32 v41, s20\nv_mov_b32 v42, 0\nv_mov_b32 v43, s20\nv_and_b32 v6, 63, v0\nv_lshlrev_b32 v6, 4, v6")
    A(f"s_lshl_b32 s20, s2, 10\ns_add_u32 s20, s20, {EX_OFF}\nbuffer_store_dwordx4 v[40:43], v6, s[12:15], s20 offen{SC}")
    A(f"s_lshl_b32 s20, s2, 7\ns_add_u32 s20, s20, {FL_OFF}\nv_and_b32 v6, 31, v0\nv_lshlrev_b32 v6, 2, v6\nbuffer_store_dword v40, v6, s[12:15], s20 offen{SC}")
    A("s_branch L_k1_fin")
    A("L_k1_par:")
    c_hi = struct.unpack("<f", struct.pack("<f", 1/(2*math.pi)))[0]; c_lo = 1/(2*math.pi) - c_hi
    A(f"s_mov_b32 s3, {hx(f2u(LOG2E))}\ns_mov_b32 s4, {hx(f2u(c_hi))}\ns_mov_b32 s5, {hx(f2u(c_lo))}")
    A(f"s_waitcnt vmcnt({NPF-3+2})")
    def cmul(dr, di, ar, ai, br, bi, tmp):
        A(f"v_mul_f32 v{tmp}, v{ai}, v{bi}\nv_mul_f32 v{tmp+1}, v{ai}, v{br}")
        A(f"v_fma_f32 v{tmp}, v{ar}, v{br}, -v{tmp}\nv_fma_f32 v{di}, v{ar}, v{bi}, v{tmp+1}\nv_mov_b32 v{dr}, v{tmp}")
    lr, li, ld = 58, 59, 60
    la, lb, cr, ci = 16, 17, 18, 19
    dt, zr, zi, hi, lo, mag = range(24, 30)
    A(f"v_lshlrev_b32 v{lr}, 16, v{lr}\nv_lshlrev_b32 v{li}, 16, v{li}\nv_lshlrev_b32 v{ld}, 16, v{ld}")
    A(f"v_mul_f32 v{dt}, s3, v{ld}\nv_exp_f32 v{dt}, v{dt}\ns_nop 0\nv_cvt_pk_bf16_f32 v{dt}, v{dt}, v{dt}\nv_lshlrev_b32 v{dt}, 16, v{dt}")
    A(f"v_mul_f32 v{zr}, v{dt}, v{lr}\nv_mul_f32 v{zi}, v{dt}, v{li}")
    A(f"v_mul_f32 v{mag}, s3, v{zr}\nv_exp_f32 v{mag}, v{mag}")
    A(f"v_mul_f32 v{hi}, s4, v{zi}\nv_fma_f32 v{lo}, v{zi}, s4, -v{hi}\nv_fma_f32 v{lo}, v{zi}, s5, v{lo}")
    A(f"v_rndne_f32 v{la}, v{hi}\nv_sub_f32 v{hi}, v{hi}, v{la}\nv_add_f32 v{hi}, v{hi}, v{lo}")
    A(f"v_cos_f32 v{la}, v{hi}\nv_sin_f32 v{lb}, v{hi}\ns_nop 0\nv_mul_f32 v{la}, v{la}, v{mag}\nv_mul_f32 v{lb}, v{lb}, v{mag}")
    am1, den = dt, zr
    A(f"v_add_f32 v{am1}, -1.0, v{la}\nv_mul_f32 v{den}, v{lr}, v{lr}\nv_fmac_f32 v{den}, v{li}, v{li}\nv_rcp_f32 v{den}, v{den}")
    A(f"v_mul_f32 v{cr}, v{am1}, v{lr}\nv_fmac_f32 v{cr}, v{lb}, v{li}\nv_mul_f32 v{ci}, v{lb}, v{lr}\nv_fma_f32 v{ci}, -v{am1}, v{li}, v{ci}")
    A(f"v_mul_f32 v{cr}, v{cr}, v{den}\nv_mul_f32 v{ci}, v{ci}, v{den}")
    tmp = 30; pr, pi, sr, si = 32, 33, 34, 35
    cmul(20, 21, la, lb, la, lb, tmp)
    for _ in range(3): cmul(20, 21, 20, 21, 20, 21, tmp)
    A(f"v_mov_b32 v22, v20\nv_mov_b32 v23, v21\nv_mov_b32 v{pr}, 1.0\nv_mov_b32 v{pi}, 0")
    for k in range(4):
        A(f"v_and_b32 v{sr}, {4<<k}, v0\nv_cmp_ne_u32 vcc, 0, v{sr}\nv_mov_b32 v{si}, 1.0\ns_nop 0")
        A(f"v_cndmask_b32 v{sr}, v{si}, v22, vcc\nv_cndmask_b32 v{si}, 0, v23, vcc")
        cmul(pr, pi, pr, pi, sr, si, tmp)
        cmul(22, 23, 22, 23, 22, 23, tmp)
    A(f"v_lshlrev_b32 v36, 5, v56\ns_mov_b32 s20, {PT_OFF}\nv_lshrrev_b32 v37, 2, v0\nv_lshlrev_b32 v37, 13, v37\nv_lshl_add_u32 v37, v56, 3, v37\ns_mov_b32 s21, {PW_OFF}")
    A(f"buffer_store_dwordx4 v[16:19], v36, s[12:15], s20 offen{SC}\nbuffer_store_dwordx4 v[20:23], v36, s[12:15], s20 offen offset:16{SC}\nbuffer_store_dwordx2 v[32:33], v37, s[12:15], s21 offen{SC}")
    A("L_k1_fin:")
    if opt.get('prof'):
        for n in range(2, 7): stamp(A, opt, n)
        A("s_and_b32 s40, s40, 3")
        stamp_out(A, opt, 8, 0, 40, 6, 7)
    A("L_k1_end:\ns_endpgm")
    return kernel_desc("ln_kernel", 64, 64, 102 if opt.get("prof") else 48)

class Op:
    def __init__(self, text, kind=None, tag=None, need_vm=None, need_lds=None):
        self.text, self.kind, self.tag, self.need_vm, self.need_lds = text, kind, tag, need_vm, need_lds

def resolve_loop(ops, lgkm_slack=6):
    n = len(ops)
    out = []
    def count_after(i, tag, kind):
        c = 0
        for d in range(1, n + 1):
            o = ops[(i - d) % n]
            if o.kind == kind:
                if o.tag == tag: return c
                c += 1
        raise Exception(f"tag {tag} not found")
    bound = {'vm': 10**6, 'lds': 10**6}
    res = None
    for p in range(2):
        res = []
        for i, o in enumerate(ops):
            w = []
            if o.need_vm is not None:
                if isinstance(o.need_vm, tuple):
                    c = count_after(i, o.need_vm[0], 'vm') + o.need_vm[1] * sum(1 for z in ops if z.kind == 'vm')
                else:
                    c = count_after(i, o.need_vm, 'vm')
                if bound['vm'] > c:
                    assert c <= 63
                    w.append(f"vmcnt({c})"); bound['vm'] = c
            if o.need_lds is not None:
                c = count_after(i, o.need_lds, 'lds')
                if bound['lds'] > c:
                    c = min(c, lgkm_slack)
                    w.append(f"lgkmcnt({c})"); bound['lds'] = c
            if w: res.append("s_waitcnt " + " ".join(w))
            res.append(o.text)
            if o.kind == 'vm': bound['vm'] += 1
            if o.kind == 'lds': bound['lds'] += 1
            if o.kind == 'lgkm0': bound['lds'] = 0
        if p == 0: first = list(res)
    return first

def resolve_seq(prev, ops, lgkm_slack=6):
    allops = prev + ops
    base = len(prev)
    def count_after(i, tag, kind):
        c = 0
        for d in range(i - 1, -1, -1):
            o = allops[d]
            if o.kind == kind:
                if o.tag == tag: return c
                c += 1
        raise Exception(f"tag {tag} not found")
    bound = {'vm': 10**6, 'lds': 10**6}
    res = []
    for i, o in enumerate(ops):
        w = []
        if o.need_vm is not None:
            c = count_after(base + i, o.need_vm, 'vm')
            if bound['vm'] > c:
                assert c <= 63
                w.append(f"vmcnt({c})"); bound['vm'] = c
        if o.need_lds is not None:
            c = count_after(base + i, o.need_lds, 'lds')
            if bound['lds'] > c:
                c = min(c, lgkm_slack)
                w.append(f"lgkmcnt({c})"); bound['lds'] = c
        if w: res.append("s_waitcnt " + " ".join(w))
        res.append(o.text)
        if o.kind == 'vm': bound['vm'] += 1
        if o.kind == 'lds': bound['lds'] += 1
        if o.kind == 'lgkm0': bound['lds'] = 0
    return res

def interleave(mfmas, fillers, per_gap=2):
    out = []; fi = 0
    for m, mf in enumerate(mfmas):
        out.append(mf)
        k = 0
        while fi < len(fillers) and fillers[fi][0] <= m and (k < per_gap or m == len(mfmas) - 1):
            out.append(fillers[fi][1]); fi += 1; k += 1
    assert fi == len(fillers)
    return out

def spread(nm, streams, per_gap=1):
    slots = [[] for _ in range(nm)]
    for st in streams:
        last = 0
        for e, op in st:
            m = max(e, last)
            while m < nm - 1 and len(slots[m]) >= per_gap: m += 1
            slots[m].append(op); last = m
    return slots

STAGE2 = 37888
def mix(trans, plain, ratio=2):
    out = []; trans = list(trans); plain = list(plain)
    while trans or plain:
        if trans: out.append(trans.pop(0))
        for _ in range(ratio if trans else len(plain)):
            if plain: out.append(plain.pop(0))
    return out

import subprocess, re
def align_pass(txt, mode):
    open("_al.s", "w").write(re.sub(r"\.rept \d+", ".rept 1", txt))
    r = subprocess.run(["llvm-mc", "-triple", "amdgcn-amd-amdhsa", "-mcpu=gfx950", "-show-encoding", "_al.s"], capture_output=True, text=True)
    assert r.returncode == 0, r.stderr
    enc = [(l.split(';')[0].strip(), l.count(',', l.index('encoding:')) + 1) for l in r.stdout.splitlines() if 'encoding:' in l]
    lines = txt.split("\n"); out = []; k = 0; off = 0; last4 = None
    for l in lines:
        st = l.strip()
        isins = l.startswith("    ") and not st.startswith(".") and not st.startswith(";")
        if st.startswith(".p2align"): off = 0; last4 = None
        if st.startswith(".rept") or st.startswith(".endr"):
            if off % 8 == 4: out.append("    s_nop 0"); off += 4
            last4 = None
        if not isins:
            out.append(l); continue
        name, size = enc[k]; k += 1
        if size == 8 and off % 8 == 4:
            if last4 is not None:
                idx = last4; parts = out[idx].split(); out[idx] = "    " + parts[0] + "_e64 " + " ".join(parts[1:]); off += 4
            elif mode == 2:
                out.append("    s_nop 0"); off += 4
        out.append(l); off += size
        if size == 4:
            op = name.split()[0]
            if op.endswith("_e32") and not op.startswith(("v_permlane", "v_readfirstlane", "v_cmp", "v_cndmask", "v_accvgpr")): last4 = len(out) - 1
        else: last4 = None
    assert k == len(enc), (k, len(enc))
    return "\n".join(out)

def main(path, opt={}):
    A = Asm()
    head = ["; generated by gen.py",
            "; @launch kernel=ln_kernel grid=(256,1,1) block=(512,1,1) lds=512",
            f"; @launch kernel=up_kernel grid=(256,1,1) block=(256,1,1) lds={4*STAGE2}"]
    if opt.get('k3', True):
        head.append("; @launch kernel=down_kernel grid=(256,1,1) block=(256,1,1) lds=163840")
    from gen2 import gen_k2
    descs = [gen_k1(A, opt), gen_k2(A, opt)]
    if opt.get('k3', True):
        from gen3 import gen_k3
        descs.append(gen_k3(A, opt))
    A("L_text_end:")
    txt = "\n".join(head) + '\n.amdgcn_target "amdgcn-amd-amdhsa--gfx950"\n.text\n' + A.text() + '.section .rodata,"a"\n' + "".join(descs)
    if opt.get('align', 1): txt = align_pass(txt, opt.get('align', 1))
    open(path, "w").write(txt)

if __name__ == "__main__":
    opt = {}
    for a in sys.argv[2:]:
        k, v = a.split("="); opt[k] = int(v)
    main(sys.argv[1], opt)
```

```python
import sys, struct
def f2u(x): return struct.unpack("<I", struct.pack("<f", x))[0]
def hx(x): return f"0x{x & 0xffffffff:08x}"
import math

import os
WSB = int(os.environ.get('WSB', '0'), 0)
XN_OFF = WSB + 0
H_OFF  = WSB + 0x400000
HS_OFF = WSB + 0x1200000
S_OFF  = WSB + 0x1A00000
EX_OFF = WSB + 0x2200000
FL_OFF = WSB + 0x2240000
PT_OFF = WSB + 0x2250000
PW_OFF = WSB + 0x2260000
WS_END = WSB + 0x2280000
WS_SIZE = 0x10000000
KA = dict(x=0, lre=8, lim=16, bre=24, bim=32, cre=40, cim=48, ldt=56, dsk=64, bx=72, wg=80, wu=88, wd=96, out=104, dbg=112, ws=120)

class Asm:
    def __init__(self): self.l = []
    def __call__(self, s):
        for x in s.split("\n"):
            x = x.strip()
            if x: self.l.append(("" if x.endswith(":") else "    ") + x)
    def text(self): return "\n".join(self.l) + "\n"

def kernel_head(A, name):
    A.l.append(f".globl {name}\n.p2align 8\n.type {name},@function\n{name}:")
def kernel_desc(name, vgpr, accum, sgpr=102):
    return f""".p2align 6
.amdhsa_kernel {name}
  .amdhsa_next_free_vgpr {vgpr}
  .amdhsa_next_free_sgpr {sgpr}
  .amdhsa_accum_offset {accum}
  .amdhsa_group_segment_fixed_size 0
  .amdhsa_kernarg_size 128
  .amdhsa_user_sgpr_count 2
  .amdhsa_user_sgpr_kernarg_segment_ptr 1
  .amdhsa_system_sgpr_workgroup_id_x 1
  .amdhsa_float_denorm_mode_32 3
.end_amdhsa_kernel
"""
def srd(A, d, lo, hi, size, add=None):
    if add is None:
        A(f"s_mov_b32 s{d}, s{lo}\ns_mov_b32 s{d+1}, s{hi}")
    else:
        A(f"s_add_u32 s{d}, s{lo}, {add}\ns_addc_u32 s{d+1}, s{hi}, 0")
    A(f"s_mov_b32 s{d+2}, {size}\ns_mov_b32 s{d+3}, 0x00020000")

PROF_OFF = 0x3000000
def stamp(A, opt, n):
    if opt.get('prof'):
        A(f"s_memtime s[{70+4*n}:{71+4*n}]\ns_memrealtime s[{72+4*n}:{73+4*n}]\ns_waitcnt lgkmcnt(0)")
def stamp_out(A, opt, nst, kidx, swv, lo, hi):
    if opt.get('prof'):
        A("s_waitcnt vmcnt(0)")
        stamp(A, opt, nst - 1)
        srd(A, 64, lo, hi, WS_SIZE)
        A(f"s_lshl_b32 s3, s2, 2\ns_add_u32 s3, s3, s{swv}\ns_lshl_b32 s3, s3, 6\ns_add_u32 s3, s3, {PROF_OFF + kidx*0x10000}")
        A("v_mov_b32 v1, 0")
        for n in range(nst):
            A(f"v_mov_b32 v2, s{70+4*n}\nv_mov_b32 v3, s{72+4*n}\nbuffer_store_dwordx2 v[2:3], v1, s[64:67], s3 offen offset:{n*8}\ns_nop 1")
def code_prefetch(A, lab0, lab1, sp, vt, vd, share, uid, nthreads_shift=None):
    A(f"s_getpc_b64 s[{sp}:{sp+1}]\nL_pc{uid}:\ns_add_u32 s{sp}, s{sp}, {lab0}-L_pc{uid}\ns_addc_u32 s{sp+1}, s{sp+1}, 0")
    A(f"v_and_b32 v{vt}, 63, v0\nv_min_u32 v{vt}, {share-1}, v{vt}\ns_lshr_b32 s3, s2, 3\ns_mul_i32 s3, s3, {share}\nv_add_lshl_u32 v{vt}, v{vt}, s3, 7")
    A(f"v_min_u32 v{vt}, {lab1}-{lab0}-4, v{vt}\nglobal_load_dword {vd if isinstance(vd, str) else 'v%d' % vd}, v{vt}, s[{sp}:{sp+1}]")

LOG2E = 1.4426950408889634
def gen_k1(A, opt):
    kernel_head(A, "ln_kernel")
    A("s_cmp_ge_u32 s2, 256\ns_cbranch_scc1 L_k1_end")
    for n in range(7): stamp(A, opt, n)
    A(f"s_load_dwordx2 s[4:5], s[0:1], {KA['x']}\ns_load_dwordx2 s[6:7], s[0:1], {KA['ws']}")
    PFK = opt.get('pfk', 1)
    A(f"s_load_dwordx4 s[24:27], s[0:1], {KA['wg']}\ns_load_dwordx4 s[28:31], s[0:1], {KA['bre']}")
    A(f"s_load_dwordx4 s[32:35], s[0:1], {KA['lre']}\ns_load_dwordx2 s[36:37], s[0:1], {KA['ldt']}")
    A("v_and_b32 v1, 7, v0\nv_lshrrev_b32 v2, 3, v0")
    A("s_lshr_b32 s16, s2, 3")
    A("s_bfe_u32 s17, s2, 0x10002")
    A("s_and_b32 s18, s2, 3")
    A("s_lshl_b32 s19, s16, 6\ns_lshl_b32 s20, s17, 5\ns_add_u32 s19, s19, s20\ns_lshl_b32 s20, s18, 2\ns_add_u32 s19, s19, s20")
    A("v_lshrrev_b32 v3, 2, v1\nv_lshlrev_b32 v3, 4, v3\nv_and_b32 v4, 3, v1\nv_add3_u32 v3, v3, v4, s19")
    A("v_lshlrev_b32 v3, 11, v3\nv_lshl_add_u32 v3, v2, 4, v3")
    A("v_lshrrev_b32 v51, 6, v0\nv_and_b32 v56, 3, v0\ns_lshl_b32 s21, s2, 2\nv_add_u32 v56, s21, v56")
    A("v_readfirstlane_b32 s40, v51\nv_lshlrev_b32 v57, 1, v56")
    A("s_waitcnt lgkmcnt(0)")
    srd(A, 8, 4, 5, 2048*1024*2)
    srd(A, 12, 6, 7, WS_END)
    A("buffer_load_dwordx4 v[8:11], v3, s[8:11], 0 offen\nbuffer_load_dwordx4 v[12:15], v3, s[8:11], 0 offen offset:1024")
    A("global_load_ushort v58, v57, s[32:33]\nglobal_load_ushort v59, v57, s[34:35]\nglobal_load_ushort v60, v57, s[36:37]")
    NPF = 3
    if opt.get('cpf', 1):
        code_prefetch(A, "up_kernel", "L_text_end", 42, 50, 52, opt.get("cpfn", 20), 1); NPF += 1
    if PFK:
        fl = " nt" if opt.get('pfnt') else ""
        R = 4*PFK
        A(f"v_bfe_u32 v50, v0, 3, 5\nv_min_u32 v50, {R-1}, v50\nv_min_u32 v51, 6, v1\ns_mul_i32 s38, s16, {R}\nv_add_u32 v50, s38, v50\ns_movk_i32 s39, 7168\nv_mul_lo_u32 v50, v50, s39")
        A("s_and_b32 s38, s2, 7\ns_mul_i32 s38, s38, 896\nv_lshl_add_u32 v50, v51, 7, v50\nv_add_u32 v50, s38, v50")
        A("s_cmp_lt_u32 s40, 4\ns_cselect_b32 s24, s24, s26\ns_cselect_b32 s25, s25, s27\ns_cselect_b32 s28, s28, s30\ns_cselect_b32 s29, s29, s31")
        A(f"global_load_dword v53, v50, s[24:25]{fl}")
        A(f"s_and_b32 s38, s2, 7\ns_lshl_b32 s38, s38, 18\ns_lshl_b32 s39, s16, 13\ns_add_u32 s38, s38, s39\nv_and_b32 v50, 15, v0\nv_min_u32 v50, {2*PFK-1}, v50\nv_bfe_u32 v51, v0, 4, 2\nv_lshlrev_b32 v51, 11, v51\nv_lshl_add_u32 v50, v50, 7, v51\nv_add_u32 v50, s38, v50")
        A(f"global_load_dword v54, v50, s[28:29]{fl}")
        NPF += 2
    if opt.get('pf3k1'):
        A(f"s_load_dwordx4 s[44:47], s[0:1], {KA['cre']}\ns_load_dwordx2 s[22:23], s[0:1], {KA['wd']}\ns_waitcnt lgkmcnt(0)")
        A("s_cmp_lt_u32 s40, 4\ns_cselect_b32 s44, s44, s46\ns_cselect_b32 s45, s45, s47")
        A("s_lshl_b32 s38, s2, 13\nv_and_b32 v50, 63, v0\nv_lshlrev_b32 v50, 7, v50\nv_add_u32 v50, s38, v50")
        A(f"global_load_dword v54, v50, s[44:45]")
        A("s_mul_i32 s38, s2, 28672\nv_min_u32 v50, 223, v0\nv_lshlrev_b32 v50, 7, v50\nv_add_u32 v50, s38, v50")
        A(f"global_load_dword v55, v50, s[22:23]")
        NPF += 2
    A("s_lshl_b32 s19, s16, 17\ns_lshl_b32 s20, s18, 10\ns_add_u32 s19, s19, s20\ns_lshl_b32 s20, s17, 7\ns_add_u32 s19, s19, s20")
    if XN_OFF: A(f"s_add_u32 s19, s19, {XN_OFF}")
    A("v_lshrrev_b32 v4, 2, v2\nv_lshlrev_b32 v4, 12, v4\nv_and_b32 v5, 3, v2\nv_lshlrev_b32 v5, 8, v5\nv_add3_u32 v4, v4, v5, s19\nv_lshl_add_u32 v4, v1, 4, v4")
    A("v_lshrrev_b32 v5, 6, v0\nv_lshlrev_b32 v5, 2, v5\nv_lshl_add_u32 v5, v1, 5, v5\nv_lshlrev_b32 v6, 5, v1")
    A(f"s_waitcnt vmcnt({NPF})")
    stamp(A, opt, 1)
    for r in range(8):
        A(f"v_lshlrev_b32 v{16+2*r}, 16, v{8+r}\nv_and_b32 v{17+2*r}, 0xffff0000, v{8+r}")
    def reduce(src, ldsoff):
        A(f"s_nop 1\nv_add_f32_dpp v{src}, v{src}, v{src} row_ror:8 row_mask:0xf bank_mask:0xf")
        A(f"v_mov_b32 v33, v{src}\ns_nop 1\nv_permlane16_swap_b32 v{src}, v33\ns_nop 1\nv_add_f32 v{src}, v{src}, v33")
        A(f"v_mov_b32 v33, v{src}\ns_nop 1\nv_permlane32_swap_b32 v{src}, v33\ns_nop 1\nv_add_f32 v{src}, v{src}, v33")
        A(f"ds_write_b32 v5, v{src} offset:{ldsoff}")
        A("s_waitcnt lgkmcnt(0)\ns_barrier")
        A(f"ds_read_b128 v[36:39], v6 offset:{ldsoff}\nds_read_b128 v[40:43], v6 offset:{ldsoff+16}\ns_waitcnt lgkmcnt(0)")
        A("v_pk_add_f32 v[36:37], v[36:37], v[38:39]\nv_pk_add_f32 v[40:41], v[40:41], v[42:43]\nv_pk_add_f32 v[36:37], v[36:37], v[40:41]\nv_add_f32 v32, v36, v37")
    A("v_pk_add_f32 v[34:35], v[16:17], v[18:19]\nv_pk_add_f32 v[36:37], v[20:21], v[22:23]\nv_pk_add_f32 v[38:39], v[24:25], v[26:27]\nv_pk_add_f32 v[40:41], v[28:29], v[30:31]")
    A("v_pk_add_f32 v[34:35], v[34:35], v[36:37]\nv_pk_add_f32 v[38:39], v[38:39], v[40:41]\nv_pk_add_f32 v[34:35], v[34:35], v[38:39]\nv_add_f32 v34, v34, v35")
    reduce(34, 0)
    A(f"v_mul_f32 v44, {hx(f2u(-1.0/1024))}, v32")
    for r in range(8):
        t = 36 + (r & 1)*2
        A(f"v_pk_add_f32 v[{t}:{t+1}], v[{16+2*r}:{17+2*r}], v[44:45] op_sel_hi:[1,0]")
        d = 34 if (r & 1) == 0 else 40
        if r < 2: A(f"v_pk_mul_f32 v[{d}:{d+1}], v[{t}:{t+1}], v[{t}:{t+1}]")
        else: A(f"v_pk_fma_f32 v[{d}:{d+1}], v[{t}:{t+1}], v[{t}:{t+1}], v[{d}:{d+1}]")
    A("v_pk_add_f32 v[34:35], v[34:35], v[40:41]\nv_add_f32 v34, v34, v35")
    reduce(34, 256)
    A(f"v_mul_f32 v45, {hx(f2u(1.0/1024))}, v32")
    A("v_cvt_pk_bf16_f32 v46, v44, v45")
    A("v_lshlrev_b32 v44, 16, v46\nv_and_b32 v46, 0xffff0000, v46")
    A(f"v_add_f32 v46, {hx(f2u(1e-5))}, v46\nv_cvt_pk_bf16_f32 v46, v46, v46\nv_lshlrev_b32 v46, 16, v46")
    A("v_sqrt_f32 v46, v46\ns_nop 0\nv_cvt_pk_bf16_f32 v46, v46, v46\nv_lshlrev_b32 v46, 16, v46\nv_rcp_f32 v46, v46")
    for r in range(8): A(f"v_pk_add_f32 v[{16+2*r}:{17+2*r}], v[{16+2*r}:{17+2*r}], v[44:45] op_sel_hi:[1,0]")
    for r in range(8): A(f"v_cvt_pk_bf16_f32 v{8+r}, v{16+2*r}, v{17+2*r}")
    for r in range(8): A(f"v_lshlrev_b32 v{16+2*r}, 16, v{8+r}\nv_and_b32 v{17+2*r}, 0xffff0000, v{8+r}")
    for r in range(8): A(f"v_pk_mul_f32 v[{16+2*r}:{17+2*r}], v[{16+2*r}:{17+2*r}], v[46:47] op_sel_hi:[1,0]")
    for r in range(8): A(f"v_cvt_pk_bf16_f32 v{8+r}, v{16+2*r}, v{17+2*r}")
    A("s_mov_b32 s20, 0x10000")
    SC = " sc1" if opt.get('sc1', 1) else ""
    A(f"buffer_store_dwordx4 v[8:11], v4, s[12:15], 0 offen{SC}\nbuffer_store_dwordx4 v[12:15], v4, s[12:15], s20 offen{SC}")
    A("s_cmp_gt_u32 s40, 1\ns_cbranch_scc1 L_k1_fin")
    A("s_cmp_eq_u32 s40, 0\ns_cbranch_scc1 L_k1_par")
    A("s_cmp_lt_u32 s2, 112\ns_cselect_b32 s20, 1, 0\nv_mov_b32 v40, 0\nv_mov_b32 v41, s20\nv_mov_b32 v42, 0\nv_mov_b32 v43, s20\nv_and_b32 v6, 63, v0\nv_lshlrev_b32 v6, 4, v6")
    A(f"s_lshl_b32 s20, s2, 10\ns_add_u32 s20, s20, {EX_OFF}\nbuffer_store_dwordx4 v[40:43], v6, s[12:15], s20 offen{SC}")
    A(f"s_lshl_b32 s20, s2, 7\ns_add_u32 s20, s20, {FL_OFF}\nv_and_b32 v6, 31, v0\nv_lshlrev_b32 v6, 2, v6\nbuffer_store_dword v40, v6, s[12:15], s20 offen{SC}")
    A("s_branch L_k1_fin")
    A("L_k1_par:")
    c_hi = struct.unpack("<f", struct.pack("<f", 1/(2*math.pi)))[0]; c_lo = 1/(2*math.pi) - c_hi
    A(f"s_mov_b32 s3, {hx(f2u(LOG2E))}\ns_mov_b32 s4, {hx(f2u(c_hi))}\ns_mov_b32 s5, {hx(f2u(c_lo))}")
    A(f"s_waitcnt vmcnt({NPF-3+2})")
    def cmul(dr, di, ar, ai, br, bi, tmp):
        A(f"v_mul_f32 v{tmp}, v{ai}, v{bi}\nv_mul_f32 v{tmp+1}, v{ai}, v{br}")
        A(f"v_fma_f32 v{tmp}, v{ar}, v{br}, -v{tmp}\nv_fma_f32 v{di}, v{ar}, v{bi}, v{tmp+1}\nv_mov_b32 v{dr}, v{tmp}")
    lr, li, ld = 58, 59, 60
    la, lb, cr, ci = 16, 17, 18, 19
    dt, zr, zi, hi, lo, mag = range(24, 30)
    A(f"v_lshlrev_b32 v{lr}, 16, v{lr}\nv_lshlrev_b32 v{li}, 16, v{li}\nv_lshlrev_b32 v{ld}, 16, v{ld}")
    A(f"v_mul_f32 v{dt}, s3, v{ld}\nv_exp_f32 v{dt}, v{dt}\ns_nop 0\nv_cvt_pk_bf16_f32 v{dt}, v{dt}, v{dt}\nv_lshlrev_b32 v{dt}, 16, v{dt}")
    A(f"v_mul_f32 v{zr}, v{dt}, v{lr}\nv_mul_f32 v{zi}, v{dt}, v{li}")
    A(f"v_mul_f32 v{mag}, s3, v{zr}\nv_exp_f32 v{mag}, v{mag}")
    A(f"v_mul_f32 v{hi}, s4, v{zi}\nv_fma_f32 v{lo}, v{zi}, s4, -v{hi}\nv_fma_f32 v{lo}, v{zi}, s5, v{lo}")
    A(f"v_rndne_f32 v{la}, v{hi}\nv_sub_f32 v{hi}, v{hi}, v{la}\nv_add_f32 v{hi}, v{hi}, v{lo}")
    A(f"v_cos_f32 v{la}, v{hi}\nv_sin_f32 v{lb}, v{hi}\ns_nop 0\nv_mul_f32 v{la}, v{la}, v{mag}\nv_mul_f32 v{lb}, v{lb}, v{mag}")
    am1, den = dt, zr
    A(f"v_add_f32 v{am1}, -1.0, v{la}\nv_mul_f32 v{den}, v{lr}, v{lr}\nv_fmac_f32 v{den}, v{li}, v{li}\nv_rcp_f32 v{den}, v{den}")
    A(f"v_mul_f32 v{cr}, v{am1}, v{lr}\nv_fmac_f32 v{cr}, v{lb}, v{li}\nv_mul_f32 v{ci}, v{lb}, v{lr}\nv_fma_f32 v{ci}, -v{am1}, v{li}, v{ci}")
    A(f"v_mul_f32 v{cr}, v{cr}, v{den}\nv_mul_f32 v{ci}, v{ci}, v{den}")
    tmp = 30; pr, pi, sr, si = 32, 33, 34, 35
    cmul(20, 21, la, lb, la, lb, tmp)
    for _ in range(3): cmul(20, 21, 20, 21, 20, 21, tmp)
    A(f"v_mov_b32 v22, v20\nv_mov_b32 v23, v21\nv_mov_b32 v{pr}, 1.0\nv_mov_b32 v{pi}, 0")
    for k in range(4):
        A(f"v_and_b32 v{sr}, {4<<k}, v0\nv_cmp_ne_u32 vcc, 0, v{sr}\nv_mov_b32 v{si}, 1.0\ns_nop 0")
        A(f"v_cndmask_b32 v{sr}, v{si}, v22, vcc\nv_cndmask_b32 v{si}, 0, v23, vcc")
        cmul(pr, pi, pr, pi, sr, si, tmp)
        cmul(22, 23, 22, 23, 22, 23, tmp)
    A(f"v_lshlrev_b32 v36, 5, v56\ns_mov_b32 s20, {PT_OFF}\nv_lshrrev_b32 v37, 2, v0\nv_lshlrev_b32 v37, 13, v37\nv_lshl_add_u32 v37, v56, 3, v37\ns_mov_b32 s21, {PW_OFF}")
    A(f"buffer_store_dwordx4 v[16:19], v36, s[12:15], s20 offen{SC}\nbuffer_store_dwordx4 v[20:23], v36, s[12:15], s20 offen offset:16{SC}\nbuffer_store_dwordx2 v[32:33], v37, s[12:15], s21 offen{SC}")
    A("L_k1_fin:")
    if opt.get('prof'):
        for n in range(2, 7): stamp(A, opt, n)
        A("s_and_b32 s40, s40, 3")
        stamp_out(A, opt, 8, 0, 40, 6, 7)
    A("L_k1_end:\ns_endpgm")
    return kernel_desc("ln_kernel", 64, 64, 102 if opt.get("prof") else 48)

class Op:
    def __init__(self, text, kind=None, tag=None, need_vm=None, need_lds=None):
        self.text, self.kind, self.tag, self.need_vm, self.need_lds = text, kind, tag, need_vm, need_lds

def resolve_loop(ops, lgkm_slack=6):
    n = len(ops)
    out = []
    def count_after(i, tag, kind):
        c = 0
        for d in range(1, n + 1):
            o = ops[(i - d) % n]
            if o.kind == kind:
                if o.tag == tag: return c
                c += 1
        raise Exception(f"tag {tag} not found")
    bound = {'vm': 10**6, 'lds': 10**6}
    res = None
    for p in range(2):
        res = []
        for i, o in enumerate(ops):
            w = []
            if o.need_vm is not None:
                if isinstance(o.need_vm, tuple):
                    c = count_after(i, o.need_vm[0], 'vm') + o.need_vm[1] * sum(1 for z in ops if z.kind == 'vm')
                else:
                    c = count_after(i, o.need_vm, 'vm')
                if bound['vm'] > c:
                    assert c <= 63
                    w.append(f"vmcnt({c})"); bound['vm'] = c
            if o.need_lds is not None:
                c = count_after(i, o.need_lds, 'lds')
                if bound['lds'] > c:
                    c = min(c, lgkm_slack)
                    w.append(f"lgkmcnt({c})"); bound['lds'] = c
            if w: res.append("s_waitcnt " + " ".join(w))
            res.append(o.text)
            if o.kind == 'vm': bound['vm'] += 1
            if o.kind == 'lds': bound['lds'] += 1
            if o.kind == 'lgkm0': bound['lds'] = 0
        if p == 0: first = list(res)
    return first

def resolve_seq(prev, ops, lgkm_slack=6):
    allops = prev + ops
    base = len(prev)
    def count_after(i, tag, kind):
        c = 0
        for d in range(i - 1, -1, -1):
            o = allops[d]
            if o.kind == kind:
                if o.tag == tag: return c
                c += 1
        raise Exception(f"tag {tag} not found")
    bound = {'vm': 10**6, 'lds': 10**6}
    res = []
    for i, o in enumerate(ops):
        w = []
        if o.need_vm is not None:
            c = count_after(base + i, o.need_vm, 'vm')
            if bound['vm'] > c:
                assert c <= 63
                w.append(f"vmcnt({c})"); bound['vm'] = c
        if o.need_lds is not None:
            c = count_after(base + i, o.need_lds, 'lds')
            if bound['lds'] > c:
                c = min(c, lgkm_slack)
                w.append(f"lgkmcnt({c})"); bound['lds'] = c
        if w: res.append("s_waitcnt " + " ".join(w))
        res.append(o.text)
        if o.kind == 'vm': bound['vm'] += 1
        if o.kind == 'lds': bound['lds'] += 1
        if o.kind == 'lgkm0': bound['lds'] = 0
    return res

def interleave(mfmas, fillers, per_gap=2):
    out = []; fi = 0
    for m, mf in enumerate(mfmas):
        out.append(mf)
        k = 0
        while fi < len(fillers) and fillers[fi][0] <= m and (k < per_gap or m == len(mfmas) - 1):
            out.append(fillers[fi][1]); fi += 1; k += 1
    assert fi == len(fillers)
    return out

def spread(nm, streams, per_gap=1):
    slots = [[] for _ in range(nm)]
    for st in streams:
        last = 0
        for e, op in st:
            m = max(e, last)
            while m < nm - 1 and len(slots[m]) >= per_gap: m += 1
            slots[m].append(op); last = m
    return slots

STAGE2 = 37888
def mix(trans, plain, ratio=2):
    out = []; trans = list(trans); plain = list(plain)
    while trans or plain:
        if trans: out.append(trans.pop(0))
        for _ in range(ratio if trans else len(plain)):
            if plain: out.append(plain.pop(0))
    return out

import subprocess, re
def align_pass(txt, mode):
    open("_al.s", "w").write(re.sub(r"\.rept \d+", ".rept 1", txt))
    r = subprocess.run(["llvm-mc", "-triple", "amdgcn-amd-amdhsa", "-mcpu=gfx950", "-show-encoding", "_al.s"], capture_output=True, text=True)
    assert r.returncode == 0, r.stderr
    enc = [(l.split(';')[0].strip(), l.count(',', l.index('encoding:')) + 1) for l in r.stdout.splitlines() if 'encoding:' in l]
    lines = txt.split("\n"); out = []; k = 0; off = 0; last4 = None
    for l in lines:
        st = l.strip()
        isins = l.startswith("    ") and not st.startswith(".") and not st.startswith(";")
        if st.startswith(".p2align"): off = 0; last4 = None
        if st.startswith(".rept") or st.startswith(".endr"):
            if off % 8 == 4: out.append("    s_nop 0"); off += 4
            last4 = None
        if not isins:
            out.append(l); continue
        name, size = enc[k]; k += 1
        if size == 8 and off % 8 == 4:
            if last4 is not None:
                idx = last4; parts = out[idx].split(); out[idx] = "    " + parts[0] + "_e64 " + " ".join(parts[1:]); off += 4
            elif mode == 2:
                out.append("    s_nop 0"); off += 4
        out.append(l); off += size
        if size == 4:
            op = name.split()[0]
            if op.endswith("_e32") and not op.startswith(("v_permlane", "v_readfirstlane", "v_cmp", "v_cndmask", "v_accvgpr")): last4 = len(out) - 1
        else: last4 = None
    assert k == len(enc), (k, len(enc))
    return "\n".join(out)

def main(path, opt={}):
    A = Asm()
    head = ["; generated by gen.py",
            "; @launch kernel=ln_kernel grid=(256,1,1) block=(512,1,1) lds=512",
            f"; @launch kernel=up_kernel grid=(256,1,1) block=(256,1,1) lds={4*STAGE2}"]
    if opt.get('k3', True):
        head.append("; @launch kernel=down_kernel grid=(256,1,1) block=(256,1,1) lds=163840")
    from gen2 import gen_k2
    descs = [gen_k1(A, opt), gen_k2(A, opt)]
    if opt.get('k3', True):
        from gen3 import gen_k3
        descs.append(gen_k3(A, opt))
    A("L_text_end:")
    txt = "\n".join(head) + '\n.amdgcn_target "amdgcn-amd-amdhsa--gfx950"\n.text\n' + A.text() + '.section .rodata,"a"\n' + "".join(descs)
    if opt.get('align', 1): txt = align_pass(txt, opt.get('align', 1))
    open(path, "w").write(txt)

if __name__ == "__main__":
    opt = {}
    for a in sys.argv[2:]:
        k, v = a.split("="); opt[k] = int(v)
    main(sys.argv[1], opt)
```

```python
import sys, gen
def off(k, wg, n): return gen.PROF_OFF + k*0x10000 + wg*256 + n*8 + 4
def mk(base, name, a, b, mult):
    s = open(base).read()
    code = f'''.globl spin_kernel
.p2align 8
.type spin_kernel,@function
spin_kernel:
    s_cmp_ge_u32 s2, 1
    s_cbranch_scc1 L_spin_end
    s_load_dwordx2 s[4:5], s[0:1], 120
    s_waitcnt lgkmcnt(0)
    s_add_u32 s6, s4, {a}
    s_addc_u32 s7, s5, 0
    s_add_u32 s8, s4, {b}
    s_addc_u32 s9, s5, 0
    s_load_dword s10, s[6:7], 0
    s_load_dword s11, s[8:9], 0
    s_memrealtime s[12:13]
    s_waitcnt lgkmcnt(0)
    s_sub_u32 s10, s11, s10
    s_min_u32 s10, s10, 10000
    s_mul_i32 s10, s10, {mult}
L_spin:
    s_memrealtime s[14:15]
    s_waitcnt lgkmcnt(0)
    s_sub_u32 s14, s14, s12
    s_cmp_lt_u32 s14, s10
    s_cbranch_scc1 L_spin
L_spin_end:
    s_endpgm
'''
    desc = gen.kernel_desc("spin_kernel", 8, 8, 32)
    s = s.replace('.section .rodata,"a"\n', code + '.section .rodata,"a"\n' + desc)
    lines = s.split("\n")
    i = max(j for j, l in enumerate(lines[:10]) if "@launch" in l)
    lines.insert(i+1, "; @launch kernel=spin_kernel grid=(1,1,1) block=(64,1,1) lds=0")
    open(name, "w").write("\n".join(lines))
if __name__ == "__main__":
    base = sys.argv[1]; W = 200
    iv = {"0": (off(1,W,0), off(1,W,0)), "a": (off(1,W,0), off(1,W,2)), "c": (off(1,W,2), off(1,W,3)),
          "d": (off(1,W,3), off(2,W,2)), "f": (off(2,W,2), off(2,W,3)), "w": (off(1,W,0), off(2,W,7))}
    for k, (a, b) in iv.items(): mk(base, f"dg_{k}.s", a, b, 4)
```

```python
from gen import *

def gen_k3(A, opt):
    kernel_head(A, "down_kernel")
    ACC = 128
    def acc(j, i): return ACC + (j*4+i)*4
    BF = 0; AB = 32
    NB = 8
    AD = opt.get('ad3', 3)
    OSC = ["", " sc1", " nt", " sc0 sc1", " sc1 nt"][opt.get('osc', 2)]
    ROT = opt.get('rot3', 1)
    vD = list(range(1, 9)); vA = 9; vR = list(range(10, 18)); L = 18
    t0, t1, t2, t3 = 19, 20, 21, 22
    vXL, vXD, vXR, vFL = 23, 24, 25, 26
    SR = 64
    XLDS = 131072
    sB, sA, sWS, sO = 8, 12, 16, 20
    sRB, sCB, sWV, sKH, sMH, sTB, sTile = 24, 25, 26, 27, 28, 29, 30
    sBoff, sAoff, sM, sTrip, sRole = 31, 32, 33, 34, 35
    sAb, sBb = 36, 37
    sPA = [60, 61, 62, 63]; sPB = [4, 5, 6, 7]
    sFL, sS, sXo = 58, 59, 54
    A("s_cmp_ge_u32 s2, 256\ns_cbranch_scc1 L_k3_end")
    stamp(A, opt, 0)
    A(f"s_load_dwordx4 s[40:43], s[0:1], {KA['cre']}")
    A(f"s_load_dwordx4 s[44:47], s[0:1], {KA['wd']}")
    A(f"s_load_dwordx2 s[48:49], s[0:1], {KA['ws']}")
    A(f"s_load_dwordx2 s[50:51], s[0:1], {KA['x']}")
    A(f"s_load_dwordx2 s[52:53], s[0:1], {KA['dsk']}")
    A(f"v_lshrrev_b32 v{t0}, 6, v0\nv_and_b32 v{L}, 63, v0")
    A(f"s_lshr_b32 s{sRole}, s2, 7")
    A(f"v_readfirstlane_b32 s{sWV}, v{t0}")
    A(f"s_bfe_u32 s3, s2, 0x20001\ns_lshl_b32 s3, s3, 2\ns_bfe_u32 s38, s2, 0x20005\ns_add_u32 s{sRB}, s3, s38")
    A(f"s_and_b32 s3, s2, 1\ns_lshl_b32 s3, s3, 2\ns_bfe_u32 s39, s2, 0x20003\ns_add_u32 s{sCB}, s3, s39")
    if opt.get('x_same'): A(f"s_mov_b32 s{sRB}, 0\ns_mov_b32 s{sCB}, 0")
    if ROT: A("s_add_u32 s38, s38, s39\ns_and_b32 s38, s38, 3")
    else: A("s_mov_b32 s38, 0")
    A(f"s_lshl_b32 s{sTile}, s{sRB}, 3\ns_add_u32 s{sTile}, s{sTile}, s{sCB}")
    A(f"s_lshr_b32 s{sKH}, s{sWV}, 1\ns_and_b32 s{sMH}, s{sWV}, 1\ns_lshl_b32 s{sTB}, s{sRB}, 1\ns_add_u32 s{sTB}, s{sTB}, s{sMH}")
    A(f"s_lshl_b32 s{sM}, s{sKH}, 16\ns_lshl_b32 s3, s{sMH}, 13\ns_add_u32 s{sM}, s{sM}, s3")
    A(f"v_lshlrev_b32 v{vA}, 4, v{L}")
    for n in range(4): A(f"s_xor_b32 s{sPB[n]}, s38, {n}\ns_lshl_b32 s{sPA[n]}, s{sPB[n]}, 13")
    A(f"s_lshl_b32 s{sFL}, s{sTile}, 7\ns_add_u32 s{sFL}, s{sFL}, {FL_OFF}")
    A(f"s_lshl_b32 s{sS}, s{sTile}, 16\ns_lshl_b32 s3, s{sWV}, 14\ns_add_u32 s{sS}, s{sS}, s3\ns_add_u32 s{sS}, s{sS}, {S_OFF}")
    A(f"s_cmp_eq_u32 s{sRole}, 0\ns_cbranch_scc1 L_k3_ssm")

    def role(ffn):
        nm = "ffn" if ffn else "ssm"
        NTRIP = opt.get('x_ntf', 7) if ffn else opt.get('x_nts', 4)
        BSZ = 3584*1024*2 if ffn else 1024*1024*2
        BSH = 17 if ffn else 7
        ASZ = (H_OFF + 2048*3584*2) if ffn else (HS_OFF + 2048*2048*2)
        for n in range(4): A(f"s_lshl_b32 s{sPB[n]}, s{sPB[n]}, {BSH}")
        if ffn:
            A(f"s_lshl_b32 s3, s{sMH}, 16\ns_lshl_b32 s39, s{sCB}, 8\ns_add_u32 s3, s3, s39")
            A(f"v_lshrrev_b32 v{t0}, 4, v{L}\nv_bfe_u32 v{t1}, v{L}, 1, 3\nv_xor_b32 v{t1}, v{t1}, v{t0}\nv_and_b32 v{t2}, 1, v{L}")
            A(f"v_lshlrev_b32 v{t2}, 4, v{t2}\nv_lshl_add_u32 v{t2}, v{t0}, 11, v{t2}\nv_add_u32 v{t2}, s3, v{t2}")
            A(f"v_lshl_add_u32 v{t0}, v{t1}, 5, v{t2}\nv_xor_b32 v{t1}, 4, v{t1}\nv_lshl_add_u32 v{t1}, v{t1}, 5, v{t2}")
            for n in range(8):
                A(f"v_add_u32 v{vD[n]}, {n*8192 - (n&3)*1024}, v{t1 if (n>>1)&1 else t0}")
            A(f"s_mul_i32 s{sBb}, s{sKH}, {1792*2048}")
            A(f"s_mul_i32 s{sAb}, s{sTB}, 112\ns_mul_i32 s3, s{sKH}, 56\ns_add_u32 s{sAb}, s{sAb}, s3\ns_lshl_b32 s{sAb}, s{sAb}, 12\ns_add_u32 s{sAb}, s{sAb}, {H_OFF}")
        else:
            A(f"s_lshl_b32 s3, s{sCB}, 18\ns_lshl_b32 s39, s{sMH}, 17\ns_add_u32 s3, s3, s39")
            A(f"v_lshrrev_b32 v{t0}, 4, v{L}\nv_and_b32 v{t1}, 7, v{L}\nv_xor_b32 v{t1}, v{t1}, v{t0}\nv_lshrrev_b32 v{t2}, 3, v{L}")
            A(f"v_lshlrev_b32 v{t2}, 11, v{t2}\nv_add_u32 v{t2}, s3, v{t2}")
            A(f"v_lshl_add_u32 v{t0}, v{t1}, 4, v{t2}\nv_xor_b32 v{t1}, 4, v{t1}\nv_lshl_add_u32 v{t1}, v{t1}, 4, v{t2}")
            for n in range(8):
                A(f"v_add_u32 v{vD[n]}, {n*16384 - (n&3)*1024}, v{t1 if n&1 else t0}")
            A(f"s_mov_b32 s{sBb}, 0")
            A(f"s_lshl_b32 s{sAb}, s{sTB}, 1\ns_add_u32 s{sAb}, s{sAb}, s{sKH}\ns_lshl_b32 s{sAb}, s{sAb}, 17\ns_add_u32 s{sAb}, s{sAb}, {HS_OFF}")
        A("s_waitcnt lgkmcnt(0)")
        if ffn: srd(A, sB, 44, 45, BSZ)
        else: A(f"s_cmp_eq_u32 s{sKH}, 0\ns_cselect_b32 s{sB}, s40, s42\ns_cselect_b32 s{sB+1}, s41, s43\ns_mov_b32 s{sB+2}, {BSZ}\ns_mov_b32 s{sB+3}, 0x00020000")
        srd(A, sA, 48, 49, ASZ)

        def dma_ops(st, part):
            o = []
            if part == 0: o.append(Op(f"s_add_u32 s{sBoff}, s{sBb}, s{sPB[st]}"))
            o.append(Op(f"s_add_u32 m0, s{sM}, {st*16384 + part*4096}"))
            for n in range(4*part, 4*part+4):
                o.append(Op(f"buffer_load_dwordx4 v{vD[n]}, s[{sB}:{sB+3}], s{sBoff} offen offset:{(n&3)*1024} lds", 'vm', f"d{st}"))
            if part == 1 and st == 3: o.append(Op(f"s_add_u32 s{sBb}, s{sBb}, {4 << BSH}"))
            return o
        def a_ops(ts):
            ts %= 8
            o = []
            if ts % 2 == 0: o.append(Op(f"s_add_u32 s{sAoff}, s{sAb}, s{sPA[ts >> 1]}"))
            else: o.append(Op(f"s_add_u32 s{sAoff}, s{sAoff}, 4096"))
            for i in range(4):
                r = AB + ts*16 + i*4
                o.append(Op(f"buffer_load_dwordx4 a[{r}:{r+3}], v{vA}, s[{sA}:{sA+3}], s{sAoff} offen offset:{i*1024}", 'vm', f"x{ts}"))
            if ts == 7: o.append(Op(f"s_add_u32 s{sAb}, s{sAb}, 32768"))
            return o
        def step_vm(t, last=False):
            o = []
            if not (last and t + AD >= 8): o += a_ops(t + AD)
            sg = (t + 5) >> 1
            if not (last and sg >= 4): o += dma_ops(sg % 4, (t + 1) % 2)
            return o
        def emit(ops):
            prev = False
            for o in ops:
                if prev and o.text.endswith('lds'): A("s_nop 0")
                A(o.text); prev = ' m0,' in o.text
        pro = []
        for t in range(-max(5, AD), 0):
            if t + AD >= 0: pro += a_ops(t + AD)
            if t >= -5: pro += dma_ops((t + 5) >> 1, (t + 1) % 2)
        emit(pro)
        vms = [o for o in pro if o.kind == 'vm']
        lastneed = max(i for i, o in enumerate(vms) if o.tag in ('x0', 'd0'))
        if ffn:
            A(f"v_bfe_u32 v{t0}, v{L}, 2, 2\nv_lshrrev_b32 v{t1}, 4, v{L}\nv_lshl_add_u32 v{t2}, v{t1}, 3, v{t0}\nv_lshlrev_b32 v{t2}, 8, v{t2}")
            A(f"v_and_b32 v{t3}, 3, v{L}\nv_lshl_add_u32 v{t2}, v{t3}, 3, v{t2}\ns_lshl_b32 s3, s{sKH}, 16\nv_add_u32 v{t2}, s3, v{t2}")
            A(f"v_bfe_u32 v{t0}, v{L}, 2, 3\ns_lshl_b32 s3, s{sKH}, 2\nv_xor_b32 v{t0}, s3, v{t0}")
            for j in range(8):
                A(f"v_xor_b32 v{t1}, {j}, v{t0}\nv_lshl_add_u32 v{vR[j]}, v{t1}, 5, v{t2}")
        else:
            A(f"v_and_b32 v{t0}, 15, v{L}\nv_lshrrev_b32 v{t1}, 1, v{t0}\nv_lshrrev_b32 v{t2}, 4, v{L}\nv_xor_b32 v{t1}, v{t1}, v{t2}\nv_lshlrev_b32 v{t1}, 4, v{t1}")
            A(f"v_lshl_add_u32 v{t0}, v{t0}, 7, v{t1}\ns_mul_i32 s3, s{sKH}, {65536+8192}\nv_add_u32 v{vR[0]}, s3, v{t0}\nv_xor_b32 v{vR[1]}, 64, v{vR[0]}")
            A(f"v_xor_b32 v{vR[2]}, 8192, v{vR[0]}\nv_xor_b32 v{vR[3]}, 8192, v{vR[1]}")
        for r in range(128, 256): A(f"v_mov_b32 v{r}, 0")
        srd(A, sWS, 48, 49, WS_END)
        A(f"s_lshl_b32 s39, s{sWV}, 13\ns_add_u32 s39, s39, {XLDS}")
        if ffn:
            srd(A, sO, 50, 51, 2048*1024*2)
            A(f"v_lshrrev_b32 v{t0}, 3, v{L}\nv_and_b32 v{t1}, 7, v{L}\nv_lshlrev_b32 v{t0}, 11, v{t0}\nv_lshl_add_u32 v{vXD}, v{t1}, 4, v{t0}")
            A(f"s_lshl_b32 s{sXo}, s{sTB}, 17\ns_lshl_b32 s3, s{sCB}, 8\ns_add_u32 s{sXo}, s{sXo}, s3\ns_lshl_b32 s3, s{sKH}, 7\ns_add_u32 s{sXo}, s{sXo}, s3")
            A(f"v_lshrrev_b32 v{t0}, 4, v{L}\nv_bfe_u32 v{t1}, v{L}, 2, 2\nv_lshl_add_u32 v{t0}, v{t0}, 4, v{t1}\nv_lshlrev_b32 v{t0}, 7, v{t0}")
            A(f"v_and_b32 v{t1}, 3, v{L}\nv_lshl_add_u32 v{t0}, v{t1}, 3, v{t0}\nv_add_u32 v{vXR}, s39, v{t0}")
            A(f"v_lshrrev_b32 v{t0}, 4, v{L}\nv_lshlrev_b32 v{t0}, 16, v{t0}\nv_and_b32 v{t1}, 15, v{L}\nv_lshl_add_u32 v{vXL}, v{t1}, 2, v{t0}")
            A(f"v_mov_b32 v{vFL}, 0\nv_mov_b32 v{vFL+1}, 0")
            xops = []
            for n in range(8):
                xops.append(Op(f"s_add_u32 m0, s39, {n*1024}"))
                xops.append(Op(f"s_add_u32 s3, s{sXo}, {n*16384}"))
                xops.append(Op(f"buffer_load_dwordx4 v{vXD}, s[{sO}:{sO+3}], s3 offen lds", 'vm', 'e'))
            sops = []
            for k in range(16):
                if k % 4 == 0 and k: sops.append(Op(f"s_add_u32 s{sS}, s{sS}, 4096"))
                sops.append(Op(f"buffer_load_dwordx4 v[{SR+k*4}:{SR+k*4+3}], v{vA}, s[{sWS}:{sWS+3}], s{sS} offen offset:{(k&3)*1024} sc1", 'vm', 'e'))
            extra = xops + sops
        else:
            A(f"s_lshl_b32 s{sXo}, s{sTB}, 5\ns_lshl_b32 s3, s{sCB}, 2\ns_add_u32 s{sXo}, s{sXo}, s3\ns_lshl_b32 s3, s{sKH}, 1\ns_add_u32 s{sXo}, s{sXo}, s3\ns_lshl_b32 s{sXo}, s{sXo}, 12")
            if XN_OFF: A(f"s_add_u32 s{sXo}, s{sXo}, {XN_OFF}")
            A(f"v_bfe_u32 v{t0}, v{L}, 1, 1\nv_lshlrev_b32 v{t0}, 8, v{t0}\nv_lshrrev_b32 v{t1}, 2, v{L}\nv_lshl_add_u32 v{t0}, v{t1}, 4, v{t0}")
            A(f"v_and_b32 v{t1}, 1, v{L}\nv_lshl_add_u32 v{t0}, v{t1}, 3, v{t0}\nv_add_u32 v{vXR}, s39, v{t0}")
            A(f"s_lshl_b32 s3, s{sCB}, 8\ns_lshl_b32 s38, s{sKH}, 7\ns_add_u32 s3, s3, s38\nv_and_b32 v{t0}, 15, v{L}\nv_lshl_add_u32 v{vXL}, v{t0}, 1, s3")
            extra = []
            for h in range(2):
                extra.append(Op(f"s_add_u32 m0, s39, {h*4096}"))
                if h: extra.append(Op(f"s_add_u32 s{sXo}, s{sXo}, 4096"))
                for n in range(4):
                    extra.append(Op(f"buffer_load_dwordx4 v{vA}, s[{sWS}:{sWS+3}], s{sXo} offen offset:{n*1024} lds", 'vm', 'e'))
            for m in range(4):
                extra.append(Op(f"global_load_ushort v{28+m}, v{vXL}, s[52:53] offset:{m*32}", 'vm', 'e'))
        def frag_reads(j, st, hk):
            d = BF + j*4
            if ffn:
                return [Op(f"ds_read_b64_tr_b16 a[{d+2*h}:{d+2*h+1}], v{vR[j]} offset:{st*16384 + hk*8192 + h*1024}", 'lds', f"f{j}") for h in range(2)]
            return [Op(f"ds_read_b128 a[{d}:{d+3}], v{vR[(j>>2)*2 + hk]} offset:{st*16384 + (j&3)*2048}", 'lds', f"f{j}")]
        stamp(A, opt, 1)
        A(f"s_waitcnt vmcnt({len(vms)-1-lastneed})\ns_barrier")
        for j in range(8): emit(frag_reads(j, 0, 0))
        A(f"s_mov_b32 s{sTrip}, 0\ns_waitcnt lgkmcnt(0)")
        BARG = opt.get('barg3', 2)
        def trip(last):
            body = []
            ex = list(extra)
            for t in range(8):
                mf = []
                for j in range(8):
                    order = range(4) if j % 2 == 0 else range(3, -1, -1)
                    for n, i in enumerate(order):
                        c = f"v[{acc(j,i)}:{acc(j,i)+3}]"
                        mf.append(Op(f"v_mfma_f32_16x16x32_bf16 {c}, a[{AB+t*16+i*4}:{AB+t*16+i*4+3}], a[{BF+j*4}:{BF+j*4+3}], {c}",
                                     need_vm=(f"x{t}" if (j == 0 and n == 0) else None), need_lds=(f"f{j}" if n == 0 else None)))
                vmo = step_vm(t, last)
                if ffn and not last and t == 2:
                    vmo = vmo + [Op(f"buffer_load_dword v{vFL+1}, v{vFL}, s[{sWS}:{sWS+3}], s{sFL} offen sc1", 'vm', 'fl')]
                if last:
                    nv = sum(1 for o in vmo if o.kind == 'vm')
                    while ex and nv < 8 and t >= 3:
                        o = ex.pop(0); vmo.append(o); nv += o.kind == 'vm'
                fin = last and t == 7
                if t % 2 == 0: st, hk, first = t >> 1, 1, 0
                else: st, hk, first = ((t >> 1) + 1) % 4, 0, BARG*4 - 1
                rd = []
                if not fin:
                    for j in range(8):
                        for o in frag_reads(j, st, hk): rd.append((max(j*4 + 3, first), o))
                sp = 30.0 / max(1, len(vmo))
                vm = [(int(k*sp), o) for k, o in enumerate(vmo)]
                slots = spread(32, [rd, vm], per_gap=1)
                for m in range(32):
                    body.append(mf[m])
                    if t % 2 == 1 and m == first and not fin:
                        body.append(Op("s_waitcnt lgkmcnt(0)", 'lgkm0', need_vm=f"d{st}"))
                        body.append(Op("s_barrier"))
                    body.extend(slots[m])
            assert not (last and ex), len(ex)
            return body
        def put(lines):
            prev = ""
            for x in lines:
                if opt.get('x_nolds') and x.startswith('ds_read'): continue
                if opt.get('x_noa') and x.startswith('buffer_load_dwordx4 a['): continue
                if opt.get('x_nodma') and x.endswith('lds') and 's[8:11]' in x: continue
                if opt.get('x_nobar') and x == 's_barrier': continue
                if ' m0,' in prev and x.endswith('lds'): A("s_nop 0")
                A(x); prev = x
        loop = trip(False); fin = trip(True)
        stamp(A, opt, 2)
        A(f".p2align 6\nL_k3_{nm}_loop:")
        put(resolve_loop(loop, lgkm_slack=4))
        A(f"s_add_u32 s{sTrip}, s{sTrip}, 1\ns_cmp_lt_u32 s{sTrip}, {NTRIP-1}\ns_cbranch_scc1 L_k3_{nm}_loop")
        if ffn:
            nafter = 0
            for o in reversed(loop):
                if o.tag == 'fl': break
                nafter += o.kind == 'vm'
            A(f"s_waitcnt vmcnt({nafter})\ns_mov_b32 s44, {1 if opt.get('x_nopoll') else 0x40000}")
            A(f"L_k3_poll:\nv_readfirstlane_b32 s3, v{vFL+1}\ns_cmp_eq_u32 s3, 1\ns_cbranch_scc1 L_k3_got\ns_sleep 2")
            A(f"buffer_load_dword v{vFL+1}, v{vFL}, s[{sWS}:{sWS+3}], s{sFL} offen sc1\ns_waitcnt vmcnt(0)")
            A("s_sub_u32 s44, s44, 1\ns_cmp_lg_u32 s44, 0\ns_cbranch_scc1 L_k3_poll\nL_k3_got:")
        if opt.get('cpf', 1):
            A(f"s_getpc_b64 s[56:57]\nL_pc3{nm}:\ns_add_u32 s56, s56, L_k3_epi{nm}-L_pc3{nm}\ns_addc_u32 s57, s57, 0\nv_lshlrev_b32 v{t0}, 5, v0\nv_min_u32 v{t0}, L_text_end-L_k3_epi{nm}-4, v{t0}\nglobal_load_dword a160, v{t0}, s[56:57]")
        put(resolve_seq(loop, fin, lgkm_slack=4))
        A(f"L_k3_epi{nm}:")
        stamp(A, opt, 3)
        A(f"s_lshl_b32 s3, s{sKH}, 16\ns_lshl_b32 s38, s{sMH}, 14\ns_add_u32 s3, s3, s38\nv_add_u32 v2, s3, v{vA}\nv_xor_b32 v3, 0x10000, v2")
        A("s_nop 4")
        for k in range(16):
            r = acc(4, 0) + k*4
            A(f"ds_write_b128 v2, v[{r}:{r+3}] offset:{k*1024}")
        XR = 32
        A("s_waitcnt vmcnt(0)")
        for k in range(16):
            m, i = k >> 2, k & 3
            off = (i*512 + m*32) if ffn else ((m >> 1)*4096 + i*1024 + (m & 1)*512)
            A(f"ds_read_b64_tr_b16 v[{XR+2*k}:{XR+2*k+1}], v{vXR} offset:{off}")
        A("s_waitcnt lgkmcnt(0)\ns_barrier")
        stamp(A, opt, 4)
        E = acc(4, 0)
        for k in range(16):
            A(f"ds_read_b128 v[{E+k*4}:{E+k*4+3}], v3 offset:{k*1024}")
        pk = lambda r: f"v[{r}:{r+1}]"
        stamp(A, opt, 5)
        if ffn:
            LOG2E = 1.4426950408889634
            srd(A, sO, 46, 47, 2048*1024*4)
            A(f"s_mov_b32 s4, {hx(f2u(-LOG2E))}\ns_mov_b32 s5, s4")
            A(f"s_lshl_b32 s{sXo}, s{sXo}, 1")
            def ph1(k):
                y = ACC + k*4; e = E + k*4
                o = [f"s_waitcnt lgkmcnt({15-k})"]
                o += [f"v_pk_add_f32 {pk(y+h)}, {pk(y+h)}, {pk(e+h)}" for h in (0, 2)]
                o += [f"v_pk_mul_f32 {pk(e+h)}, {pk(y+h)}, s[4:5]" for h in (0, 2)]
                return o
            def tr1(k): return [f"v_exp_f32 v{E+k*4+h}, v{E+k*4+h}" for h in range(4)]
            def ph2(k):
                y = ACC + k*4; e = E + k*4; s_ = SR + k*4
                o = [f"v_pk_add_f32 {pk(e+h)}, {pk(e+h)}, 1.0 op_sel_hi:[1,0]" for h in (0, 2)]
                o += [f"v_pk_mul_f32 {pk(y+h)}, {pk(y+h)}, {pk(s_+h)}" for h in (0, 2)]
                return o
            def tr2(k): return [f"v_rcp_f32 v{E+k*4+h}, v{E+k*4+h}" for h in range(4)]
            def ph3(k):
                m, i = k >> 2, k & 3
                y = ACC + k*4; e = E + k*4; s_ = SR + k*4; xr = XR + 2*k
                o = [f"v_lshlrev_b32 v{s_}, 16, v{xr}", f"v_and_b32 v{s_+1}, 0xffff0000, v{xr}", f"v_lshlrev_b32 v{s_+2}, 16, v{xr+1}", f"v_and_b32 v{s_+3}, 0xffff0000, v{xr+1}"]
                o += [f"v_pk_fma_f32 {pk(s_+h)}, {pk(y+h)}, {pk(e+h)}, {pk(s_+h)}" for h in (0, 2)]
                st_ = []
                for r in range(4):
                    st_.append(f"s_add_u32 s3, s{sXo}, {(4*i+r)*4096}\nbuffer_store_dword v{s_+r}, v{vXL}, s[{sO}:{sO+3}], s3 offen offset:{m*64}{OSC}")
                return o, st_
            pend = []
            for n in range(16 + 4):
                plain = []; trans = []
                if n < 16: plain += ph1(n)
                if 0 <= n-1 < 16: trans += tr1(n-1)
                if 0 <= n-2 < 16: plain += ph2(n-2)
                if 0 <= n-3 < 16: trans += tr2(n-3)
                newst = []
                if 0 <= n-4 < 16:
                    o, newst = ph3(n-4); plain += o
                plain = pend + plain; pend = newst
                while plain or trans:
                    if trans: A(trans.pop(0))
                    for _ in range(2):
                        if plain: A(plain.pop(0))
                A("s_nop 0")
            for x in pend: A(x)
            stamp(A, opt, 6)
        else:
            A(f"s_cmp_eq_u32 s{sKH}, 0\ns_cselect_b32 s4, 2.0, -2.0\ns_mov_b32 s5, s4")
            for k in range(16):
                m, i = k >> 2, k & 3
                y = ACC + k*4; e = E + k*4; xr = XR + 2*k
                if i == 0: A(f"v_lshlrev_b32 v10, 16, v{28+m}\nv_mov_b32 v11, v10")
                A(f"v_lshlrev_b32 v4, 16, v{xr}\nv_and_b32 v5, 0xffff0000, v{xr}\nv_lshlrev_b32 v6, 16, v{xr+1}\nv_and_b32 v7, 0xffff0000, v{xr+1}")
                A("v_pk_mul_f32 v[4:5], v[4:5], v[10:11]\nv_pk_mul_f32 v[6:7], v[6:7], v[10:11]")
                A("v_cvt_pk_bf16_f32 v12, v4, v5\nv_cvt_pk_bf16_f32 v13, v6, v7")
                A("v_lshlrev_b32 v4, 16, v12\nv_and_b32 v5, 0xffff0000, v12\nv_lshlrev_b32 v6, 16, v13\nv_and_b32 v7, 0xffff0000, v13")
                A(f"s_waitcnt lgkmcnt({15-k})")
                for h in (0, 2): A(f"v_pk_add_f32 {pk(y+h)}, {pk(y+h)}, {pk(e+h)} neg_lo:[0,1] neg_hi:[0,1]")
                for h in (0, 2): A(f"v_pk_fma_f32 {pk(y+h)}, {pk(y+h)}, s[4:5], {pk(4+h)}")
                if k % 4 == 0 and k: A(f"s_add_u32 s{sS}, s{sS}, 4096")
                A(f"buffer_store_dwordx4 v[{y}:{y+3}], v{vA}, s[{sWS}:{sWS+3}], s{sS} offen offset:{(k&3)*1024} sc1")
            stamp(A, opt, 6)
            A("s_waitcnt vmcnt(0)\ns_barrier")
            A(f"s_cmp_lg_u32 s{sWV}, 0\ns_cbranch_scc1 L_k3_ssm_done")
            A(f"v_mov_b32 v1, 0\nv_mov_b32 v2, 1\ns_mov_b64 exec, 1\nbuffer_store_dword v2, v1, s[{sWS}:{sWS+3}], s{sFL} offen sc1\ns_mov_b64 exec, -1")
            A("L_k3_ssm_done:")
            NW = opt.get('tailpf', 0)
            if NW:
                srd(A, sB, 44, 45, 3584*1024*2)
                A(f"v_lshlrev_b32 v4, 7, v{L}")
                A(f"v_lshrrev_b32 v5, 1, v{L}\nv_lshlrev_b32 v5, 11, v5\nv_and_b32 v6, 1, v{L}\nv_lshl_add_u32 v5, v6, 7, v5")
                A(f"s_mul_i32 s3, s{sTB}, 112\ns_mul_i32 s38, s{sKH}, 56\ns_add_u32 s3, s3, s38\ns_and_b32 s38, s{sCB}, 3\ns_lshl_b32 s38, s38, 1\ns_add_u32 s3, s3, s38\ns_lshl_b32 s3, s3, 12\ns_add_u32 s3, s3, {H_OFF + (7-NW)*32768}")
                A(f"s_mul_i32 s39, s{sKH}, 1792\ns_and_b32 s38, s{sRB}, 3\ns_lshl_b32 s38, s38, 6\ns_add_u32 s39, s39, s38\ns_lshl_b32 s38, s{sMH}, 5\ns_add_u32 s39, s39, s38\ns_lshl_b32 s39, s39, 11\ns_lshl_b32 s38, s{sCB}, 8\ns_add_u32 s39, s39, s38\ns_add_u32 s39, s39, {(7-NW)*256*2048}")
                for w in range(NW):
                    A(f"buffer_load_dword v{8+2*w}, v4, s[{sWS}:{sWS+3}], s3 offen\nbuffer_load_dword v{9+2*w}, v5, s[{sB}:{sB+3}], s39 offen")
                    A(f"s_add_u32 s3, s3, 32768\ns_add_u32 s39, s39, {256*2048}")
        stamp_out(A, opt, 8, 2, sWV, 48, 49)
    role(True)
    A("s_endpgm")
    A("L_k3_ssm:")
    role(False)
    A("L_k3_end:\ns_endpgm")
    return kernel_desc("down_kernel", 256+164, 256, 102)
```

```python
import sys, struct
def f2u(x): return struct.unpack("<I", struct.pack("<f", x))[0]
def hx(x): return f"0x{x & 0xffffffff:08x}"
import math

import os
WSB = int(os.environ.get('WSB', '0'), 0)
XN_OFF = WSB + 0
H_OFF  = WSB + 0x400000
HS_OFF = WSB + 0x1200000
S_OFF  = WSB + 0x1A00000
EX_OFF = WSB + 0x2200000
FL_OFF = WSB + 0x2240000
PT_OFF = WSB + 0x2250000
PW_OFF = WSB + 0x2260000
WS_END = WSB + 0x2280000
WS_SIZE = 0x10000000
KA = dict(x=0, lre=8, lim=16, bre=24, bim=32, cre=40, cim=48, ldt=56, dsk=64, bx=72, wg=80, wu=88, wd=96, out=104, dbg=112, ws=120)

class Asm:
    def __init__(self): self.l = []
    def __call__(self, s):
        for x in s.split("\n"):
            x = x.strip()
            if x: self.l.append(("" if x.endswith(":") else "    ") + x)
    def text(self): return "\n".join(self.l) + "\n"

def kernel_head(A, name):
    A.l.append(f".globl {name}\n.p2align 8\n.type {name},@function\n{name}:")
def kernel_desc(name, vgpr, accum, sgpr=102):
    return f""".p2align 6
.amdhsa_kernel {name}
  .amdhsa_next_free_vgpr {vgpr}
  .amdhsa_next_free_sgpr {sgpr}
  .amdhsa_accum_offset {accum}
  .amdhsa_group_segment_fixed_size 0
  .amdhsa_kernarg_size 128
  .amdhsa_user_sgpr_count 2
  .amdhsa_user_sgpr_kernarg_segment_ptr 1
  .amdhsa_system_sgpr_workgroup_id_x 1
  .amdhsa_float_denorm_mode_32 3
.end_amdhsa_kernel
"""
def srd(A, d, lo, hi, size, add=None):
    if add is None:
        A(f"s_mov_b32 s{d}, s{lo}\ns_mov_b32 s{d+1}, s{hi}")
    else:
        A(f"s_add_u32 s{d}, s{lo}, {add}\ns_addc_u32 s{d+1}, s{hi}, 0")
    A(f"s_mov_b32 s{d+2}, {size}\ns_mov_b32 s{d+3}, 0x00020000")

PROF_OFF = 0x3000000
def stamp(A, opt, n):
    if opt.get('prof'):
        A(f"s_memtime s[{70+4*n}:{71+4*n}]\ns_memrealtime s[{72+4*n}:{73+4*n}]\ns_waitcnt lgkmcnt(0)")
def signal(A, swv, sws, addr, vt, uid):
    A(f"s_cmp_lg_u32 s{swv}, 0\ns_cbranch_scc1 L_sig{uid}")
    A(addr)
    A(f"v_mov_b32 v{vt}, 1\ns_mov_b64 exec, 1\nbuffer_atomic_add v{vt}, off, s[{sws}:{sws+3}], s3 sc1\ns_mov_b64 exec, -1")
    A(f"L_sig{uid}:")
def stamp_out(A, opt, nst, kidx, swv, lo, hi, nowait=False):
    if opt.get('prof'):
        if not nowait: A("s_waitcnt vmcnt(0)")
        stamp(A, opt, nst - 1)
        srd(A, 64, lo, hi, WS_SIZE)
        A(f"s_lshl_b32 s3, s2, 2\ns_add_u32 s3, s3, s{swv}\ns_lshl_b32 s3, s3, 6\ns_add_u32 s3, s3, {PROF_OFF + kidx*0x10000}")
        A("v_mov_b32 v1, 0")
        for n in range(nst):
            A(f"v_mov_b32 v2, s{70+4*n}\nv_mov_b32 v3, s{72+4*n}\nbuffer_store_dwordx2 v[2:3], v1, s[64:67], s3 offen offset:{n*8}\ns_nop 1")
def code_prefetch(A, lab0, lab1, sp, vt, vd, share, uid, nthreads_shift=None):
    A(f"s_getpc_b64 s[{sp}:{sp+1}]\nL_pc{uid}:\ns_add_u32 s{sp}, s{sp}, {lab0}-L_pc{uid}\ns_addc_u32 s{sp+1}, s{sp+1}, 0")
    A(f"v_and_b32 v{vt}, 63, v0\nv_min_u32 v{vt}, {share-1}, v{vt}\ns_lshr_b32 s3, s2, 3\ns_mul_i32 s3, s3, {share}\nv_add_lshl_u32 v{vt}, v{vt}, s3, 7")
    A(f"v_min_u32 v{vt}, {lab1}-{lab0}-4, v{vt}\nglobal_load_dword {vd if isinstance(vd, str) else 'v%d' % vd}, v{vt}, s[{sp}:{sp+1}]")

LOG2E = 1.4426950408889634
def gen_k1(A, opt):
    kernel_head(A, "ln_kernel")
    A("s_cmp_ge_u32 s2, 256\ns_cbranch_scc1 L_k1_end")
    for n in range(7): stamp(A, opt, n)
    A(f"s_load_dwordx2 s[4:5], s[0:1], {KA['x']}\ns_load_dwordx2 s[6:7], s[0:1], {KA['ws']}")
    PFK = opt.get('pfk', 1)
    A(f"s_load_dwordx4 s[24:27], s[0:1], {KA['wg']}\ns_load_dwordx4 s[28:31], s[0:1], {KA['bre']}")
    A(f"s_load_dwordx4 s[32:35], s[0:1], {KA['lre']}\ns_load_dwordx2 s[36:37], s[0:1], {KA['ldt']}")
    A("v_and_b32 v1, 7, v0\nv_lshrrev_b32 v2, 3, v0")
    A("s_lshr_b32 s16, s2, 3")
    A("s_bfe_u32 s17, s2, 0x10002")
    A("s_and_b32 s18, s2, 3")
    A("s_lshl_b32 s19, s16, 6\ns_lshl_b32 s20, s17, 5\ns_add_u32 s19, s19, s20\ns_lshl_b32 s20, s18, 2\ns_add_u32 s19, s19, s20")
    A("v_lshrrev_b32 v3, 2, v1\nv_lshlrev_b32 v3, 4, v3\nv_and_b32 v4, 3, v1\nv_add3_u32 v3, v3, v4, s19")
    A("v_lshlrev_b32 v3, 11, v3\nv_lshl_add_u32 v3, v2, 4, v3")
    A("v_lshrrev_b32 v51, 6, v0\nv_and_b32 v56, 3, v0\ns_lshl_b32 s21, s2, 2\nv_add_u32 v56, s21, v56")
    A("v_readfirstlane_b32 s40, v51\nv_lshlrev_b32 v57, 1, v56")
    A("s_waitcnt lgkmcnt(0)")
    srd(A, 8, 4, 5, 2048*1024*2)
    srd(A, 12, 6, 7, WS_END)
    A("buffer_load_dwordx4 v[8:11], v3, s[8:11], 0 offen\nbuffer_load_dwordx4 v[12:15], v3, s[8:11], 0 offen offset:1024")
    A("global_load_ushort v58, v57, s[32:33]\nglobal_load_ushort v59, v57, s[34:35]\nglobal_load_ushort v60, v57, s[36:37]")
    NPF = 3
    if opt.get('cpf', 1):
        code_prefetch(A, "main_kernel", "L_text_end", 42, 50, 52, opt.get("cpfn", 23), 1); NPF += 1
    if PFK:
        fl = " nt" if opt.get('pfnt') else ""
        R = 4*PFK
        A(f"v_bfe_u32 v50, v0, 3, 5\nv_min_u32 v50, {R-1}, v50\nv_min_u32 v51, 6, v1\ns_mul_i32 s38, s16, {R}\nv_add_u32 v50, s38, v50\ns_movk_i32 s39, 7168\nv_mul_lo_u32 v50, v50, s39")
        A("s_and_b32 s38, s2, 7\ns_mul_i32 s38, s38, 896\nv_lshl_add_u32 v50, v51, 7, v50\nv_add_u32 v50, s38, v50")
        A("s_cmp_lt_u32 s40, 4\ns_cselect_b32 s24, s24, s26\ns_cselect_b32 s25, s25, s27\ns_cselect_b32 s28, s28, s30\ns_cselect_b32 s29, s29, s31")
        A(f"global_load_dword v53, v50, s[24:25]{fl}")
        A(f"s_and_b32 s38, s2, 7\ns_lshl_b32 s38, s38, 18\ns_lshl_b32 s39, s16, 13\ns_add_u32 s38, s38, s39\nv_and_b32 v50, 15, v0\nv_min_u32 v50, {2*PFK-1}, v50\nv_bfe_u32 v51, v0, 4, 2\nv_lshlrev_b32 v51, 11, v51\nv_lshl_add_u32 v50, v50, 7, v51\nv_add_u32 v50, s38, v50")
        A(f"global_load_dword v54, v50, s[28:29]{fl}")
        NPF += 2
    if opt.get('pf3k1'):
        A(f"s_load_dwordx4 s[44:47], s[0:1], {KA['cre']}\ns_load_dwordx2 s[22:23], s[0:1], {KA['wd']}\ns_waitcnt lgkmcnt(0)")
        A("s_cmp_lt_u32 s40, 4\ns_cselect_b32 s44, s44, s46\ns_cselect_b32 s45, s45, s47")
        A("s_lshl_b32 s38, s2, 13\nv_and_b32 v50, 63, v0\nv_lshlrev_b32 v50, 7, v50\nv_add_u32 v50, s38, v50")
        A(f"global_load_dword v54, v50, s[44:45]")
        A("s_mul_i32 s38, s2, 28672\nv_min_u32 v50, 223, v0\nv_lshlrev_b32 v50, 7, v50\nv_add_u32 v50, s38, v50")
        A(f"global_load_dword v55, v50, s[22:23]")
        NPF += 2
    A("s_lshl_b32 s19, s16, 17\ns_lshl_b32 s20, s18, 10\ns_add_u32 s19, s19, s20\ns_lshl_b32 s20, s17, 7\ns_add_u32 s19, s19, s20")
    if XN_OFF: A(f"s_add_u32 s19, s19, {XN_OFF}")
    A("v_lshrrev_b32 v4, 2, v2\nv_lshlrev_b32 v4, 12, v4\nv_and_b32 v5, 3, v2\nv_lshlrev_b32 v5, 8, v5\nv_add3_u32 v4, v4, v5, s19\nv_lshl_add_u32 v4, v1, 4, v4")
    A("v_lshrrev_b32 v5, 6, v0\nv_lshlrev_b32 v5, 2, v5\nv_lshl_add_u32 v5, v1, 5, v5\nv_lshlrev_b32 v6, 5, v1")
    A(f"s_waitcnt vmcnt({NPF})")
    stamp(A, opt, 1)
    for r in range(8):
        A(f"v_lshlrev_b32 v{16+2*r}, 16, v{8+r}\nv_and_b32 v{17+2*r}, 0xffff0000, v{8+r}")
    def reduce(src, ldsoff):
        A(f"s_nop 1\nv_add_f32_dpp v{src}, v{src}, v{src} row_ror:8 row_mask:0xf bank_mask:0xf")
        A(f"v_mov_b32 v33, v{src}\ns_nop 1\nv_permlane16_swap_b32 v{src}, v33\ns_nop 1\nv_add_f32 v{src}, v{src}, v33")
        A(f"v_mov_b32 v33, v{src}\ns_nop 1\nv_permlane32_swap_b32 v{src}, v33\ns_nop 1\nv_add_f32 v{src}, v{src}, v33")
        A(f"ds_write_b32 v5, v{src} offset:{ldsoff}")
        A("s_waitcnt lgkmcnt(0)\ns_barrier")
        A(f"ds_read_b128 v[36:39], v6 offset:{ldsoff}\nds_read_b128 v[40:43], v6 offset:{ldsoff+16}\ns_waitcnt lgkmcnt(0)")
        A("v_pk_add_f32 v[36:37], v[36:37], v[38:39]\nv_pk_add_f32 v[40:41], v[40:41], v[42:43]\nv_pk_add_f32 v[36:37], v[36:37], v[40:41]\nv_add_f32 v32, v36, v37")
    A("v_pk_add_f32 v[34:35], v[16:17], v[18:19]\nv_pk_add_f32 v[36:37], v[20:21], v[22:23]\nv_pk_add_f32 v[38:39], v[24:25], v[26:27]\nv_pk_add_f32 v[40:41], v[28:29], v[30:31]")
    A("v_pk_add_f32 v[34:35], v[34:35], v[36:37]\nv_pk_add_f32 v[38:39], v[38:39], v[40:41]\nv_pk_add_f32 v[34:35], v[34:35], v[38:39]\nv_add_f32 v34, v34, v35")
    reduce(34, 0)
    A(f"v_mul_f32 v44, {hx(f2u(-1.0/1024))}, v32")
    for r in range(8):
        t = 36 + (r & 1)*2
        A(f"v_pk_add_f32 v[{t}:{t+1}], v[{16+2*r}:{17+2*r}], v[44:45] op_sel_hi:[1,0]")
        d = 34 if (r & 1) == 0 else 40
        if r < 2: A(f"v_pk_mul_f32 v[{d}:{d+1}], v[{t}:{t+1}], v[{t}:{t+1}]")
        else: A(f"v_pk_fma_f32 v[{d}:{d+1}], v[{t}:{t+1}], v[{t}:{t+1}], v[{d}:{d+1}]")
    A("v_pk_add_f32 v[34:35], v[34:35], v[40:41]\nv_add_f32 v34, v34, v35")
    reduce(34, 256)
    A(f"v_mul_f32 v45, {hx(f2u(1.0/1024))}, v32")
    A("v_cvt_pk_bf16_f32 v46, v44, v45")
    A("v_lshlrev_b32 v44, 16, v46\nv_and_b32 v46, 0xffff0000, v46")
    A(f"v_add_f32 v46, {hx(f2u(1e-5))}, v46\nv_cvt_pk_bf16_f32 v46, v46, v46\nv_lshlrev_b32 v46, 16, v46")
    A("v_sqrt_f32 v46, v46\ns_nop 0\nv_cvt_pk_bf16_f32 v46, v46, v46\nv_lshlrev_b32 v46, 16, v46\nv_rcp_f32 v46, v46")
    for r in range(8): A(f"v_pk_add_f32 v[{16+2*r}:{17+2*r}], v[{16+2*r}:{17+2*r}], v[44:45] op_sel_hi:[1,0]")
    for r in range(8): A(f"v_cvt_pk_bf16_f32 v{8+r}, v{16+2*r}, v{17+2*r}")
    for r in range(8): A(f"v_lshlrev_b32 v{16+2*r}, 16, v{8+r}\nv_and_b32 v{17+2*r}, 0xffff0000, v{8+r}")
    for r in range(8): A(f"v_pk_mul_f32 v[{16+2*r}:{17+2*r}], v[{16+2*r}:{17+2*r}], v[46:47] op_sel_hi:[1,0]")
    for r in range(8): A(f"v_cvt_pk_bf16_f32 v{8+r}, v{16+2*r}, v{17+2*r}")
    A("s_mov_b32 s20, 0x10000")
    SC = " sc1" if opt.get('sc1', 1) else ""
    A(f"buffer_store_dwordx4 v[8:11], v4, s[12:15], 0 offen{SC}\nbuffer_store_dwordx4 v[12:15], v4, s[12:15], s20 offen{SC}")
    A("s_cmp_gt_u32 s40, 1\ns_cbranch_scc1 L_k1_fin")
    A("s_cmp_eq_u32 s40, 0\ns_cbranch_scc1 L_k1_par")
    A("s_cmp_lt_u32 s2, 112\ns_cselect_b32 s20, 1, 0\nv_mov_b32 v40, 0\nv_mov_b32 v41, s20\nv_mov_b32 v42, 0\nv_mov_b32 v43, s20\nv_and_b32 v6, 63, v0\nv_lshlrev_b32 v6, 4, v6")
    A(f"s_lshl_b32 s20, s2, 10\ns_add_u32 s20, s20, {EX_OFF}\nbuffer_store_dwordx4 v[40:43], v6, s[12:15], s20 offen{SC}")
    A(f"s_lshl_b32 s20, s2, 7\ns_add_u32 s20, s20, {FL_OFF}\nv_and_b32 v6, 31, v0\nv_lshlrev_b32 v6, 2, v6\nbuffer_store_dword v40, v6, s[12:15], s20 offen{SC}")
    A("s_branch L_k1_fin")
    A("L_k1_par:")
    c_hi = struct.unpack("<f", struct.pack("<f", 1/(2*math.pi)))[0]; c_lo = 1/(2*math.pi) - c_hi
    A(f"s_mov_b32 s3, {hx(f2u(LOG2E))}\ns_mov_b32 s4, {hx(f2u(c_hi))}\ns_mov_b32 s5, {hx(f2u(c_lo))}")
    A(f"s_waitcnt vmcnt({NPF-3+2})")
    def cmul(dr, di, ar, ai, br, bi, tmp):
        A(f"v_mul_f32 v{tmp}, v{ai}, v{bi}\nv_mul_f32 v{tmp+1}, v{ai}, v{br}")
        A(f"v_fma_f32 v{tmp}, v{ar}, v{br}, -v{tmp}\nv_fma_f32 v{di}, v{ar}, v{bi}, v{tmp+1}\nv_mov_b32 v{dr}, v{tmp}")
    lr, li, ld = 58, 59, 60
    la, lb, cr, ci = 16, 17, 18, 19
    dt, zr, zi, hi, lo, mag = range(24, 30)
    A(f"v_lshlrev_b32 v{lr}, 16, v{lr}\nv_lshlrev_b32 v{li}, 16, v{li}\nv_lshlrev_b32 v{ld}, 16, v{ld}")
    A(f"v_mul_f32 v{dt}, s3, v{ld}\nv_exp_f32 v{dt}, v{dt}\ns_nop 0\nv_cvt_pk_bf16_f32 v{dt}, v{dt}, v{dt}\nv_lshlrev_b32 v{dt}, 16, v{dt}")
    A(f"v_mul_f32 v{zr}, v{dt}, v{lr}\nv_mul_f32 v{zi}, v{dt}, v{li}")
    A(f"v_mul_f32 v{mag}, s3, v{zr}\nv_exp_f32 v{mag}, v{mag}")
    A(f"v_mul_f32 v{hi}, s4, v{zi}\nv_fma_f32 v{lo}, v{zi}, s4, -v{hi}\nv_fma_f32 v{lo}, v{zi}, s5, v{lo}")
    A(f"v_rndne_f32 v{la}, v{hi}\nv_sub_f32 v{hi}, v{hi}, v{la}\nv_add_f32 v{hi}, v{hi}, v{lo}")
    A(f"v_cos_f32 v{la}, v{hi}\nv_sin_f32 v{lb}, v{hi}\ns_nop 0\nv_mul_f32 v{la}, v{la}, v{mag}\nv_mul_f32 v{lb}, v{lb}, v{mag}")
    am1, den = dt, zr
    A(f"v_add_f32 v{am1}, -1.0, v{la}\nv_mul_f32 v{den}, v{lr}, v{lr}\nv_fmac_f32 v{den}, v{li}, v{li}\nv_rcp_f32 v{den}, v{den}")
    A(f"v_mul_f32 v{cr}, v{am1}, v{lr}\nv_fmac_f32 v{cr}, v{lb}, v{li}\nv_mul_f32 v{ci}, v{lb}, v{lr}\nv_fma_f32 v{ci}, -v{am1}, v{li}, v{ci}")
    A(f"v_mul_f32 v{cr}, v{cr}, v{den}\nv_mul_f32 v{ci}, v{ci}, v{den}")
    tmp = 30; pr, pi, sr, si = 32, 33, 34, 35
    cmul(20, 21, la, lb, la, lb, tmp)
    for _ in range(3): cmul(20, 21, 20, 21, 20, 21, tmp)
    A(f"v_mov_b32 v22, v20\nv_mov_b32 v23, v21\nv_mov_b32 v{pr}, 1.0\nv_mov_b32 v{pi}, 0")
    for k in range(4):
        A(f"v_and_b32 v{sr}, {4<<k}, v0\nv_cmp_ne_u32 vcc, 0, v{sr}\nv_mov_b32 v{si}, 1.0\ns_nop 0")
        A(f"v_cndmask_b32 v{sr}, v{si}, v22, vcc\nv_cndmask_b32 v{si}, 0, v23, vcc")
        cmul(pr, pi, pr, pi, sr, si, tmp)
        cmul(22, 23, 22, 23, 22, 23, tmp)
    A(f"v_lshlrev_b32 v36, 5, v56\ns_mov_b32 s20, {PT_OFF}\nv_lshrrev_b32 v37, 2, v0\nv_lshlrev_b32 v37, 13, v37\nv_lshl_add_u32 v37, v56, 3, v37\ns_mov_b32 s21, {PW_OFF}")
    A(f"buffer_store_dwordx4 v[16:19], v36, s[12:15], s20 offen{SC}\nbuffer_store_dwordx4 v[20:23], v36, s[12:15], s20 offen offset:16{SC}\nbuffer_store_dwordx2 v[32:33], v37, s[12:15], s21 offen{SC}")
    A("L_k1_fin:")
    if opt.get('prof'):
        for n in range(2, 7): stamp(A, opt, n)
        A("s_and_b32 s40, s40, 3")
        stamp_out(A, opt, 8, 0, 40, 6, 7)
    A("L_k1_end:\ns_endpgm")
    return kernel_desc("ln_kernel", 64, 64, 102 if opt.get("prof") else 48)

class Op:
    def __init__(self, text, kind=None, tag=None, need_vm=None, need_lds=None):
        self.text, self.kind, self.tag, self.need_vm, self.need_lds = text, kind, tag, need_vm, need_lds

def resolve_loop(ops, lgkm_slack=6):
    n = len(ops)
    out = []
    def count_after(i, tag, kind):
        c = 0
        for d in range(1, n + 1):
            o = ops[(i - d) % n]
            if o.kind == kind:
                if o.tag == tag: return c
                c += 1
        raise Exception(f"tag {tag} not found")
    bound = {'vm': 10**6, 'lds': 10**6}
    res = None
    for p in range(2):
        res = []
        for i, o in enumerate(ops):
            w = []
            if o.need_vm is not None:
                if isinstance(o.need_vm, tuple):
                    c = count_after(i, o.need_vm[0], 'vm') + o.need_vm[1] * sum(1 for z in ops if z.kind == 'vm')
                else:
                    c = count_after(i, o.need_vm, 'vm')
                if bound['vm'] > c:
                    assert c <= 63
                    w.append(f"vmcnt({c})"); bound['vm'] = c
            if o.need_lds is not None:
                c = count_after(i, o.need_lds, 'lds')
                if bound['lds'] > c:
                    c = min(c, lgkm_slack)
                    w.append(f"lgkmcnt({c})"); bound['lds'] = c
            if w: res.append("s_waitcnt " + " ".join(w))
            res.append(o.text)
            if o.kind == 'vm': bound['vm'] += 1
            if o.kind == 'lds': bound['lds'] += 1
            if o.kind == 'lgkm0': bound['lds'] = 0
        if p == 0: first = list(res)
    return first

def resolve_seq(prev, ops, lgkm_slack=6):
    allops = prev + ops
    base = len(prev)
    def count_after(i, tag, kind):
        c = 0
        for d in range(i - 1, -1, -1):
            o = allops[d]
            if o.kind == kind:
                if o.tag == tag: return c
                c += 1
        raise Exception(f"tag {tag} not found")
    bound = {'vm': 10**6, 'lds': 10**6}
    res = []
    for i, o in enumerate(ops):
        w = []
        if o.need_vm is not None:
            c = count_after(base + i, o.need_vm, 'vm')
            if bound['vm'] > c:
                assert c <= 63
                w.append(f"vmcnt({c})"); bound['vm'] = c
        if o.need_lds is not None:
            c = count_after(base + i, o.need_lds, 'lds')
            if bound['lds'] > c:
                c = min(c, lgkm_slack)
                w.append(f"lgkmcnt({c})"); bound['lds'] = c
        if w: res.append("s_waitcnt " + " ".join(w))
        res.append(o.text)
        if o.kind == 'vm': bound['vm'] += 1
        if o.kind == 'lds': bound['lds'] += 1
        if o.kind == 'lgkm0': bound['lds'] = 0
    return res

def interleave(mfmas, fillers, per_gap=2):
    out = []; fi = 0
    for m, mf in enumerate(mfmas):
        out.append(mf)
        k = 0
        while fi < len(fillers) and fillers[fi][0] <= m and (k < per_gap or m == len(mfmas) - 1):
            out.append(fillers[fi][1]); fi += 1; k += 1
    assert fi == len(fillers)
    return out

def spread(nm, streams, per_gap=1):
    slots = [[] for _ in range(nm)]
    for st in streams:
        last = 0
        for e, op in st:
            m = max(e, last)
            while m < nm - 1 and len(slots[m]) >= per_gap: m += 1
            slots[m].append(op); last = m
    return slots

STAGE2 = 37888
def mix(trans, plain, ratio=2):
    out = []; trans = list(trans); plain = list(plain)
    while trans or plain:
        if trans: out.append(trans.pop(0))
        for _ in range(ratio if trans else len(plain)):
            if plain: out.append(plain.pop(0))
    return out

import subprocess, re
def align_pass(txt, mode):
    open("_al.s", "w").write(re.sub(r"\.rept \d+", ".rept 1", txt))
    r = subprocess.run(["llvm-mc", "-triple", "amdgcn-amd-amdhsa", "-mcpu=gfx950", "-show-encoding", "_al.s"], capture_output=True, text=True)
    assert r.returncode == 0, r.stderr
    enc = [(l.split(';')[0].strip(), l.count(',', l.index('encoding:')) + 1) for l in r.stdout.splitlines() if 'encoding:' in l]
    lines = txt.split("\n"); out = []; k = 0; off = 0; last4 = None
    for l in lines:
        st = l.strip()
        isins = l.startswith("    ") and not st.startswith(".") and not st.startswith(";")
        if st.startswith(".p2align"): off = 0; last4 = None
        if st.startswith(".rept") or st.startswith(".endr"):
            if off % 8 == 4: out.append("    s_nop 0"); off += 4
            last4 = None
        if not isins:
            out.append(l); continue
        name, size = enc[k]; k += 1
        if size == 8 and off % 8 == 4:
            if last4 is not None:
                idx = last4; parts = out[idx].split(); out[idx] = "    " + parts[0] + "_e64 " + " ".join(parts[1:]); off += 4
            elif mode == 2:
                out.append("    s_nop 0"); off += 4
        out.append(l); off += size
        if size == 4:
            op = name.split()[0]
            if op.endswith("_e32") and not op.startswith(("v_permlane", "v_readfirstlane", "v_cmp", "v_cndmask", "v_accvgpr")): last4 = len(out) - 1
        else: last4 = None
    assert k == len(enc), (k, len(enc))
    return "\n".join(out)

def main(path, opt={}):
    A = Asm()
    head = ["; generated by gen.py",
            "; @launch kernel=ln_kernel grid=(256,1,1) block=(512,1,1) lds=512",
            "; @launch kernel=main_kernel grid=(256,1,1) block=(256,1,1) lds=163840"]
    from genf import gen_main
    descs = [gen_k1(A, opt), gen_main(A, opt)]
    A("L_text_end:")
    txt = "\n".join(head) + '\n.amdgcn_target "amdgcn-amd-amdhsa--gfx950"\n.text\n' + A.text() + '.section .rodata,"a"\n' + "".join(descs)
    if opt.get('align', 1): txt = align_pass(txt, opt.get('align', 1))
    open(path, "w").write(txt)

if __name__ == "__main__":
    opt = {}
    for a in sys.argv[2:]:
        k, v = a.split("="); opt[k] = int(v)
    main(sys.argv[1], opt)
```

```python
from gen import *

def pstamp(A, opt, k, n, early=False):
    if not opt.get('prof'): return
    A("s_memtime s[96:97]\ns_memrealtime s[98:99]\ns_waitcnt lgkmcnt(0)")
    if early: A("s_mov_b32 s94, s96\ns_mov_b32 s95, s98"); return
    A(f"v_accvgpr_write_b32 a254, s96\nv_accvgpr_write_b32 a255, s98\ns_add_u32 s101, s100, {k*0x10000}\nbuffer_store_dwordx2 a[254:255], off, s[20:23], s101 offset:{n*8}")

def gen_main(A, opt):
    kernel_head(A, "main_kernel")
    pk = lambda r: f"v[{r}:{r+1}]"
    WSZ = WS_SIZE if opt.get('prof') else WSB + 0x2300000 + 0x800000
    WF = 64; XB = 136; PAR = 200; STASH = 240
    vWD = list(range(1, 10)); vX = 10
    vRW = [11, 12]; vRB = [[13, 14], [15, 16]]
    L = 18; t0, t1, t2, t3 = 19, 20, 21, 22
    vP = [23, 24]
    sW, sB, sX, sWS = 8, 12, 16, 20
    sRB, sU, sWV = 24, 25, 26
    sWoff, sBoff, sXoff = 27, 28, 29
    sM = [30, 31]; sMB = [32, 33]
    sDelta, sTrip, sTB, sCol, sCh = 34, 35, 36, 37, 38
    XD = 3
    WNT = " nt" if opt.get('wnt', 1) else ""
    SC = " sc1"
    PF = opt.get('pft', 9) == 9
    ACC = 128
    acc3 = lambda j, i: ACC + (j*4+i)*4
    BF = 0; AB = 32
    AD = opt.get('ad3', 2)
    OSC = ["", " sc1", " nt"][opt.get('osc', 2)]
    vD = list(range(1, 9)); vA = 9; vR = list(range(10, 18))
    vXL, vXD, vXR, vFL = 23, 24, 25, 26
    SR = 64; XLDS = 131072
    qRB, qCB, qKH, qMH, qRole, qTB = 60, 61, 62, 63, 64, 65
    qB = 68; qPB = [72, 73, 74, 75]; qM, qBb, qBoff, qRho = 76, 77, 78, 79
    qA, qO, qC = 20, 12, 8
    vD2 = list(range(32, 40)); vR2 = list(range(40, 44)); qPC = [16, 17, 18, 19]; qCb, qAb2, qCnt2 = 91, 92, 93
    P_OFF = WSB + 0x2300000
    qPA = [80, 81, 82, 83]; qAb, qAoff, qFL, qS, qXo, qXL, qCnt = 84, 85, 86, 87, 88, 89, 90
    CNT_H = FL_OFF + 128*128; CNT_S = FL_OFF + 136*128
    def put(lines):
        prev = ""
        for x in lines:
            if ' m0,' in prev and x.endswith('lds'): A("s_nop 0")
            A(x); prev = x
    emit = lambda ops: put([o.text for o in ops])

    A("s_cmp_ge_u32 s2, 256\ns_cbranch_scc1 L_end")
    pstamp(A, opt, 1, 0, early=True)
    A(f"s_load_dwordx4 s[40:43], s[0:1], {KA['wg']}")
    A(f"s_load_dwordx4 s[44:47], s[0:1], {KA['bre']}")
    A(f"s_load_dwordx2 s[48:49], s[0:1], {KA['ws']}")
    A(f"s_load_dwordx4 s[52:55], s[0:1], {KA['cre']}")
    A(f"s_load_dwordx2 s[56:57], s[0:1], {KA['wd']}")
    A(f"v_lshrrev_b32 v17, 6, v0\nv_and_b32 v{L}, 63, v0")
    A(f"s_and_b32 s3, s2, 7\ns_bfe_u32 s{sU}, s2, 0x20003\ns_lshr_b32 s{sRB}, s2, 5")
    A(f"v_readfirstlane_b32 s{sWV}, v17")
    A(f"s_mul_i32 s{sCol}, s3, 448\ns_lshl_b32 s4, s{sU}, 7\ns_add_u32 s{sCol}, s{sCol}, s4")
    A(f"s_lshl_b32 s{sCh}, s3, 7\ns_lshl_b32 s4, s{sU}, 4\ns_add_u32 s{sCh}, s{sCh}, s4")
    A(f"v_lshlrev_b32 v{vX}, 4, v{L}")
    A(f"s_lshl_b32 s{sTB}, s{sRB}, 2\ns_add_u32 s{sTB}, s{sTB}, s{sWV}\ns_lshl_b32 s{sXoff}, s{sTB}, 17")
    if XN_OFF: A(f"s_add_u32 s{sXoff}, s{sXoff}, {XN_OFF}")
    A(f"s_mov_b32 s{sWoff}, 0\ns_mov_b32 s{sBoff}, 0\ns_mov_b32 s{sDelta}, {2*STAGE2}")
    A(f"s_mov_b32 s{sW+2}, {1024*3584*2}\ns_mov_b32 s{sW+3}, 0x00020000\ns_mov_b32 s{sB+2}, {1024*1024*2}\ns_mov_b32 s{sB+3}, 0x00020000")
    A(f"s_and_b32 s5, s{sWV}, 1\ns_mul_i32 s6, s5, {32*7168}\ns_lshl_b32 s7, s{sCol}, 1\ns_add_u32 s6, s6, s7\ns_movk_i32 s7, 7168")
    A(f"s_cmp_eq_u32 s{sU}, 3\ns_cbranch_scc1 L_k2_B")

    def dma3(st, part, ffn=True):
        D, B, PB, Bb, BSH = (vD, qB, qPB, qBb, 17) if ffn else (vD2, qC, qPC, qCb, 7)
        o = []
        if part == 0: o.append(Op(f"s_add_u32 s{qBoff}, s{Bb}, s{PB[st]}"))
        o.append(Op(f"s_add_u32 m0, s{qM}, {st*16384 + part*4096}"))
        for n in range(4*part, 4*part+4):
            o.append(Op(f"buffer_load_dwordx4 v{D[n]}, s[{B}:{B+3}], s{qBoff} offen offset:{(n&3)*1024} lds", 'vm', f"d{st}"))
        if part == 1 and st == 3: o.append(Op(f"s_add_u32 s{Bb}, s{Bb}, {4 << BSH}"))
        return o
    def a3(ts, switch=False):
        ts %= 8
        o = [Op(f"s_add_u32 s{qAoff}, s{qAb}, s{qPA[ts >> 1]}") if ts % 2 == 0 else Op(f"s_add_u32 s{qAoff}, s{qAoff}, 4096")]
        for i in range(4):
            r = AB + ts*16 + i*4
            o.append(Op(f"buffer_load_dwordx4 a[{r}:{r+3}], v{vA}, s[{qA}:{qA+3}], s{qAoff} offen offset:{i*1024} sc1", 'vm', f"x{ts}"))
        if ts == 7: o.append(Op(f"s_mov_b32 s{qAb}, s{qAb2}") if switch else Op(f"s_add_u32 s{qAb}, s{qAb}, 32768"))
        return o
    def early3(nm, can_ffn):
        A(f"s_bfe_u32 s{qRole}, s2, 0x10004\ns_xor_b32 s{qRole}, s{qRole}, 1")
        A(f"s_bfe_u32 s4, s2, 0x20006\ns_bfe_u32 s6, s2, 0x10005\ns_lshl_b32 s6, s6, 1\ns_bfe_u32 s3, s2, 0x10003\ns_add_u32 s6, s6, s3")
        A(f"s_bfe_u32 s3, s2, 0x20001\ns_lshl_b32 s3, s3, 2\ns_add_u32 s{qRB}, s3, s4\ns_and_b32 s3, s2, 1\ns_lshl_b32 s3, s3, 2\ns_add_u32 s{qCB}, s3, s6")
        A(f"s_add_u32 s{qRho}, s4, s6\ns_and_b32 s{qRho}, s{qRho}, 3")
        A(f"s_lshr_b32 s{qKH}, s{sWV}, 1\ns_and_b32 s{qMH}, s{sWV}, 1\ns_lshl_b32 s{qTB}, s{qRB}, 1\ns_add_u32 s{qTB}, s{qTB}, s{qMH}")
        A(f"s_lshl_b32 s{qM}, s{qKH}, 16\ns_lshl_b32 s3, s{qMH}, 13\ns_add_u32 s{qM}, s{qM}, s3\ns_mov_b32 s{qB+3}, 0x00020000")
        for n in range(4): A(f"s_xor_b32 s{qPB[n]}, s{qRho}, {n}\ns_lshl_b32 s{qPB[n]}, s{qPB[n]}, 17")
        A(f"s_lshl_b32 s3, s{qMH}, 16\ns_lshl_b32 s4, s{qCB}, 8\ns_add_u32 s3, s3, s4")
        A(f"v_lshrrev_b32 v{t0}, 4, v{L}\nv_bfe_u32 v{t1}, v{L}, 1, 3\nv_xor_b32 v{t1}, v{t1}, v{t0}\nv_and_b32 v{t2}, 1, v{L}")
        A(f"v_lshlrev_b32 v{t2}, 4, v{t2}\nv_lshl_add_u32 v{t2}, v{t0}, 11, v{t2}\nv_add_u32 v{t2}, s3, v{t2}")
        A(f"v_lshl_add_u32 v{t0}, v{t1}, 5, v{t2}\nv_xor_b32 v{t1}, 4, v{t1}\nv_lshl_add_u32 v{t1}, v{t1}, 5, v{t2}")
        for n in range(8):
            A(f"v_add_u32 v{t2}, {n*8192 - (n&3)*1024}, v{t1 if (n>>1)&1 else t0}\nv_accvgpr_write_b32 a{STASH+n}, v{t2}")
        A(f"s_mul_i32 s{qBb}, s{qKH}, {1792*2048}\ns_lshl_b32 s3, s{qRole}, 19\ns_add_u32 s{qBb}, s{qBb}, s3")
        A(f"s_mov_b32 s{qB}, s56\ns_mov_b32 s{qB+1}, s57\ns_mov_b32 s{qB+2}, {3584*1024*2}")
    def setup3(ffn):
        A(f"s_load_dwordx2 s[44:45], s[0:1], {KA['x'] if ffn else KA['dsk']}\ns_load_dwordx2 s[46:47], s[0:1], {KA['out']}")
        for n in range(8): A(f"v_accvgpr_read_b32 v{vD[n]}, a{STASH+n}")
        A(f"v_and_b32 v{L}, 63, v0\nv_lshlrev_b32 v{vA}, 4, v{L}")
        for n in range(4): A(f"s_xor_b32 s{qPA[n]}, s{qRho}, {n}\ns_lshl_b32 s{qPA[n]}, s{qPA[n]}, 13")
        A(f"s_lshl_b32 s3, s{qRB}, 3\ns_add_u32 s3, s3, s{qCB}\ns_lshl_b32 s{qFL}, s3, 7\ns_add_u32 s{qFL}, s{qFL}, {FL_OFF}")
        A(f"s_lshl_b32 s{qS}, s3, 16\ns_lshl_b32 s3, s{sWV}, 14\ns_add_u32 s{qS}, s{qS}, s3\ns_add_u32 s{qS}, s{qS}, {S_OFF}")
        A(f"s_lshr_b32 s{qCnt}, s{qRB}, 1\ns_lshl_b32 s{qCnt}, s{qCnt}, 7\ns_add_u32 s{qCnt2}, s{qCnt}, {CNT_S}\ns_add_u32 s{qCnt}, s{qCnt}, {CNT_H}")
        A(f"s_lshl_b32 s{qXL}, s{sWV}, 13\ns_add_u32 s{qXL}, s{qXL}, {XLDS}")
        A(f"s_mul_i32 s{qAb}, s{qTB}, 112\ns_mul_i32 s3, s{qKH}, 56\ns_add_u32 s{qAb}, s{qAb}, s3\ns_lshl_b32 s{qAb}, s{qAb}, 12\ns_add_u32 s{qAb}, s{qAb}, {H_OFF + (32768 if ffn else 0)}")
        A(f"v_bfe_u32 v{t0}, v{L}, 2, 2\nv_lshrrev_b32 v{t1}, 4, v{L}\nv_lshl_add_u32 v{t2}, v{t1}, 3, v{t0}\nv_lshlrev_b32 v{t2}, 8, v{t2}")
        A(f"v_and_b32 v{t3}, 3, v{L}\nv_lshl_add_u32 v{t2}, v{t3}, 3, v{t2}\ns_lshl_b32 s3, s{qKH}, 16\nv_add_u32 v{t2}, s3, v{t2}")
        A(f"v_bfe_u32 v{t0}, v{L}, 2, 3\ns_lshl_b32 s3, s{qKH}, 2\nv_xor_b32 v{t0}, s3, v{t0}")
        for j in range(8): A(f"v_xor_b32 v{t1}, {j}, v{t0}\nv_lshl_add_u32 v{vR[j]}, v{t1}, 5, v{t2}")
        if ffn:
            A(f"v_lshrrev_b32 v{t0}, 3, v{L}\nv_and_b32 v{t1}, 7, v{L}\nv_lshlrev_b32 v{t0}, 11, v{t0}\nv_lshl_add_u32 v{vXD}, v{t1}, 4, v{t0}")
            A(f"s_lshl_b32 s{qXo}, s{qTB}, 17\ns_lshl_b32 s3, s{qCB}, 8\ns_add_u32 s{qXo}, s{qXo}, s3\ns_lshl_b32 s3, s{qKH}, 7\ns_add_u32 s{qXo}, s{qXo}, s3")
            A(f"v_lshrrev_b32 v{t0}, 4, v{L}\nv_bfe_u32 v{t1}, v{L}, 2, 2\nv_lshl_add_u32 v{t0}, v{t0}, 4, v{t1}\nv_lshlrev_b32 v{t0}, 7, v{t0}")
            A(f"v_and_b32 v{t1}, 3, v{L}\nv_lshl_add_u32 v{t0}, v{t1}, 3, v{t0}\nv_add_u32 v{vXR}, s{qXL}, v{t0}")
            A(f"v_lshrrev_b32 v{t0}, 4, v{L}\nv_lshlrev_b32 v{t0}, 16, v{t0}\nv_and_b32 v{t1}, 15, v{L}\nv_lshl_add_u32 v{vXL}, v{t1}, 2, v{t0}")
            for r in range(128, 256): A(f"v_mov_b32 v{r}, 0")
        else:
            for n in range(4): A(f"s_lshr_b32 s{qPC[n]}, s{qPA[n]}, 6")
            A(f"s_lshl_b32 s3, s{qCB}, 18\ns_lshl_b32 s4, s{qMH}, 17\ns_add_u32 s3, s3, s4")
            A(f"v_lshrrev_b32 v{t0}, 4, v{L}\nv_and_b32 v{t1}, 7, v{L}\nv_xor_b32 v{t1}, v{t1}, v{t0}\nv_lshrrev_b32 v{t2}, 3, v{L}")
            A(f"v_lshlrev_b32 v{t2}, 11, v{t2}\nv_add_u32 v{t2}, s3, v{t2}")
            A(f"v_lshl_add_u32 v{t0}, v{t1}, 4, v{t2}\nv_xor_b32 v{t1}, 4, v{t1}\nv_lshl_add_u32 v{t1}, v{t1}, 4, v{t2}")
            for n in range(8): A(f"v_add_u32 v{vD2[n]}, {n*16384 - (n&3)*1024}, v{t1 if n&1 else t0}")
            A(f"s_mov_b32 s{qCb}, 0")
            srd(A, qC, 52, 53, 1024*1024*2)
            A(f"s_lshl_b32 s{qAb2}, s{qTB}, 1\ns_add_u32 s{qAb2}, s{qAb2}, s{qKH}\ns_lshl_b32 s{qAb2}, s{qAb2}, 17\ns_add_u32 s{qAb2}, s{qAb2}, {HS_OFF}")
            A(f"v_and_b32 v{t0}, 15, v{L}\nv_lshrrev_b32 v{t1}, 1, v{t0}\nv_lshrrev_b32 v{t2}, 4, v{L}\nv_xor_b32 v{t1}, v{t1}, v{t2}\nv_lshlrev_b32 v{t1}, 4, v{t1}")
            A(f"v_lshl_add_u32 v{t0}, v{t0}, 7, v{t1}\ns_mul_i32 s3, s{qKH}, {65536+8192}\nv_add_u32 v{vR2[0]}, s3, v{t0}\nv_xor_b32 v{vR2[1]}, 64, v{vR2[0]}")
            A(f"v_xor_b32 v{vR2[2]}, 8192, v{vR2[0]}\nv_xor_b32 v{vR2[3]}, 8192, v{vR2[1]}")
            A(f"s_lshl_b32 s{qXo}, s{qTB}, 5\ns_lshl_b32 s3, s{qCB}, 2\ns_add_u32 s{qXo}, s{qXo}, s3\ns_lshl_b32 s3, s{qKH}, 1\ns_add_u32 s{qXo}, s{qXo}, s3\ns_lshl_b32 s{qXo}, s{qXo}, 12")
            if XN_OFF: A(f"s_add_u32 s{qXo}, s{qXo}, {XN_OFF}")
            A(f"v_bfe_u32 v{t0}, v{L}, 1, 1\nv_lshlrev_b32 v{t0}, 8, v{t0}\nv_lshrrev_b32 v{t1}, 2, v{L}\nv_lshl_add_u32 v{t0}, v{t1}, 4, v{t0}")
            A(f"v_and_b32 v{t1}, 1, v{L}\nv_lshl_add_u32 v{t0}, v{t1}, 3, v{t0}\nv_add_u32 v{vXR}, s{qXL}, v{t0}")
            A(f"s_lshl_b32 s3, s{qCB}, 8\ns_lshl_b32 s4, s{qKH}, 7\ns_add_u32 s3, s3, s4\nv_and_b32 v{t0}, 15, v{L}\nv_lshl_add_u32 v{vXL}, v{t0}, 1, s3")
            A(f"v_add_u32 v{vXD}, s{qXL}, v{vA}\nv_xor_b32 v27, 0x4000, v{vXD}")
        A(f"s_add_u32 s66, s{qS}, {P_OFF - S_OFF}\ns_add_u32 s67, s{qFL}, 64")
        A("s_waitcnt lgkmcnt(0)")
        if ffn: srd(A, qO, 44, 45, 2048*1024*2)
    cload = lambda v, s_: f"buffer_load_dword v{v}, off, s[{sWS}:{sWS+3}], s{s_} sc1"
    def wait_word(v, s_, target, uid, first_wait):
        A(f"s_mov_b32 s55, 0x40000\ns_waitcnt vmcnt({first_wait})")
        A(f"L_w{uid}:\nv_readfirstlane_b32 s3, v{v}\ns_cmp_ge_u32 s3, {target}\ns_cbranch_scc1 L_g{uid}\ns_sleep 1")
        A(cload(v, s_) + "\ns_waitcnt vmcnt(0)")
        A(f"s_sub_u32 s55, s55, 1\ns_cmp_lg_u32 s55, 0\ns_cbranch_scc1 L_w{uid}\nL_g{uid}:")
    sigS_addr = f"s_lshl_b32 s3, s{sRB}, 7\ns_add_u32 s3, s3, {CNT_S}"
    proa = []
    for t_ in range(-AD, 0): proa += a3(t_ + AD)

    def body(NP, NS, nm):
        NT = 2*NP + 2*NS
        NWI = 8 if NP == 8 else 4
        WB = 8448 if NP == 8 else 4224
        BOFF = 4*WB
        NCH = 16*NS
        def acc(j, i): return ('v', 32 + (j*4+i)*4) if j < 14 else ('a', ((j-14)*4+i)*4)
        def rd(dst, j, i, r):
            f, b = acc(j, i)
            return f"v_mov_b32 v{dst}, v{b+r}" if f == 'v' else f"v_accvgpr_read_b32 v{dst}, a{b+r}"
        jre = lambda q: 2*NP + q
        jim = lambda q: 2*NP + NS + q
        if NP == 8:
            A(f"v_bfe_u32 v{t0}, v{L}, 4, 1\nv_bfe_u32 v{t1}, v{L}, 5, 1\nv_lshlrev_b32 v{t0}, 2, v{t0}\nv_lshl_or_b32 v{t0}, v{t1}, 4, v{t0}\nv_and_b32 v{t1}, 15, v{L}")
        else:
            A(f"v_bfe_u32 v{t0}, v{L}, 3, 1\nv_bfe_u32 v{t1}, v{L}, 4, 1\nv_lshlrev_b32 v{t0}, 3, v{t0}\nv_lshl_or_b32 v{t0}, v{t1}, 2, v{t0}\nv_bfe_u32 v{t1}, v{L}, 5, 1\nv_lshl_or_b32 v{t0}, v{t1}, 4, v{t0}\nv_and_b32 v{t1}, 7, v{L}")
        A(f"v_mul_u32_u24 v{t0}, s7, v{t0}\nv_lshl_add_u32 v{t0}, v{t1}, 4, v{t0}\nv_add_u32 v{vWD[0]}, s6, v{t0}")
        for n in range(1, NWI): A(f"v_add_u32 v{vWD[n]}, {((n&3) + 8*(n>>2))*7168 - (n&3)*1056}, v{vWD[0]}")
        vBD = vWD[NWI:NWI+NS]
        A(f"s_mul_i32 s3, s5, {8*NS}\ns_add_u32 s3, s3, s{sCh}\ns_lshl_b32 s3, s3, 11\ns_lshl_b32 s4, s5, 2")
        A(f"v_lshrrev_b32 v{t0}, 4, v{L}\nv_and_b32 v{t1}, 7, v{L}\nv_xor_b32 v{t1}, v{t1}, v{t0}\nv_xor_b32 v{t1}, s4, v{t1}\nv_lshrrev_b32 v{t2}, 3, v{L}\nv_lshlrev_b32 v{t2}, 11, v{t2}\nv_add_u32 v{t2}, s3, v{t2}")
        A(f"v_lshl_add_u32 v{vBD[0]}, v{t1}, 4, v{t2}")
        if NS > 1:
            A(f"v_xor_b32 v{t1}, 64, v{vBD[0]}")
            for n in range(1, NS): A(f"v_add_u32 v{vBD[n]}, {n*16384 - (n&3)*1024}, v{t1 if n&1 else vBD[0]}")
        A(f"s_mul_i32 s{sM[0]}, s{sWV}, {WB}\ns_add_u32 s{sM[1]}, s{sM[0]}, {STAGE2}")
        A(f"s_mul_i32 s{sMB[0]}, s{sWV}, {NS*1024}\ns_add_u32 s{sMB[0]}, s{sMB[0]}, {BOFF}\ns_add_u32 s{sMB[1]}, s{sMB[0]}, {STAGE2}")
        A("s_waitcnt lgkmcnt(0)")
        A(f"s_cmp_lt_u32 s{sWV}, 2\ns_cselect_b32 s{sW}, s40, s42\ns_cselect_b32 s{sW+1}, s41, s43\ns_cselect_b32 s{sB}, s44, s46\ns_cselect_b32 s{sB+1}, s45, s47")
        A(f"s_cselect_b32 s52, s52, s54\ns_cselect_b32 s53, s53, s55")
        srd(A, sX, 48, 49, XN_OFF + 2048*1024*2)
        def dma_ops(par, part):
            tag = f"d{par}"
            wl = lambda n: Op(f"buffer_load_dwordx4 v{vWD[n]}, s[{sW}:{sW+3}], s{sWoff} offen offset:{(n&3)*1056}{WNT} lds", 'vm', tag)
            bl = lambda n: Op(f"buffer_load_dwordx4 v{vBD[n]}, s[{sB}:{sB+3}], s{sBoff} offen offset:{(n&3)*1024}{WNT} lds", 'vm', tag + "e")
            o = []
            if part == 0:
                o.append(Op(f"s_mov_b32 m0, s{sM[par]}")); o += [wl(n) for n in range(4)]
            else:
                if NWI == 8:
                    o.append(Op(f"s_add_u32 m0, s{sM[par]}, {4*1056}")); o += [wl(n) for n in range(4, 8)]
                o.append(Op(f"s_mov_b32 m0, s{sMB[par]}"))
                o.append(Op(f"s_add_u32 s{sWoff}, s{sWoff}, {64*7168}"))
                o += [bl(n) for n in range(min(NS, 4))]
                if NS == 5:
                    o.append(Op(f"s_add_u32 m0, s{sMB[par]}, 4096")); o.append(bl(4))
                o.append(Op(f"s_add_u32 s{sBoff}, s{sBoff}, 128"))
                o.append(Op(f"s_add_u32 s{sM[par]}, s{sM[par]}, s{sDelta}"))
                o.append(Op(f"s_add_u32 s{sMB[par]}, s{sMB[par]}, s{sDelta}"))
            return o
        def x_ops(buf):
            o = []
            for i in range(4):
                r = XB + buf*16 + i*4
                o.append(Op(f"buffer_load_dwordx4 a[{r}:{r+3}], v{vX}, s[{sX}:{sX+3}], s{sXoff} offen offset:{i*1024}", 'vm', f"x{buf}"))
            o.append(Op(f"s_add_u32 s{sXoff}, s{sXoff}, 4096"))
            return o
        emit(dma_ops(0, 0) + dma_ops(0, 1) + x_ops(0))
        srd(A, sWS, 48, 49, WSZ)
        if opt.get('prof'):
            A(f"s_lshl_b32 s100, s2, 2\ns_add_u32 s100, s100, s{sWV}\ns_lshl_b32 s100, s100, 6\ns_add_u32 s100, s100, {PROF_OFF}")
        for r in range(32, 256): A(f"v_mov_b32 v{r}, 0")
        A(f"v_and_b32 v{t0}, 15, v{L}\nv_add_u32 v{t0}, s{sCh}, v{t0}\nv_lshlrev_b32 v{t1}, 5, v{t0}")
        A(f"v_lshrrev_b32 v{t2}, 4, v0\nv_lshlrev_b32 v{t2}, 13, v{t2}\nv_lshl_add_u32 v{t2}, v{t0}, 3, v{t2}\ns_mov_b32 s3, {PT_OFF}\ns_mov_b32 s4, {PW_OFF}")
        A(f"v_min_u32 v{t3}, {NCH-1}, v0\nv_add_lshl_u32 v{t3}, v{t3}, s{sCh}, 5")
        for q in range(NS):
            pa = PAR + q*6
            A(f"buffer_load_dwordx4 a[{pa}:{pa+3}], v{t1}, s[{sWS}:{sWS+3}], s3 offen offset:{q*512}")
            A(f"buffer_load_dwordx2 a[{pa+4}:{pa+5}], v{t2}, s[{sWS}:{sWS+3}], s4 offen offset:{q*128}")
        A(f"buffer_load_dwordx4 a[{PAR+30}:{PAR+33}], v{t3}, s[{sWS}:{sWS+3}], s3 offen offset:16")
        NPAR = 2*NS + 1
        for r in range(64): A(f"v_accvgpr_write_b32 a{r}, 0")
        if NP == 8: A(f"v_bfe_u32 v{t0}, v{L}, 2, 3\nv_mul_u32_u24 v{t0}, 1056, v{t0}")
        else: A(f"v_bfe_u32 v{t0}, v{L}, 2, 2\nv_mul_u32_u24 v{t0}, 1056, v{t0}\nv_bfe_u32 v{t1}, v{L}, 4, 1\nv_lshl_add_u32 v{t0}, v{t1}, 7, v{t0}")
        A(f"v_bfe_u32 v{t1}, v{L}, 5, 1\nv_lshl_add_u32 v{t0}, v{t1}, 9, v{t0}\nv_and_b32 v{t1}, 3, v{L}\nv_lshl_add_u32 v{vRW[0]}, v{t1}, 3, v{t0}\nv_add_u32 v{vRW[1]}, {STAGE2}, v{vRW[0]}")
        A(f"v_and_b32 v{t0}, 15, v{L}\nv_lshrrev_b32 v{t1}, 1, v{t0}\nv_lshrrev_b32 v{t2}, 4, v{L}\nv_xor_b32 v{t1}, v{t1}, v{t2}\nv_lshlrev_b32 v{t1}, 4, v{t1}")
        A(f"v_lshl_add_u32 v{t0}, v{t0}, 7, v{t1}\nv_xor_b32 v{t1}, 64, v{t0}\nv_add_u32 v{vRB[0][0]}, {BOFF}, v{t0}\nv_add_u32 v{vRB[0][1]}, {BOFF}, v{t1}")
        A(f"v_add_u32 v{vRB[1][0]}, {STAGE2}, v{vRB[0][0]}\nv_add_u32 v{vRB[1][1]}, {STAGE2}, v{vRB[0][1]}")
        if PF:
            A(f"s_lshl_b32 s3, s2, 2\ns_add_u32 s3, s3, s{sWV}\ns_lshl_b32 s4, s3, 3\nv_and_b32 v{t0}, 7, v{L}\nv_add_lshl_u32 v{vP[0]}, v{t0}, s4, 7")
            A(f"s_lshl_b32 s3, s2, 1\ns_add_u32 s3, s3, s5\ns_lshl_b32 s3, s3, 2\nv_and_b32 v{t0}, 3, v{L}\nv_add_lshl_u32 v{vP[1]}, v{t0}, s3, 7")
        def frag_reads(j, par, kh, tag):
            d = WF + j*4
            if j < 2*NP:
                p, gu = j >> 1, j & 1
                return [Op(f"ds_read_b64_tr_b16 a[{d+2*h}:{d+2*h+1}], v{vRW[par]} offset:{gu*2*WB + kh*WB + h*256 + p*32}", 'lds', tag) for h in range(2)]
            return [Op(f"ds_read_b128 a[{d}:{d+3}], v{vRB[par][kh]} offset:{(j-2*NP)*2048}", 'lds', tag)]
        pfC = [Op(f"global_load_dword a236, v{vP[1]}, s[52:53]", 'vm', 'pf'), Op(f"v_add_u32 v{vP[1]}, {2048*128}, v{vP[1]}")]
        pfW = [Op(f"global_load_dword a236, v{vP[0]}, s[56:57]", 'vm', 'pf'), Op(f"v_add_u32 v{vP[0]}, {8192*128}, v{vP[0]}")]
        rest = []
        for t in range(-3, 0):
            if 1 <= t + XD: rest += x_ops(t + XD)
            rest += dma_ops(((t + 5) >> 1) % 2, (t + 1) % 2)
            if PF and t == -1: rest += pfC
        if opt.get('prof'):
            A(f"v_accvgpr_write_b32 a254, s94\nv_accvgpr_write_b32 a255, s95\ns_add_u32 s101, s100, 0x10000\nbuffer_store_dwordx2 a[254:255], off, s[20:23], s101")
        if opt.get('prof'):
            A("s_getreg_b32 s96, hwreg(HW_REG_XCC_ID)\ns_getreg_b32 s98, hwreg(HW_REG_HW_ID)\nv_accvgpr_write_b32 a254, s96\nv_accvgpr_write_b32 a255, s98\nbuffer_store_dwordx2 a[254:255], off, s[20:23], s100 offset:40")
        pstamp(A, opt, 1, 1)
        A(f"s_waitcnt vmcnt({NPAR})\ns_barrier")
        for j in range(NT): emit(frag_reads(j, 0, 0, None))
        emit(rest)
        early3(nm, NP == 8)
        A(f"s_mov_b32 s{sDelta}, {hx(-2*STAGE2)}\ns_mov_b32 s{sTrip}, 0\ns_waitcnt lgkmcnt(0)")
        BARG = opt.get('barg', 3)
        def mfma(j, i, wreg, xreg, **kw):
            f, b = acc(j, i); c = f"{f}[{b}:{b+3}]"
            w = f"a[{wreg}:{wreg+3}]"; x = f"a[{xreg}:{xreg+3}]"
            return Op(f"v_mfma_f32_16x16x32_bf16 {c}, {w}, {x}, {c}" if j < 2*NP else f"v_mfma_f32_16x16x32_bf16 {c}, {x}, {w}, {c}", **kw)
        def trip(n):
            out = []
            for t in range(4):
                gs = 4*n + t
                mf = []
                for j in range(NT):
                    order = range(4) if j % 2 == 0 else range(3, -1, -1)
                    for k, i in enumerate(order):
                        mf.append(mfma(j, i, WF+j*4, XB+t*16+i*4, need_vm=(f"x{t}" if (j == 0 and k == 0) else None), need_lds=(f"f{j}" if k == 0 else None)))
                if t % 2 == 0: par, kh, firstm = t >> 1, 1, 0
                else: par, kh, firstm = ((t >> 1) + 1) % 2, 0, BARG*4 - 1
                fin = gs == 31
                rds = []
                if not fin:
                    for j in range(NT):
                        for o in frag_reads(j, par, kh, f"f{j}"): rds.append((max(j*4 + 3, firstm), o))
                vmo = []
                if gs + XD < 32: vmo += x_ops((t + XD) % 4)
                if (gs + 5) >> 1 < 16: vmo += dma_ops(((t + 5) >> 1) % 2, (t + 1) % 2)
                if PF and n < 7 and t == 1: vmo += pfW
                if PF and n < 7 and t == 3: vmo += pfC
                if gs == 29: vmo += [Op(f"v_accvgpr_read_b32 v{vD[k]}, a{STASH+k}") for k in range(8)]
                if gs == 30: vmo += [Op(o.text, o.kind, 'k3') for o in dma3(0, 0) + dma3(0, 1) + dma3(1, 0)]
                if gs == 31: vmo += [Op(o.text, o.kind, 'k3') for o in dma3(1, 1) + dma3(2, 0)]
                sp = 68.0 / max(1, len(vmo))
                vm = [(1 + int(k*sp), o) for k, o in enumerate(vmo)]
                misc = []
                if n != 7:
                    if t == 2: misc += [(40, Op(f"v_subrev_u32 v{r}, s{sDelta}, v{r}")) for r in (vRW[0], vRB[0][0], vRB[0][1])]
                    if t == 3: misc += [(2, Op(f"v_subrev_u32 v{r}, s{sDelta}, v{r}")) for r in (vRW[1], vRB[1][0], vRB[1][1])]
                    if t == 3: misc += [(60, Op(f"s_sub_u32 s{sDelta}, 0, s{sDelta}"))]
                slots = spread(72, [rds, vm, misc], per_gap=1)
                for m in range(72):
                    out.append(mf[m])
                    if t % 2 == 1 and m == firstm and not fin:
                        out.append(Op("s_waitcnt lgkmcnt(0)", 'lgkm0', need_vm=f"d{par}e"))
                        out.append(Op("s_barrier"))
                    out.extend(slots[m])
            return out
        b0, b6, b7 = trip(0), trip(6), trip(7)
        pstamp(A, opt, 1, 2)
        A(f".p2align 6\nL_k2_loop{nm}:"); put(resolve_loop(b0))
        A(f"s_add_u32 s{sTrip}, s{sTrip}, 1\ns_cmp_lt_u32 s{sTrip}, 6\ns_cbranch_scc1 L_k2_loop{nm}")
        put(resolve_seq(b0, b6))
        if opt.get('cpf', 1):
            code_prefetch(A, "L_k3_code", "L_text_end", 58, t0, "a237", opt.get("cpfn3", 11), "2" + nm)
            A(f"s_getpc_b64 s[58:59]\nL_pce{nm}:\ns_add_u32 s58, s58, L_k2_epi{nm}-L_pce{nm}\ns_addc_u32 s59, s59, 0\nv_lshlrev_b32 v{t0}, 6, v0\nglobal_load_dword a238, v{t0}, s[58:59]")
        put(resolve_seq(b6, b7))
        A(f"L_k2_epi{nm}:")
        pstamp(A, opt, 1, 3)
        LAM = [2 + 2*q for q in range(NS)]
        for q in range(NS): A(f"v_accvgpr_read_b32 v{LAM[q]}, a{PAR+q*6}\nv_accvgpr_read_b32 v{LAM[q]+1}, a{PAR+q*6+1}")
        def cfma(d, h, c):
            return [f"v_pk_fma_f32 {pk(d)}, {pk(h)}, {pk(c)}, {pk(d)} op_sel_hi:[1,0,1]",
                    f"v_pk_fma_f32 {pk(d)}, {pk(h)}, {pk(c)}, {pk(d)} op_sel:[1,1,0] op_sel_hi:[0,1,1] neg_lo:[0,1,0]"]
        A("s_nop 7")
        T = lambda q, n: 12 + 4*q + 2*(n & 1)
        for n in range(16):
            i, r = n >> 2, n & 3
            for q in range(NS): A(rd(T(q, n), jre(q), i, r) + "\n" + rd(T(q, n)+1, jim(q), i, r))
            if n > 0:
                for h in range(2):
                    for q in range(NS): A(cfma(T(q, n), T(q, n-1), LAM[q])[h])
        EL, PL, HL, EP = 45056, 45056 + 10240, 36864, 640
        vE = 1
        A(f"v_lshrrev_b32 v12, 4, v0\nv_mul_u32_u24 v12, {EP}, v12\nv_and_b32 v{vE}, 15, v0\nv_lshl_add_u32 v{vE}, v{vE}, 3, v12")
        for q in range(NS): A(f"ds_write_b64 v{vE}, {pk(T(q, 15))} offset:{EL + q*128}")
        A("s_waitcnt lgkmcnt(0)\ns_barrier")
        NXW = (NCH + 63) // 64
        vC = 12
        A(f"v_min_u32 v{vC}, {NCH-1}, v0\nv_lshlrev_b32 v{vC}, 3, v{vC}")
        A(f"s_lshl_b32 s39, s{sRB}, 14\ns_lshl_b32 s3, s{sCh}, 4\ns_add_u32 s39, s39, s3\ns_add_u32 s39, s39, {EX_OFF}")
        A(f"s_cmp_ge_u32 s{sWV}, {NXW}\ns_cbranch_scc1 L_k2_nox1{nm}")
        for s_ in range(16): A(f"ds_read_b64 a[{WF+2*s_}:{WF+2*s_+1}], v{vC} offset:{EL + s_*EP}")
        A(f"v_accvgpr_read_b32 v14, a{PAR+30}\nv_accvgpr_read_b32 v15, a{PAR+31}")
        A(f"v_mov_b32 v16, 0\nv_mov_b32 v17, 0\nds_write_b64 v{vC}, v[16:17] offset:{PL}\ns_waitcnt lgkmcnt(0)")
        R = [16, 18, 20, 22]
        for s_ in range(16):
            p_ = R[s_ % 4]; c_ = R[(s_+1) % 4]
            A(f"v_accvgpr_read_b32 v{c_}, a{WF+2*s_}\nv_accvgpr_read_b32 v{c_+1}, a{WF+2*s_+1}")
            for x in cfma(c_, p_, 14): A(x)
            if s_ < 15: A(f"ds_write_b64 v{vC}, {pk(c_)} offset:{PL+(s_+1)*EP}")
        A(f"v_mov_b32 v24, v16\nv_mov_b32 v25, 1\nv_mov_b32 v26, v17\nv_mov_b32 v27, 1\nv_lshlrev_b32 v13, 1, v{vC}\ns_add_u32 s3, s39, {7*16384}")
        A(f"buffer_store_dwordx4 v[24:27], v13, s[{sWS}:{sWS+3}], s3 offen sc1")
        A(f"L_k2_nox1{nm}:")
        pstamp(A, opt, 1, 4)
        C1 = -2.0*math.sqrt(2/math.pi)*LOG2E; C2 = C1*0.044715
        A(f"s_mov_b32 s4, {hx(f2u(C1))}\ns_mov_b32 s6, {hx(f2u(C2))}\ns_mov_b32 s7, s6")
        vH = 30
        A(f"v_bfe_u32 v16, v0, 4, 1\nv_bfe_u32 v17, v0, 5, 1\nv_and_b32 v18, 15, v0\nv_lshlrev_b32 v{vH}, 10, v16\nv_lshl_add_u32 v{vH}, v17, 8, v{vH}\nv_lshl_add_u32 v{vH}, v18, 4, v{vH}")
        A(f"v_mov_b32 v16, s4\nv_lshlrev_b32 v13, 1, v12\nv_mov_b32 v31, v{vE}")
        vE = 31
        A(f"s_mul_i32 s40, s{sTB}, {112*4096}\ns_add_u32 s40, s40, {H_OFF}\ns_lshl_b32 s41, s{sCol}, 7\ns_add_u32 s40, s40, s41")
        for k in range(1, NP // 2): A(f"s_add_u32 s{40+k}, s40, {k*4096}")
        TMP = [18, 20, 22, 28]
        NB = 2*NP
        ER = 32
        eloads = []
        for d in range(7):
            eloads.append(f"s_add_u32 s3, s39, {d*16384}")
            eloads.append(f"buffer_load_dwordx4 v[{ER+4*d}:{ER+4*d+3}], v13, s[{sWS}:{sWS+3}], s3 offen sc1")
        ESLOT = NB - opt.get('eslot', 4)
        nst_after = 0
        for b in range(NB):
            p, i0 = b >> 1, (b & 1)*2
            if 2*p < 14:
                G = acc(2*p, i0)[1]; U = acc(2*p+1, i0)[1]
            else:
                G = acc(4, i0)[1]; U = acc(5, i0)[1]
                for h in range(8): A(rd(G+h, 2*p, i0 + (h >> 2), h & 3) + "\n" + rd(U+h, 2*p+1, i0 + (h >> 2), h & 3))
            if b == ESLOT:
                A(f"s_cmp_ge_u32 s{sWV}, {NXW}\ns_cbranch_scc1 L_k2_noel{nm}")
                for x in eloads: A(x)
                A(f"L_k2_noel{nm}:")
            for h in range(4): A(f"v_pk_mul_f32 {pk(TMP[h])}, {pk(G+2*h)}, {pk(G+2*h)}")
            for h in range(4): A(f"v_pk_mul_f32 {pk(U+2*h)}, {pk(U+2*h)}, {pk(G+2*h)}")
            for h in range(4): A(f"v_pk_fma_f32 {pk(TMP[h])}, {pk(TMP[h])}, s[6:7], v[16:17] op_sel_hi:[1,1,0]")
            for h in range(4): A(f"v_pk_mul_f32 {pk(G+2*h)}, {pk(G+2*h)}, {pk(TMP[h])}")
            for h in range(8): A(f"v_exp_f32 v{G+h}, v{G+h}")
            for h in range(4): A(f"v_pk_add_f32 {pk(G+2*h)}, {pk(G+2*h)}, 1.0 op_sel_hi:[1,0]")
            for h in range(8): A(f"v_rcp_f32 v{G+h}, v{G+h}")
            for h in range(4): A(f"v_pk_mul_f32 {pk(U+2*h)}, {pk(U+2*h)}, {pk(G+2*h)}")
            for h in (0, 2, 1, 3): A(f"v_cvt_pk_bf16_f32 v{G+h}, v{U+2*h}, v{U+2*h+1}")
            A(f"v_permlane16_swap_b32 v{G}, v{G+2}\ns_nop 0\nv_permlane16_swap_b32 v{G+1}, v{G+3}")
            A(f"buffer_store_dwordx4 v[{G}:{G+3}], v{vH}, s[{sWS}:{sWS+3}], s{40+(p>>1)} offen offset:{(p&1)*512 + i0*1024}{SC}")
            if b >= ESLOT: nst_after += 1
        pstamp(A, opt, 1, 5)
        A(f"s_cmp_ge_u32 s{sWV}, {NXW}\ns_cbranch_scc1 L_k2_nox2{nm}")
        A(f"s_mov_b32 s55, 0x40000\ns_waitcnt vmcnt({nst_after})")
        A(f"L_k2_poll{nm}:\nv_mov_b32 v18, 1")
        for d in range(7): A(f"v_min3_u32 v18, v18, v{ER+4*d+1}, v{ER+4*d+3}")
        A(f"v_cmp_ne_u32 vcc, 1, v18\ns_cbranch_vccz L_k2_got{nm}\ns_sleep 1")
        for x in eloads: A(x)
        A(f"s_waitcnt vmcnt(0)\ns_sub_u32 s55, s55, 1\ns_cmp_lg_u32 s55, 0\ns_cbranch_scc1 L_k2_poll{nm}\nL_k2_got{nm}:")
        A(f"v_accvgpr_read_b32 v18, a{PAR+32}\nv_accvgpr_read_b32 v19, a{PAR+33}")
        for d in range(7): A(f"v_mov_b32 v{ER+4*d+1}, v{ER+4*d+2}")
        for d in range(1, 7):
            for x in cfma(ER+4*d, ER+4*(d-1), 18): A(x)
        A(f"ds_write_b64 v{vC}, {pk(ER+24)} offset:{HL}\ns_waitcnt lgkmcnt(0)")
        A(f"L_k2_nox2{nm}:")

        def finish(ffn, u):
            if ffn: setup3(True)
            A("s_waitcnt vmcnt(0)\ns_barrier")
            signal(A, sWV, sWS, f"s_lshl_b32 s3, s{sRB}, 7\ns_add_u32 s3, s3, {CNT_H}", 28, f"h{u}")
            pstamp(A, opt, 1, 6)
            CY, HH, PW_, CF, LM = 32, 44, 56, 68, 80
            vW, vRd = 28, 29
            A("v_and_b32 v90, 15, v0\nv_lshlrev_b32 v90, 3, v90")
            for q in range(NS):
                A(f"ds_read_b64 {pk(CY+2*q)}, v{vE} offset:{PL+q*128}\nds_read_b64 {pk(HH+2*q)}, v90 offset:{HL+q*128}")
            for q in range(NS):
                for h in range(2): A(f"v_accvgpr_read_b32 v{PW_+2*q+h}, a{PAR+q*6+4+h}\nv_accvgpr_read_b32 v{CF+2*q+h}, a{PAR+q*6+2+h}\nv_accvgpr_read_b32 v{LM+2*q+h}, a{PAR+q*6+h}")
            TB0 = 110592; TQ = 32*144
            A(f"s_mul_i32 s3, s{sWV}, {2*TQ}\ns_add_u32 s3, s3, {TB0}")
            A(f"v_and_b32 v{vW}, 15, v0\nv_mul_u32_u24 v{vW}, 144, v{vW}\nv_bfe_u32 v91, v0, 4, 2\nv_lshl_add_u32 v{vW}, v91, 5, v{vW}\nv_add_u32 v{vW}, s3, v{vW}")
            A(f"v_bfe_u32 v{vRd}, v0, 5, 1\nv_bfe_u32 v91, v0, 2, 2\nv_lshl_add_u32 v{vRd}, v{vRd}, 3, v91\nv_mul_u32_u24 v{vRd}, 144, v{vRd}\nv_and_b32 v91, 3, v0\nv_lshl_add_u32 v{vRd}, v91, 5, v{vRd}\nv_bfe_u32 v91, v0, 4, 1\nv_lshl_add_u32 v{vRd}, v91, 3, v{vRd}\nv_add_u32 v{vRd}, s3, v{vRd}")
            A(f"s_lshl_b32 s40, s{sTB}, 18\ns_add_u32 s40, s40, {HS_OFF}\ns_lshr_b32 s41, s{sCh}, 4")
            A("s_waitcnt lgkmcnt(0)")
            for h in range(2):
                for q in range(NS): A(cfma(CY+2*q, HH+2*q, PW_+2*q)[h])
            if NS == 1: ST, O0, OB, LD0, LB = 44, 96, 0, 112, 0
            else: ST, O0, OB, LD0, LB = 44, 96, 32, 112, 32
            def calc(q):
                OR_, OI_ = O0 + (q & 1)*OB, O0 + 8 + (q & 1)*OB
                o = []
                for n in range(16):
                    i, r = n >> 2, n & 3
                    c_ = ST + 2*(n & 1); p_ = CY + 2*q if n == 0 else ST + 2*((n-1) & 1); o_ = ST + 4 + 2*(n & 1)
                    o += [rd(c_, jre(q), i, r), rd(c_+1, jim(q), i, r)] + cfma(c_, p_, LM+2*q)
                    o += [f"v_pk_mul_f32 {pk(o_)}, {pk(c_)}, {pk(CF+2*q)} op_sel_hi:[1,0]", cfma(o_, c_, CF+2*q)[1]]
                    if n & 1: o += [f"v_cvt_pk_bf16_f32 v{OR_+(n>>1)}, v{ST+4}, v{ST+6}", f"v_cvt_pk_bf16_f32 v{OI_+(n>>1)}, v{ST+5}, v{ST+7}"]
                return o
            def wr(q):
                o = []
                for part in range(2):
                    b = O0 + 8*part + (q & 1)*OB; off = (q & 1)*TQ + part*16*144
                    o += [f"ds_write_b128 v{vW}, v[{b}:{b+3}] offset:{off}", f"ds_write_b128 v{vW}, v[{b+4}:{b+7}] offset:{off+16}"]
                for part in range(2):
                    for k in range(2):
                        d = LD0 + (q & 1)*LB + (part*2+k)*4
                        o += [f"ds_read_b64_tr_b16 v[{d+2*h}:{d+2*h+1}], v{vRd} offset:{(q & 1)*TQ + (part*16 + 4*h)*144 + k*16}" for h in range(2)]
                return o
            def st(q):
                o = [f"s_add_u32 s42, s41, {q}\ns_lshr_b32 s43, s42, 1\ns_lshl_b32 s43, s43, 12\ns_and_b32 s42, s42, 1\ns_lshl_b32 s42, s42, 9\ns_add_u32 s43, s43, s42\ns_add_u32 s43, s43, s40\ns_add_u32 s42, s43, {32*4096}\ns_waitcnt lgkmcnt(0)"]
                for part in range(2):
                    for k in range(2):
                        d = LD0 + (q & 1)*LB + (part*2+k)*4
                        o.append(f"buffer_store_dwordx4 v[{d}:{d+3}], v{vH}, s[{sWS}:{sWS+3}], s{43-part} offen offset:{k*2048}{SC}")
                return o
            for q in range(NS + 1):
                c = calc(q) if q < NS else []
                side = (wr(q-1) + st(q-1)) if q > 0 else []
                step = max(1, len(c) // max(1, len(side)))
                k = 0
                for n_, x in enumerate(c):
                    A(x)
                    if side and n_ % step == step - 1 and k < len(side): A(side[k]); k += 1
                for x in side[k:]: A(x)
            pstamp(A, opt, 1, 7)
            pstamp(A, opt, 2, 0)
            if ffn:
                A("s_branch L_k3_ffn")
            else:
                A("s_branch L_k3_ssm")
        if NP == 8:
            A(f"s_cmp_eq_u32 s{qRole}, 0\ns_cbranch_scc1 L_finAs")
            finish(True, "Af")
            A("L_finAs:")
            finish(False, "As")
        else:
            finish(False, "B")
    body(8, 1, "A")
    A("L_k2_B:")
    body(4, 5, "B")

    A("L_k3_code:")
    def role(ffn):
        nm = "ffn" if ffn else "ssm"
        A(f"L_k3_{nm}:")
        def frag_reads(j, st, hk, f):
            d = BF + j*4
            if f: return [Op(f"ds_read_b64_tr_b16 a[{d+2*h}:{d+2*h+1}], v{vR[j]} offset:{st*16384 + hk*8192 + h*1024}", 'lds', f"f{j}") for h in range(2)]
            return [Op(f"ds_read_b128 a[{d}:{d+3}], v{vR2[(j>>2)*2 + hk]} offset:{st*16384 + (j&3)*2048}", 'lds', f"f{j}")]
        if not ffn: setup3(False)
        A(cload(vFL, qCnt))
        for j in range(8): emit(frag_reads(j, 0, 0, True))
        wait_word(vFL, qCnt, 32, "ch" + nm, 0)
        emit(proa)
        pstamp(A, opt, 2, 1)
        A(f"s_mov_b32 s{sTrip}, 0\ns_barrier\ns_waitcnt vmcnt(0) lgkmcnt(0)")
        signal(A, sWV, sWS, sigS_addr, t0, "s" + nm)
        if ffn:
            extra = []
            for n in range(8):
                extra += [Op(f"s_add_u32 m0, s{qXL}, {n*1024}"), Op(f"s_add_u32 s3, s{qXo}, {n*16384}"),
                          Op(f"buffer_load_dwordx4 v{vXD}, s[{qO}:{qO+3}], s3 offen lds", 'vm', 'e')]
            for k in range(16):
                if k % 4 == 0 and k: extra.append(Op("s_add_u32 s66, s66, 4096"))
                extra.append(Op(f"buffer_load_dwordx4 v[{SR+k*4}:{SR+k*4+3}], v{vA}, s[{sWS}:{sWS+3}], s66 offen offset:{(k&3)*1024} sc1", 'vm', 'e'))
        else:
            extra = []
            for h in range(2):
                extra.append(Op(f"s_add_u32 m0, s{qXL}, {h*4096}"))
                if h: extra.append(Op(f"s_add_u32 s{qXo}, s{qXo}, 4096"))
                for n in range(4): extra.append(Op(f"buffer_load_dwordx4 v{vA}, s[{sWS}:{sWS+3}], s{qXo} offen offset:{n*1024} lds", 'vm', 'e'))
            for m in range(4): extra.append(Op(f"global_load_ushort v{28+m}, v{vXL}, s[44:45] offset:{m*32}", 'vm', 'e'))
        BARG = opt.get('barg3', 2)
        def trip(cur, nxt, kind):
            body = []
            ex = list(extra) if kind == 'last' else []
            for t in range(8):
                mf = []
                for j in range(8):
                    order = range(4) if j % 2 == 0 else range(3, -1, -1)
                    for n, i in enumerate(order):
                        if kind == 'F': c = f"v[{64+(j*4+i)*4}:{64+(j*4+i)*4+3}]" if j < 4 else f"a[{160+((j-4)*4+i)*4}:{160+((j-4)*4+i)*4+3}]"
                        else: c = f"v[{acc3(j,i)}:{acc3(j,i)+3}]"
                        cin = "0" if (kind in ('F', 'S0') and t == 0) else c
                        mf.append(Op(f"v_mfma_f32_16x16x32_bf16 {c}, a[{AB+t*16+i*4}:{AB+t*16+i*4+3}], a[{BF+j*4}:{BF+j*4+3}], {cin}",
                                     need_vm=(f"x{t}" if (j == 0 and n == 0) else None), need_lds=(f"f{j}" if n == 0 else None)))
                vmo = []
                if kind == 'F' and t + AD == 8:
                    vmo.append(Op(f"s_mov_b32 s55, 0x40000\nL_wcs:\nv_readfirstlane_b32 s3, v{vFL}\ns_cmp_ge_u32 s3, 32\ns_cbranch_scc0 L_k3_spin\nL_gcs:", need_vm='cs'))
                if kind == 'S0' and t >= 4:
                    if t < 7: vmo += a3(AD + 4 + 2*(t-4)) + a3(AD + 5 + 2*(t-4))
                elif kind == 'S1' and t < 2: pass
                elif t + AD < 8 or nxt is not None: vmo += a3(t + AD, switch=(kind == 'F'))
                if kind == 'S0' and t == 7:
                    for k in range(16):
                        if k % 4 == 0 and k: vmo.append(Op("s_add_u32 s66, s66, 4096"))
                        vmo.append(Op(f"buffer_store_dwordx4 v[{64+4*k}:{67+4*k}], v{vA}, s[{sWS}:{sWS+3}], s66 offen offset:{(k&3)*1024} sc1", 'vm', 'ps'))
                sg = (t + 5) >> 1
                if sg < 4: vmo += dma3(sg, (t + 1) % 2, cur)
                elif nxt is not None: vmo += dma3(sg % 4, (t + 1) % 2, nxt)
                if kind == 'F' and t + AD == 6: vmo.append(Op(cload(vFL, qCnt2), 'vm', 'cs'))
                if ffn and kind == 'loop' and t == 4: vmo.append(Op(cload(vFL, 67), 'vm', 'fl'))
                if kind == 'last':
                    nv = sum(1 for o in vmo if o.kind == 'vm')
                    while ex and nv < 8 and t >= 3:
                        o = ex.pop(0); vmo.append(o); nv += o.kind == 'vm'
                    if ffn and t == 7: vmo.append(Op(cload(vFL, qFL), 'vm', 'fl'))
                fin = nxt is None and t == 7
                if t % 2 == 0: st, hk, first = t >> 1, 1, 0
                else: st, hk, first = ((t >> 1) + 1) % 4, 0, BARG*4 - 1
                rd = []
                if not fin:
                    for j in range(8):
                        for o in frag_reads(j, st, hk, nxt if t == 7 else cur): rd.append((max(j*4 + 3, first), o))
                sp = 30.0 / max(1, len(vmo))
                vm = [(int(k*sp), o) for k, o in enumerate(vmo)]
                px = []
                if kind == 'S0':
                    if t in (0, 4):
                        r_ = t >> 2
                        px = [(6 + 3*k, Op(f"ds_write_b128 v{vXD}, a[{160+32*r_+4*k}:{160+32*r_+4*k+3}] offset:{k*1024}", 'lds', 'pw')) for k in range(8)]
                    if t in (1, 2, 5, 6):
                        r_ = t >> 2; k0 = 4*((t - 1) & 1); base = first + 1
                        px = [(base + k, Op(f"ds_read_b128 v[{44+4*k}:{47+4*k}], v27 offset:{(k0+k)*1024}", 'lds', f"pr{k}")) for k in range(4)]
                        for k in range(4):
                            y = 64 + (8*r_ + k0 + k)*4
                            e = base + 9 + 3*k + (k if t % 2 == 0 else 0)
                            px.append((e, Op(f"v_pk_add_f32 {pk(y)}, {pk(y)}, {pk(44+4*k)}\nv_pk_add_f32 {pk(y+2)}, {pk(y+2)}, {pk(46+4*k)}", need_lds=f"pr{k}")))
                slots = spread(32, [rd, vm], per_gap=1)
                slots2 = spread(32, [px], per_gap=1)
                for m in range(32):
                    body.append(mf[m])
                    if t % 2 == 1 and m == first and not fin:
                        body.append(Op("s_waitcnt lgkmcnt(0)", 'lgkm0', need_vm=f"d{st}"))
                        body.append(Op("s_barrier"))
                        if kind == 'S1' and t == 5:
                            body.append(Op(f"s_cmp_eq_u32 s{sWV}, 0\ns_cbranch_scc1 L_k3_sig\nL_k3_sigret:"))
                    body.extend(slots[m]); body.extend(slots2[m])
            assert not ex, len(ex)
            return body
        loop = trip(ffn, ffn, 'loop'); fin = trip(ffn, None, 'last')
        pstamp(A, opt, 2, 2)
        if not ffn:
            tF = trip(True, False, 'F'); tS = trip(False, False, 'S0')
            put(resolve_seq(trip(True, True, 'x'), tF, lgkm_slack=4))
            pstamp(A, opt, 0, 2)
            put(resolve_seq(tF, tS, lgkm_slack=4))
            pstamp(A, opt, 0, 3)
            tS1 = trip(False, False, 'S1')
            put(resolve_seq(tS, tS1, lgkm_slack=4))
            put(resolve_seq(tS1, loop, lgkm_slack=4))
        else:
            A(f".p2align 6\nL_k3_{nm}_loop:")
            put(resolve_loop(loop, lgkm_slack=4))
            A(f"s_add_u32 s{sTrip}, s{sTrip}, 1\ns_cmp_lt_u32 s{sTrip}, 5\ns_cbranch_scc1 L_k3_{nm}_loop")
        if ffn:
            nafter = 0
            for o in reversed(loop):
                if o.tag == 'fl': break
                nafter += o.kind == 'vm'
            wait_word(vFL, 67, 1, "fp", nafter)
        pstamp(A, opt, 0, 4)
        if opt.get('cpf', 1):
            A(f"s_getpc_b64 s[58:59]\nL_pc3{nm}:\ns_add_u32 s58, s58, L_k3_epi{nm}-L_pc3{nm}\ns_addc_u32 s59, s59, 0\nv_lshlrev_b32 v{t0}, 5, v0\nv_min_u32 v{t0}, L_text_end-L_k3_epi{nm}-4, v{t0}\nglobal_load_dword a238, v{t0}, s[58:59]")
        put(resolve_seq(loop, fin, lgkm_slack=4))
        A(f"L_k3_epi{nm}:")
        pstamp(A, opt, 2, 3)
        A(f"s_lshl_b32 s3, s{qKH}, 16\ns_lshl_b32 s4, s{qMH}, 14\ns_add_u32 s3, s3, s4\nv_add_u32 v2, s3, v{vA}\nv_xor_b32 v3, 0x10000, v2")
        XR = 32
        E = acc3(4, 0)
        def sloads():
            for k in range(16):
                if k % 4 == 0 and k: A(f"s_add_u32 s{qS}, s{qS}, 4096")
                A(f"buffer_load_dwordx4 v[{SR+k*4}:{SR+k*4+3}], v{vA}, s[{sWS}:{sWS+3}], s{qS} offen offset:{(k&3)*1024} sc1")
        A("s_nop 4")
        for k in range(16):
            r = E + k*4
            A(f"ds_write_b128 v2, v[{r}:{r+3}] offset:{k*1024}")
        A("s_waitcnt vmcnt(0)")
        for k in range(16):
            m, i = k >> 2, k & 3
            off = (i*512 + m*32) if ffn else ((m >> 1)*4096 + i*1024 + (m & 1)*512)
            A(f"ds_read_b64_tr_b16 v[{XR+2*k}:{XR+2*k+1}], v{vXR} offset:{off}")
        if ffn:
            for k in range(32): A(f"v_pk_add_f32 {pk(ACC+2*k)}, {pk(ACC+2*k)}, {pk(SR+2*k)}")
            A(f"v_readfirstlane_b32 s54, v{vFL}\ns_cmp_eq_u32 s54, 0\ns_cbranch_scc1 L_k3_late")
            sloads()
            A("L_k3_late:")
        A("s_waitcnt lgkmcnt(0)\ns_barrier")
        pstamp(A, opt, 2, 4)
        for k in range(16): A(f"ds_read_b128 v[{E+k*4}:{E+k*4+3}], v3 offset:{k*1024}")
        if not ffn: pstamp(A, opt, 2, 5)
        if ffn:
            srd(A, qO, 46, 47, 2048*1024*4)
            A(f"s_mov_b32 s4, {hx(f2u(-LOG2E))}\ns_mov_b32 s5, s4\ns_lshl_b32 s{qXo}, s{qXo}, 1")
            for r in range(16): A(f"s_add_u32 s{27+r}, s{qXo}, {r*4096}")
            KS = opt.get('ks', 6)
            def gate(k):
                y = ACC + k*4; e = E + k*4; xr = XR + 2*k
                o = [f"s_waitcnt lgkmcnt({15-k})"]
                o += [f"v_pk_add_f32 {pk(y+h)}, {pk(y+h)}, {pk(e+h)}" for h in (0, 2)]
                o += [f"v_pk_mul_f32 {pk(e+h)}, {pk(y+h)}, s[4:5]" for h in (0, 2)]
                o += [f"v_exp_f32 v{e+h}, v{e+h}" for h in range(4)] + ["s_nop 0"]
                o += [f"v_pk_add_f32 {pk(e+h)}, {pk(e+h)}, 1.0 op_sel_hi:[1,0]" for h in (0, 2)]
                o += [f"v_rcp_f32 v{e+h}, v{e+h}" for h in range(4)] + ["s_nop 0"]
                o += [f"v_pk_mul_f32 {pk(y+h)}, {pk(y+h)}, {pk(e+h)}" for h in (0, 2)]
                o += [f"v_lshlrev_b32 v{e}, 16, v{xr}", f"v_and_b32 v{e+1}, 0xffff0000, v{xr}", f"v_lshlrev_b32 v{e+2}, 16, v{xr+1}", f"v_and_b32 v{e+3}, 0xffff0000, v{xr+1}"]
                return o
            def outp(k):
                m, i = k >> 2, k & 3
                y = ACC + k*4; e = E + k*4; s_ = SR + k*4
                o = [f"s_waitcnt vmcnt({min(63, 15-k+4*k)})\n" + "\n".join(f"v_pk_fma_f32 {pk(e+h)}, {pk(y+h)}, {pk(s_+h)}, {pk(e+h)}" for h in (0, 2))]
                o += [f"buffer_store_dword v{e+r}, v{vXL}, s[{qO}:{qO+3}], s{27+4*i+r} offen offset:{m*64}{OSC}" for r in range(4)]
                return o
            A(cload(vFL, qFL))
            for k in range(KS - 3):
                for x in gate(k): A(x)
            pstamp(A, opt, 2, 5)
            A("s_cmp_lg_u32 s54, 0\ns_cbranch_scc1 L_k3_have")
            wait_word(vFL, qFL, 1, "fs", 0)
            sloads()
            A("L_k3_have:")
            for k in range(KS - 3, KS):
                for x in gate(k): A(x)
            gs = [(k, x) for k in range(KS, 16) for x in gate(k)]
            os_ = [(k, x) for k in range(16) for x in outp(k)]
            oi = 0
            for n_, (k, x) in enumerate(gs):
                A(x)
                if n_ % 3 == 2 and oi < len(os_) and os_[oi][0] < k: A(os_[oi][1]); oi += 1
            for k, x in os_[oi:]: A(x)
            pstamp(A, opt, 2, 6)
            if opt.get('prof'): A("s_waitcnt vmcnt(0)")
            pstamp(A, opt, 2, 7)
            A("s_endpgm")
        else:
            A(f"s_cmp_eq_u32 s{qKH}, 0\ns_cselect_b32 s4, 2.0, -2.0\ns_mov_b32 s5, s4")
            for k in range(16):
                m, i = k >> 2, k & 3
                y = ACC + k*4; e = E + k*4; xr = XR + 2*k
                if i == 0: A(f"v_lshlrev_b32 v10, 16, v{28+m}")
                A(f"v_lshlrev_b32 v4, 16, v{xr}\nv_and_b32 v5, 0xffff0000, v{xr}\nv_lshlrev_b32 v6, 16, v{xr+1}\nv_and_b32 v7, 0xffff0000, v{xr+1}")
                A("v_pk_mul_f32 v[4:5], v[4:5], v[10:11] op_sel_hi:[1,0]\nv_pk_mul_f32 v[6:7], v[6:7], v[10:11] op_sel_hi:[1,0]")
                A("v_cvt_pk_bf16_f32 v12, v4, v5\nv_cvt_pk_bf16_f32 v13, v6, v7")
                A("v_lshlrev_b32 v4, 16, v12\nv_and_b32 v5, 0xffff0000, v12\nv_lshlrev_b32 v6, 16, v13\nv_and_b32 v7, 0xffff0000, v13")
                A(f"s_waitcnt lgkmcnt({15-k})")
                for h in (0, 2): A(f"v_pk_add_f32 {pk(y+h)}, {pk(y+h)}, {pk(e+h)} neg_lo:[0,1] neg_hi:[0,1]")
                for h in (0, 2): A(f"v_pk_fma_f32 {pk(y+h)}, {pk(y+h)}, s[4:5], {pk(4+h)}")
                if k % 4 == 0 and k: A(f"s_add_u32 s{qS}, s{qS}, 4096")
                A(f"buffer_store_dwordx4 v[{y}:{y+3}], v{vA}, s[{sWS}:{sWS+3}], s{qS} offen offset:{(k&3)*1024} sc1")
            pstamp(A, opt, 2, 6)
            A("s_waitcnt vmcnt(0)\ns_barrier")
            signal(A, sWV, sWS, f"s_mov_b32 s3, s{qFL}", 2, "fl")
            pstamp(A, opt, 2, 7)
            A("s_endpgm")
            A("L_k3_sig:")
            signal(A, sWV, sWS, "s_mov_b32 s3, s67", t0, "pf")
            A("s_branch L_k3_sigret")
            A("L_k3_spin:\ns_sleep 1\n" + cload(vFL, qCnt2) + "\ns_waitcnt vmcnt(0)\ns_sub_u32 s55, s55, 1\ns_cmp_lg_u32 s55, 0\ns_cbranch_scc1 L_wcs\ns_branch L_gcs")
    role(True)
    role(False)
    A("L_end:\ns_endpgm")
    return kernel_desc("main_kernel", 512, 256, 102)
```

```python
from gen import *

def pstamp(A, opt, k, n, early=False):
    if not opt.get('prof'): return
    A("s_memtime s[96:97]\ns_memrealtime s[98:99]\ns_waitcnt lgkmcnt(0)")
    if early: A("s_mov_b32 s94, s96\ns_mov_b32 s95, s98"); return
    A(f"v_accvgpr_write_b32 a254, s96\nv_accvgpr_write_b32 a255, s98\ns_add_u32 s101, s100, {k*0x10000}\nbuffer_store_dwordx2 a[254:255], off, s[20:23], s101 offset:{n*8}")

def gen_main(A, opt):
    kernel_head(A, "main_kernel")
    pk = lambda r: f"v[{r}:{r+1}]"
    WSZ = WS_SIZE if opt.get('prof') else WSB + 0x2300000 + 0x800000
    WF = 64; XB = 136; PAR = 200; STASH = 240
    vWD = list(range(1, 10)); vX = 10
    vRW = [11, 12]; vRB = [[13, 14], [15, 16]]
    L = 18; t0, t1, t2, t3 = 19, 20, 21, 22
    vP = [23, 24]
    sW, sB, sX, sWS = 8, 12, 16, 20
    sRB, sU, sWV = 24, 25, 26
    sWoff, sBoff, sXoff = 27, 28, 29
    sM = [30, 31]; sMB = [32, 33]
    sDelta, sTrip, sTB, sCol, sCh = 34, 35, 36, 37, 38
    XD = 3
    WNT = " nt" if opt.get('wnt', 1) else ""
    SC = " sc1"
    PF = opt.get('pft', 9) == 9
    ACC = 128
    acc3 = lambda j, i: ACC + (j*4+i)*4
    BF = 0; AB = 32
    AD = opt.get('ad3', 2)
    OSC = ["", " sc1", " nt"][opt.get('osc', 2)]
    vD = list(range(1, 9)); vA = 9; vR = list(range(10, 18))
    vXL, vXD, vXR, vFL = 23, 24, 25, 26
    SR = 64; XLDS = 131072
    qRB, qCB, qKH, qMH, qRole, qTB = 60, 61, 62, 63, 64, 65
    qB = 68; qPB = [72, 73, 74, 75]; qM, qBb, qBoff, qRho = 76, 77, 78, 79
    qA, qO, qC = 20, 12, 8
    vD2 = list(range(32, 40)); vR2 = list(range(40, 44)); qPC = [16, 17, 18, 19]; qCb, qAb2, qCnt2 = 91, 92, 93
    P_OFF = WSB + 0x2300000
    qPA = [80, 81, 82, 83]; qAb, qAoff, qFL, qS, qXo, qXL, qCnt = 84, 85, 86, 87, 88, 89, 90
    CNT_H = FL_OFF + 128*128; CNT_S = FL_OFF + 136*128
    def put(lines):
        prev = ""
        for x in lines:
            if ' m0,' in prev and x.endswith('lds'): A("s_nop 0")
            A(x); prev = x
    emit = lambda ops: put([o.text for o in ops])

    A("s_cmp_ge_u32 s2, 256\ns_cbranch_scc1 L_end")
    pstamp(A, opt, 1, 0, early=True)
    A(f"s_load_dwordx4 s[40:43], s[0:1], {KA['wg']}")
    A(f"s_load_dwordx4 s[44:47], s[0:1], {KA['bre']}")
    A(f"s_load_dwordx2 s[48:49], s[0:1], {KA['ws']}")
    A(f"s_load_dwordx4 s[52:55], s[0:1], {KA['cre']}")
    A(f"s_load_dwordx2 s[56:57], s[0:1], {KA['wd']}")
    A(f"v_lshrrev_b32 v17, 6, v0\nv_and_b32 v{L}, 63, v0")
    A(f"s_and_b32 s3, s2, 7\ns_bfe_u32 s{sU}, s2, 0x20003\ns_lshr_b32 s{sRB}, s2, 5")
    A(f"v_readfirstlane_b32 s{sWV}, v17")
    A(f"s_mul_i32 s{sCol}, s3, 448\ns_lshl_b32 s4, s{sU}, 7\ns_add_u32 s{sCol}, s{sCol}, s4")
    A(f"s_lshl_b32 s{sCh}, s3, 7\ns_lshl_b32 s4, s{sU}, 4\ns_add_u32 s{sCh}, s{sCh}, s4")
    A(f"v_lshlrev_b32 v{vX}, 4, v{L}")
    A(f"s_lshl_b32 s{sTB}, s{sRB}, 2\ns_add_u32 s{sTB}, s{sTB}, s{sWV}\ns_lshl_b32 s{sXoff}, s{sTB}, 17")
    if XN_OFF: A(f"s_add_u32 s{sXoff}, s{sXoff}, {XN_OFF}")
    A(f"s_mov_b32 s{sWoff}, 0\ns_mov_b32 s{sBoff}, 0\ns_mov_b32 s{sDelta}, {2*STAGE2}")
    A(f"s_mov_b32 s{sW+2}, {1024*3584*2}\ns_mov_b32 s{sW+3}, 0x00020000\ns_mov_b32 s{sB+2}, {1024*1024*2}\ns_mov_b32 s{sB+3}, 0x00020000")
    A(f"s_and_b32 s5, s{sWV}, 1\ns_mul_i32 s6, s5, {32*7168}\ns_lshl_b32 s7, s{sCol}, 1\ns_add_u32 s6, s6, s7\ns_movk_i32 s7, 7168")
    A(f"s_cmp_eq_u32 s{sU}, 3\ns_cbranch_scc1 L_k2_B")

    def dma3(st, part, ffn=True):
        D, B, PB, Bb, BSH = (vD, qB, qPB, qBb, 17) if ffn else (vD2, qC, qPC, qCb, 7)
        o = []
        if part == 0: o.append(Op(f"s_add_u32 s{qBoff}, s{Bb}, s{PB[st]}"))
        o.append(Op(f"s_add_u32 m0, s{qM}, {st*16384 + part*4096}"))
        for n in range(4*part, 4*part+4):
            o.append(Op(f"buffer_load_dwordx4 v{D[n]}, s[{B}:{B+3}], s{qBoff} offen offset:{(n&3)*1024} lds", 'vm', f"d{st}"))
        if part == 1 and st == 3: o.append(Op(f"s_add_u32 s{Bb}, s{Bb}, {4 << BSH}"))
        return o
    def a3(ts, switch=False):
        ts %= 8
        o = [Op(f"s_add_u32 s{qAoff}, s{qAb}, s{qPA[ts >> 1]}") if ts % 2 == 0 else Op(f"s_add_u32 s{qAoff}, s{qAoff}, 4096")]
        for i in range(4):
            r = AB + ts*16 + i*4
            o.append(Op(f"buffer_load_dwordx4 a[{r}:{r+3}], v{vA}, s[{qA}:{qA+3}], s{qAoff} offen offset:{i*1024} sc1", 'vm', f"x{ts}"))
        if ts == 7: o.append(Op(f"s_mov_b32 s{qAb}, s{qAb2}") if switch else Op(f"s_add_u32 s{qAb}, s{qAb}, 32768"))
        return o
    def early3(nm, can_ffn):
        A(f"s_bfe_u32 s{qRole}, s2, 0x10004\ns_xor_b32 s{qRole}, s{qRole}, 1")
        A(f"s_bfe_u32 s4, s2, 0x20006\ns_bfe_u32 s6, s2, 0x10005\ns_lshl_b32 s6, s6, 1\ns_bfe_u32 s3, s2, 0x10003\ns_add_u32 s6, s6, s3")
        A(f"s_bfe_u32 s3, s2, 0x20001\ns_lshl_b32 s3, s3, 2\ns_add_u32 s{qRB}, s3, s4\ns_and_b32 s3, s2, 1\ns_lshl_b32 s3, s3, 2\ns_add_u32 s{qCB}, s3, s6")
        A(f"s_add_u32 s{qRho}, s4, s6\ns_and_b32 s{qRho}, s{qRho}, 3")
        A(f"s_lshr_b32 s{qKH}, s{sWV}, 1\ns_and_b32 s{qMH}, s{sWV}, 1\ns_lshl_b32 s{qTB}, s{qRB}, 1\ns_add_u32 s{qTB}, s{qTB}, s{qMH}")
        A(f"s_lshl_b32 s{qM}, s{qKH}, 16\ns_lshl_b32 s3, s{qMH}, 13\ns_add_u32 s{qM}, s{qM}, s3\ns_mov_b32 s{qB+3}, 0x00020000")
        for n in range(4): A(f"s_xor_b32 s{qPB[n]}, s{qRho}, {n}\ns_lshl_b32 s{qPB[n]}, s{qPB[n]}, 17")
        A(f"s_lshl_b32 s3, s{qMH}, 16\ns_lshl_b32 s4, s{qCB}, 8\ns_add_u32 s3, s3, s4")
        A(f"v_lshrrev_b32 v{t0}, 4, v{L}\nv_bfe_u32 v{t1}, v{L}, 1, 3\nv_xor_b32 v{t1}, v{t1}, v{t0}\nv_and_b32 v{t2}, 1, v{L}")
        A(f"v_lshlrev_b32 v{t2}, 4, v{t2}\nv_lshl_add_u32 v{t2}, v{t0}, 11, v{t2}\nv_add_u32 v{t2}, s3, v{t2}")
        A(f"v_lshl_add_u32 v{t0}, v{t1}, 5, v{t2}\nv_xor_b32 v{t1}, 4, v{t1}\nv_lshl_add_u32 v{t1}, v{t1}, 5, v{t2}")
        for n in range(8):
            A(f"v_add_u32 v{t2}, {n*8192 - (n&3)*1024}, v{t1 if (n>>1)&1 else t0}\nv_accvgpr_write_b32 a{STASH+n}, v{t2}")
        A(f"s_mul_i32 s{qBb}, s{qKH}, {1792*2048}\ns_lshl_b32 s3, s{qRole}, 19\ns_add_u32 s{qBb}, s{qBb}, s3")
        A(f"s_mov_b32 s{qB}, s56\ns_mov_b32 s{qB+1}, s57\ns_mov_b32 s{qB+2}, {3584*1024*2}")
    def setup3(ffn):
        A(f"s_load_dwordx2 s[44:45], s[0:1], {KA['x'] if ffn else KA['dsk']}\ns_load_dwordx2 s[46:47], s[0:1], {KA['out']}")
        for n in range(8): A(f"v_accvgpr_read_b32 v{vD[n]}, a{STASH+n}")
        A(f"v_and_b32 v{L}, 63, v0\nv_lshlrev_b32 v{vA}, 4, v{L}")
        for n in range(4): A(f"s_xor_b32 s{qPA[n]}, s{qRho}, {n}\ns_lshl_b32 s{qPA[n]}, s{qPA[n]}, 13")
        A(f"s_lshl_b32 s3, s{qRB}, 3\ns_add_u32 s3, s3, s{qCB}\ns_lshl_b32 s{qFL}, s3, 7\ns_add_u32 s{qFL}, s{qFL}, {FL_OFF}")
        A(f"s_lshl_b32 s{qS}, s3, 16\ns_lshl_b32 s3, s{sWV}, 14\ns_add_u32 s{qS}, s{qS}, s3\ns_add_u32 s{qS}, s{qS}, {S_OFF}")
        A(f"s_lshr_b32 s{qCnt}, s{qRB}, 1\ns_lshl_b32 s{qCnt}, s{qCnt}, 7\ns_add_u32 s{qCnt2}, s{qCnt}, {CNT_S}\ns_add_u32 s{qCnt}, s{qCnt}, {CNT_H}")
        A(f"s_lshl_b32 s{qXL}, s{sWV}, 13\ns_add_u32 s{qXL}, s{qXL}, {XLDS}")
        A(f"s_mul_i32 s{qAb}, s{qTB}, 112\ns_mul_i32 s3, s{qKH}, 56\ns_add_u32 s{qAb}, s{qAb}, s3\ns_lshl_b32 s{qAb}, s{qAb}, 12\ns_add_u32 s{qAb}, s{qAb}, {H_OFF + (32768 if ffn else 0)}")
        A(f"v_bfe_u32 v{t0}, v{L}, 2, 2\nv_lshrrev_b32 v{t1}, 4, v{L}\nv_lshl_add_u32 v{t2}, v{t1}, 3, v{t0}\nv_lshlrev_b32 v{t2}, 8, v{t2}")
        A(f"v_and_b32 v{t3}, 3, v{L}\nv_lshl_add_u32 v{t2}, v{t3}, 3, v{t2}\ns_lshl_b32 s3, s{qKH}, 16\nv_add_u32 v{t2}, s3, v{t2}")
        A(f"v_bfe_u32 v{t0}, v{L}, 2, 3\ns_lshl_b32 s3, s{qKH}, 2\nv_xor_b32 v{t0}, s3, v{t0}")
        for j in range(8): A(f"v_xor_b32 v{t1}, {j}, v{t0}\nv_lshl_add_u32 v{vR[j]}, v{t1}, 5, v{t2}")
        if ffn:
            A(f"v_lshrrev_b32 v{t0}, 3, v{L}\nv_and_b32 v{t1}, 7, v{L}\nv_lshlrev_b32 v{t0}, 11, v{t0}\nv_lshl_add_u32 v{vXD}, v{t1}, 4, v{t0}")
            A(f"s_lshl_b32 s{qXo}, s{qTB}, 17\ns_lshl_b32 s3, s{qCB}, 8\ns_add_u32 s{qXo}, s{qXo}, s3\ns_lshl_b32 s3, s{qKH}, 7\ns_add_u32 s{qXo}, s{qXo}, s3")
            A(f"v_lshrrev_b32 v{t0}, 4, v{L}\nv_bfe_u32 v{t1}, v{L}, 2, 2\nv_lshl_add_u32 v{t0}, v{t0}, 4, v{t1}\nv_lshlrev_b32 v{t0}, 7, v{t0}")
            A(f"v_and_b32 v{t1}, 3, v{L}\nv_lshl_add_u32 v{t0}, v{t1}, 3, v{t0}\nv_add_u32 v{vXR}, s{qXL}, v{t0}")
            A(f"v_lshrrev_b32 v{t0}, 4, v{L}\nv_lshlrev_b32 v{t0}, 16, v{t0}\nv_and_b32 v{t1}, 15, v{L}\nv_lshl_add_u32 v{vXL}, v{t1}, 2, v{t0}")
            for r in range(128, 256): A(f"v_mov_b32 v{r}, 0")
        else:
            for n in range(4): A(f"s_lshr_b32 s{qPC[n]}, s{qPA[n]}, 6")
            A(f"s_lshl_b32 s3, s{qCB}, 18\ns_lshl_b32 s4, s{qMH}, 17\ns_add_u32 s3, s3, s4")
            A(f"v_lshrrev_b32 v{t0}, 4, v{L}\nv_and_b32 v{t1}, 7, v{L}\nv_xor_b32 v{t1}, v{t1}, v{t0}\nv_lshrrev_b32 v{t2}, 3, v{L}")
            A(f"v_lshlrev_b32 v{t2}, 11, v{t2}\nv_add_u32 v{t2}, s3, v{t2}")
            A(f"v_lshl_add_u32 v{t0}, v{t1}, 4, v{t2}\nv_xor_b32 v{t1}, 4, v{t1}\nv_lshl_add_u32 v{t1}, v{t1}, 4, v{t2}")
            for n in range(8): A(f"v_add_u32 v{vD2[n]}, {n*16384 - (n&3)*1024}, v{t1 if n&1 else t0}")
            A(f"s_mov_b32 s{qCb}, 0")
            srd(A, qC, 52, 53, 1024*1024*2)
            A(f"s_lshl_b32 s{qAb2}, s{qTB}, 1\ns_add_u32 s{qAb2}, s{qAb2}, s{qKH}\ns_lshl_b32 s{qAb2}, s{qAb2}, 17\ns_add_u32 s{qAb2}, s{qAb2}, {HS_OFF}")
            A(f"v_and_b32 v{t0}, 15, v{L}\nv_lshrrev_b32 v{t1}, 1, v{t0}\nv_lshrrev_b32 v{t2}, 4, v{L}\nv_xor_b32 v{t1}, v{t1}, v{t2}\nv_lshlrev_b32 v{t1}, 4, v{t1}")
            A(f"v_lshl_add_u32 v{t0}, v{t0}, 7, v{t1}\ns_mul_i32 s3, s{qKH}, {65536+8192}\nv_add_u32 v{vR2[0]}, s3, v{t0}\nv_xor_b32 v{vR2[1]}, 64, v{vR2[0]}")
            A(f"v_xor_b32 v{vR2[2]}, 8192, v{vR2[0]}\nv_xor_b32 v{vR2[3]}, 8192, v{vR2[1]}")
            A(f"s_lshl_b32 s{qXo}, s{qTB}, 5\ns_lshl_b32 s3, s{qCB}, 2\ns_add_u32 s{qXo}, s{qXo}, s3\ns_lshl_b32 s3, s{qKH}, 1\ns_add_u32 s{qXo}, s{qXo}, s3\ns_lshl_b32 s{qXo}, s{qXo}, 12")
            if XN_OFF: A(f"s_add_u32 s{qXo}, s{qXo}, {XN_OFF}")
            A(f"v_bfe_u32 v{t0}, v{L}, 1, 1\nv_lshlrev_b32 v{t0}, 8, v{t0}\nv_lshrrev_b32 v{t1}, 2, v{L}\nv_lshl_add_u32 v{t0}, v{t1}, 4, v{t0}")
            A(f"v_and_b32 v{t1}, 1, v{L}\nv_lshl_add_u32 v{t0}, v{t1}, 3, v{t0}\nv_add_u32 v{vXR}, s{qXL}, v{t0}")
            A(f"s_lshl_b32 s3, s{qCB}, 8\ns_lshl_b32 s4, s{qKH}, 7\ns_add_u32 s3, s3, s4\nv_and_b32 v{t0}, 15, v{L}\nv_lshl_add_u32 v{vXL}, v{t0}, 1, s3")
            A(f"v_add_u32 v{vXD}, s{qXL}, v{vA}\nv_xor_b32 v27, 0x4000, v{vXD}")
        A(f"s_add_u32 s66, s{qS}, {P_OFF - S_OFF}\ns_add_u32 s67, s{qFL}, 64")
        A("s_waitcnt lgkmcnt(0)")
        if ffn: srd(A, qO, 44, 45, 2048*1024*2)
    cload = lambda v, s_: f"buffer_load_dword v{v}, off, s[{sWS}:{sWS+3}], s{s_} sc1"
    def wait_word(v, s_, target, uid, first_wait):
        A(f"s_mov_b32 s55, 0x40000\ns_waitcnt vmcnt({first_wait})")
        A(f"L_w{uid}:\nv_readfirstlane_b32 s3, v{v}\ns_cmp_ge_u32 s3, {target}\ns_cbranch_scc1 L_g{uid}\ns_sleep 1")
        A(cload(v, s_) + "\ns_waitcnt vmcnt(0)")
        A(f"s_sub_u32 s55, s55, 1\ns_cmp_lg_u32 s55, 0\ns_cbranch_scc1 L_w{uid}\nL_g{uid}:")
    sigS_addr = f"s_lshl_b32 s3, s{sRB}, 7\ns_add_u32 s3, s3, {CNT_S}"
    proa = []
    for t_ in range(-AD, 0): proa += a3(t_ + AD)

    def body(NP, NS, nm):
        NT = 2*NP + 2*NS
        NWI = 8 if NP == 8 else 4
        WB = 8448 if NP == 8 else 4224
        BOFF = 4*WB
        NCH = 16*NS
        def acc(j, i): return ('v', 32 + (j*4+i)*4) if j < 14 else ('a', ((j-14)*4+i)*4)
        def rd(dst, j, i, r):
            f, b = acc(j, i)
            return f"v_mov_b32 v{dst}, v{b+r}" if f == 'v' else f"v_accvgpr_read_b32 v{dst}, a{b+r}"
        jre = lambda q: 2*NP + q
        jim = lambda q: 2*NP + NS + q
        if NP == 8:
            A(f"v_bfe_u32 v{t0}, v{L}, 4, 1\nv_bfe_u32 v{t1}, v{L}, 5, 1\nv_lshlrev_b32 v{t0}, 2, v{t0}\nv_lshl_or_b32 v{t0}, v{t1}, 4, v{t0}\nv_and_b32 v{t1}, 15, v{L}")
        else:
            A(f"v_bfe_u32 v{t0}, v{L}, 3, 1\nv_bfe_u32 v{t1}, v{L}, 4, 1\nv_lshlrev_b32 v{t0}, 3, v{t0}\nv_lshl_or_b32 v{t0}, v{t1}, 2, v{t0}\nv_bfe_u32 v{t1}, v{L}, 5, 1\nv_lshl_or_b32 v{t0}, v{t1}, 4, v{t0}\nv_and_b32 v{t1}, 7, v{L}")
        A(f"v_mul_u32_u24 v{t0}, s7, v{t0}\nv_lshl_add_u32 v{t0}, v{t1}, 4, v{t0}\nv_add_u32 v{vWD[0]}, s6, v{t0}")
        for n in range(1, NWI): A(f"v_add_u32 v{vWD[n]}, {((n&3) + 8*(n>>2))*7168 - (n&3)*1056}, v{vWD[0]}")
        vBD = vWD[NWI:NWI+NS]
        A(f"s_mul_i32 s3, s5, {8*NS}\ns_add_u32 s3, s3, s{sCh}\ns_lshl_b32 s3, s3, 11\ns_lshl_b32 s4, s5, 2")
        A(f"v_lshrrev_b32 v{t0}, 4, v{L}\nv_and_b32 v{t1}, 7, v{L}\nv_xor_b32 v{t1}, v{t1}, v{t0}\nv_xor_b32 v{t1}, s4, v{t1}\nv_lshrrev_b32 v{t2}, 3, v{L}\nv_lshlrev_b32 v{t2}, 11, v{t2}\nv_add_u32 v{t2}, s3, v{t2}")
        A(f"v_lshl_add_u32 v{vBD[0]}, v{t1}, 4, v{t2}")
        if NS > 1:
            A(f"v_xor_b32 v{t1}, 64, v{vBD[0]}")
            for n in range(1, NS): A(f"v_add_u32 v{vBD[n]}, {n*16384 - (n&3)*1024}, v{t1 if n&1 else vBD[0]}")
        A(f"s_mul_i32 s{sM[0]}, s{sWV}, {WB}\ns_add_u32 s{sM[1]}, s{sM[0]}, {STAGE2}")
        A(f"s_mul_i32 s{sMB[0]}, s{sWV}, {NS*1024}\ns_add_u32 s{sMB[0]}, s{sMB[0]}, {BOFF}\ns_add_u32 s{sMB[1]}, s{sMB[0]}, {STAGE2}")
        A("s_waitcnt lgkmcnt(0)")
        A(f"s_cmp_lt_u32 s{sWV}, 2\ns_cselect_b32 s{sW}, s40, s42\ns_cselect_b32 s{sW+1}, s41, s43\ns_cselect_b32 s{sB}, s44, s46\ns_cselect_b32 s{sB+1}, s45, s47")
        A(f"s_cselect_b32 s52, s52, s54\ns_cselect_b32 s53, s53, s55")
        srd(A, sX, 48, 49, XN_OFF + 2048*1024*2)
        def dma_ops(par, part):
            tag = f"d{par}"
            wl = lambda n: Op(f"buffer_load_dwordx4 v{vWD[n]}, s[{sW}:{sW+3}], s{sWoff} offen offset:{(n&3)*1056}{WNT} lds", 'vm', tag)
            bl = lambda n: Op(f"buffer_load_dwordx4 v{vBD[n]}, s[{sB}:{sB+3}], s{sBoff} offen offset:{(n&3)*1024}{WNT} lds", 'vm', tag + "e")
            o = []
            if part == 0:
                o.append(Op(f"s_mov_b32 m0, s{sM[par]}")); o += [wl(n) for n in range(4)]
            else:
                if NWI == 8:
                    o.append(Op(f"s_add_u32 m0, s{sM[par]}, {4*1056}")); o += [wl(n) for n in range(4, 8)]
                o.append(Op(f"s_mov_b32 m0, s{sMB[par]}"))
                o.append(Op(f"s_add_u32 s{sWoff}, s{sWoff}, {64*7168}"))
                o += [bl(n) for n in range(min(NS, 4))]
                if NS == 5:
                    o.append(Op(f"s_add_u32 m0, s{sMB[par]}, 4096")); o.append(bl(4))
                o.append(Op(f"s_add_u32 s{sBoff}, s{sBoff}, 128"))
                o.append(Op(f"s_add_u32 s{sM[par]}, s{sM[par]}, s{sDelta}"))
                o.append(Op(f"s_add_u32 s{sMB[par]}, s{sMB[par]}, s{sDelta}"))
            return o
        def x_ops(buf):
            o = []
            for i in range(4):
                r = XB + buf*16 + i*4
                o.append(Op(f"buffer_load_dwordx4 a[{r}:{r+3}], v{vX}, s[{sX}:{sX+3}], s{sXoff} offen offset:{i*1024}", 'vm', f"x{buf}"))
            o.append(Op(f"s_add_u32 s{sXoff}, s{sXoff}, 4096"))
            return o
        emit(dma_ops(0, 0) + dma_ops(0, 1) + x_ops(0))
        srd(A, sWS, 48, 49, WSZ)
        if opt.get('prof'):
            A(f"s_lshl_b32 s100, s2, 2\ns_add_u32 s100, s100, s{sWV}\ns_lshl_b32 s100, s100, 6\ns_add_u32 s100, s100, {PROF_OFF}")
        for r in range(32, 256): A(f"v_mov_b32 v{r}, 0")
        A(f"v_and_b32 v{t0}, 15, v{L}\nv_add_u32 v{t0}, s{sCh}, v{t0}\nv_lshlrev_b32 v{t1}, 5, v{t0}")
        A(f"v_lshrrev_b32 v{t2}, 4, v0\nv_lshlrev_b32 v{t2}, 13, v{t2}\nv_lshl_add_u32 v{t2}, v{t0}, 3, v{t2}\ns_mov_b32 s3, {PT_OFF}\ns_mov_b32 s4, {PW_OFF}")
        A(f"v_min_u32 v{t3}, {NCH-1}, v0\nv_add_lshl_u32 v{t3}, v{t3}, s{sCh}, 5")
        for q in range(NS):
            pa = PAR + q*6
            A(f"buffer_load_dwordx4 a[{pa}:{pa+3}], v{t1}, s[{sWS}:{sWS+3}], s3 offen offset:{q*512}")
            A(f"buffer_load_dwordx2 a[{pa+4}:{pa+5}], v{t2}, s[{sWS}:{sWS+3}], s4 offen offset:{q*128}")
        A(f"buffer_load_dwordx4 a[{PAR+30}:{PAR+33}], v{t3}, s[{sWS}:{sWS+3}], s3 offen offset:16")
        NPAR = 2*NS + 1
        for r in range(64): A(f"v_accvgpr_write_b32 a{r}, 0")
        if NP == 8: A(f"v_bfe_u32 v{t0}, v{L}, 2, 3\nv_mul_u32_u24 v{t0}, 1056, v{t0}")
        else: A(f"v_bfe_u32 v{t0}, v{L}, 2, 2\nv_mul_u32_u24 v{t0}, 1056, v{t0}\nv_bfe_u32 v{t1}, v{L}, 4, 1\nv_lshl_add_u32 v{t0}, v{t1}, 7, v{t0}")
        A(f"v_bfe_u32 v{t1}, v{L}, 5, 1\nv_lshl_add_u32 v{t0}, v{t1}, 9, v{t0}\nv_and_b32 v{t1}, 3, v{L}\nv_lshl_add_u32 v{vRW[0]}, v{t1}, 3, v{t0}\nv_add_u32 v{vRW[1]}, {STAGE2}, v{vRW[0]}")
        A(f"v_and_b32 v{t0}, 15, v{L}\nv_lshrrev_b32 v{t1}, 1, v{t0}\nv_lshrrev_b32 v{t2}, 4, v{L}\nv_xor_b32 v{t1}, v{t1}, v{t2}\nv_lshlrev_b32 v{t1}, 4, v{t1}")
        A(f"v_lshl_add_u32 v{t0}, v{t0}, 7, v{t1}\nv_xor_b32 v{t1}, 64, v{t0}\nv_add_u32 v{vRB[0][0]}, {BOFF}, v{t0}\nv_add_u32 v{vRB[0][1]}, {BOFF}, v{t1}")
        A(f"v_add_u32 v{vRB[1][0]}, {STAGE2}, v{vRB[0][0]}\nv_add_u32 v{vRB[1][1]}, {STAGE2}, v{vRB[0][1]}")
        if PF:
            A(f"s_lshl_b32 s3, s2, 2\ns_add_u32 s3, s3, s{sWV}\ns_lshl_b32 s4, s3, 3\nv_and_b32 v{t0}, 7, v{L}\nv_add_lshl_u32 v{vP[0]}, v{t0}, s4, 7")
            A(f"s_lshl_b32 s3, s2, 1\ns_add_u32 s3, s3, s5\ns_lshl_b32 s3, s3, 2\nv_and_b32 v{t0}, 3, v{L}\nv_add_lshl_u32 v{vP[1]}, v{t0}, s3, 7")
        def frag_reads(j, par, kh, tag):
            d = WF + j*4
            if j < 2*NP:
                p, gu = j >> 1, j & 1
                return [Op(f"ds_read_b64_tr_b16 a[{d+2*h}:{d+2*h+1}], v{vRW[par]} offset:{gu*2*WB + kh*WB + h*256 + p*32}", 'lds', tag) for h in range(2)]
            return [Op(f"ds_read_b128 a[{d}:{d+3}], v{vRB[par][kh]} offset:{(j-2*NP)*2048}", 'lds', tag)]
        pfC = [Op(f"global_load_dword a236, v{vP[1]}, s[52:53]", 'vm', 'pf'), Op(f"v_add_u32 v{vP[1]}, {2048*128}, v{vP[1]}")]
        pfW = [Op(f"global_load_dword a236, v{vP[0]}, s[56:57]", 'vm', 'pf'), Op(f"v_add_u32 v{vP[0]}, {8192*128}, v{vP[0]}")]
        rest = []
        for t in range(-3, 0):
            if 1 <= t + XD: rest += x_ops(t + XD)
            rest += dma_ops(((t + 5) >> 1) % 2, (t + 1) % 2)
            if PF and t == -1: rest += pfC
        if opt.get('prof'):
            A(f"v_accvgpr_write_b32 a254, s94\nv_accvgpr_write_b32 a255, s95\ns_add_u32 s101, s100, 0x10000\nbuffer_store_dwordx2 a[254:255], off, s[20:23], s101")
        if opt.get('prof'):
            A("s_getreg_b32 s96, hwreg(HW_REG_XCC_ID)\ns_getreg_b32 s98, hwreg(HW_REG_HW_ID)\nv_accvgpr_write_b32 a254, s96\nv_accvgpr_write_b32 a255, s98\nbuffer_store_dwordx2 a[254:255], off, s[20:23], s100 offset:40")
        pstamp(A, opt, 1, 1)
        A(f"s_waitcnt vmcnt({NPAR})\ns_barrier")
        for j in range(NT): emit(frag_reads(j, 0, 0, None))
        emit(rest)
        early3(nm, NP == 8)
        A(f"s_mov_b32 s{sDelta}, {hx(-2*STAGE2)}\ns_mov_b32 s{sTrip}, 0\ns_waitcnt lgkmcnt(0)")
        BARG = opt.get('barg', 3)
        def mfma(j, i, wreg, xreg, **kw):
            f, b = acc(j, i); c = f"{f}[{b}:{b+3}]"
            w = f"a[{wreg}:{wreg+3}]"; x = f"a[{xreg}:{xreg+3}]"
            return Op(f"v_mfma_f32_16x16x32_bf16 {c}, {w}, {x}, {c}" if j < 2*NP else f"v_mfma_f32_16x16x32_bf16 {c}, {x}, {w}, {c}", **kw)
        def trip(n):
            out = []
            for t in range(4):
                gs = 4*n + t
                mf = []
                for j in range(NT):
                    order = range(4) if j % 2 == 0 else range(3, -1, -1)
                    for k, i in enumerate(order):
                        mf.append(mfma(j, i, WF+j*4, XB+t*16+i*4, need_vm=(f"x{t}" if (j == 0 and k == 0) else None), need_lds=(f"f{j}" if k == 0 else None)))
                if t % 2 == 0: par, kh, firstm = t >> 1, 1, 0
                else: par, kh, firstm = ((t >> 1) + 1) % 2, 0, BARG*4 - 1
                fin = gs == 31
                rds = []
                if not fin:
                    for j in range(NT):
                        for o in frag_reads(j, par, kh, f"f{j}"): rds.append((max(j*4 + 3, firstm), o))
                vmo = []
                if gs + XD < 32: vmo += x_ops((t + XD) % 4)
                if (gs + 5) >> 1 < 16: vmo += dma_ops(((t + 5) >> 1) % 2, (t + 1) % 2)
                if PF and n < 7 and t == 1: vmo += pfW
                if PF and n < 7 and t == 3: vmo += pfC
                if gs == 29: vmo += [Op(f"v_accvgpr_read_b32 v{vD[k]}, a{STASH+k}") for k in range(8)]
                if gs == 30: vmo += [Op(o.text, o.kind, 'k3') for o in dma3(0, 0) + dma3(0, 1) + dma3(1, 0)]
                if gs == 31: vmo += [Op(o.text, o.kind, 'k3') for o in dma3(1, 1) + dma3(2, 0)]
                sp = 68.0 / max(1, len(vmo))
                vm = [(1 + int(k*sp), o) for k, o in enumerate(vmo)]
                misc = []
                if n != 7:
                    if t == 2: misc += [(40, Op(f"v_subrev_u32 v{r}, s{sDelta}, v{r}")) for r in (vRW[0], vRB[0][0], vRB[0][1])]
                    if t == 3: misc += [(2, Op(f"v_subrev_u32 v{r}, s{sDelta}, v{r}")) for r in (vRW[1], vRB[1][0], vRB[1][1])]
                    if t == 3: misc += [(60, Op(f"s_sub_u32 s{sDelta}, 0, s{sDelta}"))]
                slots = spread(72, [rds, vm, misc], per_gap=1)
                for m in range(72):
                    out.append(mf[m])
                    if t % 2 == 1 and m == firstm and not fin:
                        out.append(Op("s_waitcnt lgkmcnt(0)", 'lgkm0', need_vm=f"d{par}e"))
                        out.append(Op("s_barrier"))
                    out.extend(slots[m])
            return out
        b0, b6, b7 = trip(0), trip(6), trip(7)
        pstamp(A, opt, 1, 2)
        A(f".p2align 6\nL_k2_loop{nm}:"); put(resolve_loop(b0))
        A(f"s_add_u32 s{sTrip}, s{sTrip}, 1\ns_cmp_lt_u32 s{sTrip}, 6\ns_cbranch_scc1 L_k2_loop{nm}")
        put(resolve_seq(b0, b6))
        if opt.get('cpf', 1):
            code_prefetch(A, "L_k3_code", "L_text_end", 58, t0, "a237", opt.get("cpfn3", 11), "2" + nm)
            A(f"s_getpc_b64 s[58:59]\nL_pce{nm}:\ns_add_u32 s58, s58, L_k2_epi{nm}-L_pce{nm}\ns_addc_u32 s59, s59, 0\nv_lshlrev_b32 v{t0}, 6, v0\nglobal_load_dword a238, v{t0}, s[58:59]")
        put(resolve_seq(b6, b7))
        A(f"L_k2_epi{nm}:")
        pstamp(A, opt, 1, 3)
        LAM = [2 + 2*q for q in range(NS)]
        for q in range(NS): A(f"v_accvgpr_read_b32 v{LAM[q]}, a{PAR+q*6}\nv_accvgpr_read_b32 v{LAM[q]+1}, a{PAR+q*6+1}")
        def cfma(d, h, c):
            return [f"v_pk_fma_f32 {pk(d)}, {pk(h)}, {pk(c)}, {pk(d)} op_sel_hi:[1,0,1]",
                    f"v_pk_fma_f32 {pk(d)}, {pk(h)}, {pk(c)}, {pk(d)} op_sel:[1,1,0] op_sel_hi:[0,1,1] neg_lo:[0,1,0]"]
        A("s_nop 7")
        T = lambda q, n: 12 + 4*q + 2*(n & 1)
        for n in range(16):
            i, r = n >> 2, n & 3
            for q in range(NS): A(rd(T(q, n), jre(q), i, r) + "\n" + rd(T(q, n)+1, jim(q), i, r))
            if n > 0:
                for h in range(2):
                    for q in range(NS): A(cfma(T(q, n), T(q, n-1), LAM[q])[h])
        EL, PL, HL, EP = 45056, 45056 + 10240, 36864, 640
        vE = 1
        A(f"v_lshrrev_b32 v12, 4, v0\nv_mul_u32_u24 v12, {EP}, v12\nv_and_b32 v{vE}, 15, v0\nv_lshl_add_u32 v{vE}, v{vE}, 3, v12")
        for q in range(NS): A(f"ds_write_b64 v{vE}, {pk(T(q, 15))} offset:{EL + q*128}")
        A("s_waitcnt lgkmcnt(0)\ns_barrier")
        NXW = (NCH + 63) // 64
        NL2 = opt.get('l2pf', 2)
        if NL2:
            A(f"v_bfe_u32 v12, v0, 3, 2\nv_bfe_u32 v13, v0, 5, 1\nv_lshl_add_u32 v12, v13, 8, v12\nv_lshlrev_b32 v12, 11, v12\nv_and_b32 v13, 7, v0\nv_lshl_add_u32 v12, v13, 7, v12")
            A(f"s_mul_i32 s3, s{qKH}, 1792\ns_lshr_b32 s4, s2, 3\ns_lshl_b32 s4, s4, 3\ns_add_u32 s3, s3, s4\ns_lshl_b32 s4, s{qMH}, 2\ns_add_u32 s3, s3, s4\ns_add_u32 s3, s3, 512\ns_lshl_b32 s3, s3, 11\ns_and_b32 s4, s2, 1\ns_lshl_b32 s4, s4, 10\ns_add_u32 s3, s3, s4")
            A(f"buffer_load_dword a236, v12, s[{qB}:{qB+3}], s3 offen")
            if NL2 > 2: A(f"s_add_u32 s3, s3, {512*2048}\nbuffer_load_dword a236, v12, s[{qB}:{qB+3}], s3 offen")
            A(f"v_bfe_u32 v12, v0, 3, 3\nv_lshlrev_b32 v12, 11, v12\nv_lshl_add_u32 v12, v13, 7, v12")
            A(f"s_and_b32 s3, s2, 1\ns_lshl_b32 s3, s3, 9\ns_lshr_b32 s4, s2, 3\ns_lshl_b32 s4, s4, 4\ns_add_u32 s3, s3, s4\ns_lshl_b32 s4, s{qMH}, 3\ns_add_u32 s3, s3, s4\ns_lshl_b32 s3, s3, 11\nv_add_u32 v12, s3, v12")
            A(f"global_load_dword a237, v12, s[52:53]")
            if NL2 > 2: A(f"global_load_dword a237, v12, s[52:53] offset:1024")
        vC = 12
        A(f"v_min_u32 v{vC}, {NCH-1}, v0\nv_lshlrev_b32 v{vC}, 3, v{vC}")
        A(f"s_lshl_b32 s39, s{sRB}, 14\ns_lshl_b32 s3, s{sCh}, 4\ns_add_u32 s39, s39, s3\ns_add_u32 s39, s39, {EX_OFF}")
        A(f"s_cmp_ge_u32 s{sWV}, {NXW}\ns_cbranch_scc1 L_k2_nox1{nm}")
        for s_ in range(16): A(f"ds_read_b64 a[{WF+2*s_}:{WF+2*s_+1}], v{vC} offset:{EL + s_*EP}")
        A(f"v_accvgpr_read_b32 v14, a{PAR+30}\nv_accvgpr_read_b32 v15, a{PAR+31}")
        A(f"v_mov_b32 v16, 0\nv_mov_b32 v17, 0\nds_write_b64 v{vC}, v[16:17] offset:{PL}\ns_waitcnt lgkmcnt(0)")
        R = [16, 18, 20, 22]
        for s_ in range(16):
            p_ = R[s_ % 4]; c_ = R[(s_+1) % 4]
            A(f"v_accvgpr_read_b32 v{c_}, a{WF+2*s_}\nv_accvgpr_read_b32 v{c_+1}, a{WF+2*s_+1}")
            for x in cfma(c_, p_, 14): A(x)
            if s_ < 15: A(f"ds_write_b64 v{vC}, {pk(c_)} offset:{PL+(s_+1)*EP}")
        A(f"v_mov_b32 v24, v16\nv_mov_b32 v25, 1\nv_mov_b32 v26, v17\nv_mov_b32 v27, 1\nv_lshlrev_b32 v13, 1, v{vC}\ns_add_u32 s3, s39, {7*16384}")
        A(f"buffer_store_dwordx4 v[24:27], v13, s[{sWS}:{sWS+3}], s3 offen sc1")
        A(f"L_k2_nox1{nm}:")
        pstamp(A, opt, 1, 4)
        C1 = -2.0*math.sqrt(2/math.pi)*LOG2E; C2 = C1*0.044715
        A(f"s_mov_b32 s4, {hx(f2u(C1))}\ns_mov_b32 s6, {hx(f2u(C2))}\ns_mov_b32 s7, s6")
        vH = 30
        A(f"v_bfe_u32 v16, v0, 4, 1\nv_bfe_u32 v17, v0, 5, 1\nv_and_b32 v18, 15, v0\nv_lshlrev_b32 v{vH}, 10, v16\nv_lshl_add_u32 v{vH}, v17, 8, v{vH}\nv_lshl_add_u32 v{vH}, v18, 4, v{vH}")
        A(f"v_mov_b32 v16, s4\nv_lshlrev_b32 v13, 1, v12\nv_mov_b32 v31, v{vE}")
        vE = 31
        A(f"s_mul_i32 s40, s{sTB}, {112*4096}\ns_add_u32 s40, s40, {H_OFF}\ns_lshl_b32 s41, s{sCol}, 7\ns_add_u32 s40, s40, s41")
        for k in range(1, NP // 2): A(f"s_add_u32 s{40+k}, s40, {k*4096}")
        TMP = [18, 20, 22, 28]
        NB = 2*NP
        ER = 32
        eloads = []
        for d in range(7):
            eloads.append(f"s_add_u32 s3, s39, {d*16384}")
            eloads.append(f"buffer_load_dwordx4 v[{ER+4*d}:{ER+4*d+3}], v13, s[{sWS}:{sWS+3}], s3 offen sc1")
        ESLOT = NB - opt.get('eslot', 4)
        nst_after = 0
        for b in range(NB):
            p, i0 = b >> 1, (b & 1)*2
            if 2*p < 14:
                G = acc(2*p, i0)[1]; U = acc(2*p+1, i0)[1]
            else:
                G = acc(4, i0)[1]; U = acc(5, i0)[1]
                for h in range(8): A(rd(G+h, 2*p, i0 + (h >> 2), h & 3) + "\n" + rd(U+h, 2*p+1, i0 + (h >> 2), h & 3))
            if b == ESLOT:
                A(f"s_cmp_ge_u32 s{sWV}, {NXW}\ns_cbranch_scc1 L_k2_noel{nm}")
                for x in eloads: A(x)
                A(f"L_k2_noel{nm}:")
            for h in range(4): A(f"v_pk_mul_f32 {pk(TMP[h])}, {pk(G+2*h)}, {pk(G+2*h)}")
            for h in range(4): A(f"v_pk_mul_f32 {pk(U+2*h)}, {pk(U+2*h)}, {pk(G+2*h)}")
            for h in range(4): A(f"v_pk_fma_f32 {pk(TMP[h])}, {pk(TMP[h])}, s[6:7], v[16:17] op_sel_hi:[1,1,0]")
            for h in range(4): A(f"v_pk_mul_f32 {pk(G+2*h)}, {pk(G+2*h)}, {pk(TMP[h])}")
            for h in range(8): A(f"v_exp_f32 v{G+h}, v{G+h}")
            for h in range(4): A(f"v_pk_add_f32 {pk(G+2*h)}, {pk(G+2*h)}, 1.0 op_sel_hi:[1,0]")
            for h in range(8): A(f"v_rcp_f32 v{G+h}, v{G+h}")
            for h in range(4): A(f"v_pk_mul_f32 {pk(U+2*h)}, {pk(U+2*h)}, {pk(G+2*h)}")
            for h in (0, 2, 1, 3): A(f"v_cvt_pk_bf16_f32 v{G+h}, v{U+2*h}, v{U+2*h+1}")
            A(f"v_permlane16_swap_b32 v{G}, v{G+2}\ns_nop 0\nv_permlane16_swap_b32 v{G+1}, v{G+3}")
            A(f"buffer_store_dwordx4 v[{G}:{G+3}], v{vH}, s[{sWS}:{sWS+3}], s{40+(p>>1)} offen offset:{(p&1)*512 + i0*1024}{SC}")
            if b >= ESLOT: nst_after += 1
        pstamp(A, opt, 1, 5)
        A(f"s_cmp_ge_u32 s{sWV}, {NXW}\ns_cbranch_scc1 L_k2_nox2{nm}")
        A(f"s_mov_b32 s55, 0x40000\ns_waitcnt vmcnt({nst_after})")
        A(f"L_k2_poll{nm}:\nv_mov_b32 v18, 1")
        for d in range(7): A(f"v_min3_u32 v18, v18, v{ER+4*d+1}, v{ER+4*d+3}")
        A(f"v_cmp_ne_u32 vcc, 1, v18\ns_cbranch_vccz L_k2_got{nm}\ns_sleep 1")
        for x in eloads: A(x)
        A(f"s_waitcnt vmcnt(0)\ns_sub_u32 s55, s55, 1\ns_cmp_lg_u32 s55, 0\ns_cbranch_scc1 L_k2_poll{nm}\nL_k2_got{nm}:")
        A(f"v_accvgpr_read_b32 v18, a{PAR+32}\nv_accvgpr_read_b32 v19, a{PAR+33}")
        for d in range(7): A(f"v_mov_b32 v{ER+4*d+1}, v{ER+4*d+2}")
        for d in range(1, 7):
            for x in cfma(ER+4*d, ER+4*(d-1), 18): A(x)
        A(f"ds_write_b64 v{vC}, {pk(ER+24)} offset:{HL}\ns_waitcnt lgkmcnt(0)")
        A(f"L_k2_nox2{nm}:")

        def finish(ffn, u):
            if ffn: setup3(True)
            A("s_waitcnt vmcnt(0)\ns_barrier")
            signal(A, sWV, sWS, f"s_lshl_b32 s3, s{sRB}, 7\ns_add_u32 s3, s3, {CNT_H}", 28, f"h{u}")
            pstamp(A, opt, 1, 6)
            CY, HH, PW_, CF, LM = 32, 44, 56, 68, 80
            vW, vRd = 28, 29
            A("v_and_b32 v90, 15, v0\nv_lshlrev_b32 v90, 3, v90")
            for q in range(NS):
                A(f"ds_read_b64 {pk(CY+2*q)}, v{vE} offset:{PL+q*128}\nds_read_b64 {pk(HH+2*q)}, v90 offset:{HL+q*128}")
            for q in range(NS):
                for h in range(2): A(f"v_accvgpr_read_b32 v{PW_+2*q+h}, a{PAR+q*6+4+h}\nv_accvgpr_read_b32 v{CF+2*q+h}, a{PAR+q*6+2+h}\nv_accvgpr_read_b32 v{LM+2*q+h}, a{PAR+q*6+h}")
            TB0 = 110592; TQ = 32*144
            A(f"s_mul_i32 s3, s{sWV}, {2*TQ}\ns_add_u32 s3, s3, {TB0}")
            A(f"v_and_b32 v{vW}, 15, v0\nv_mul_u32_u24 v{vW}, 144, v{vW}\nv_bfe_u32 v91, v0, 4, 2\nv_lshl_add_u32 v{vW}, v91, 5, v{vW}\nv_add_u32 v{vW}, s3, v{vW}")
            A(f"v_bfe_u32 v{vRd}, v0, 5, 1\nv_bfe_u32 v91, v0, 2, 2\nv_lshl_add_u32 v{vRd}, v{vRd}, 3, v91\nv_mul_u32_u24 v{vRd}, 144, v{vRd}\nv_and_b32 v91, 3, v0\nv_lshl_add_u32 v{vRd}, v91, 5, v{vRd}\nv_bfe_u32 v91, v0, 4, 1\nv_lshl_add_u32 v{vRd}, v91, 3, v{vRd}\nv_add_u32 v{vRd}, s3, v{vRd}")
            A(f"s_lshl_b32 s40, s{sTB}, 18\ns_add_u32 s40, s40, {HS_OFF}\ns_lshr_b32 s41, s{sCh}, 4")
            A("s_waitcnt lgkmcnt(0)")
            for h in range(2):
                for q in range(NS): A(cfma(CY+2*q, HH+2*q, PW_+2*q)[h])
            if NS == 1: ST, O0, OB, LD0, LB = 44, 96, 0, 112, 0
            else: ST, O0, OB, LD0, LB = 44, 96, 32, 112, 32
            def calc(q):
                OR_, OI_ = O0 + (q & 1)*OB, O0 + 8 + (q & 1)*OB
                o = []
                for n in range(16):
                    i, r = n >> 2, n & 3
                    c_ = ST + 2*(n & 1); p_ = CY + 2*q if n == 0 else ST + 2*((n-1) & 1); o_ = ST + 4 + 2*(n & 1)
                    o += [rd(c_, jre(q), i, r), rd(c_+1, jim(q), i, r)] + cfma(c_, p_, LM+2*q)
                    o += [f"v_pk_mul_f32 {pk(o_)}, {pk(c_)}, {pk(CF+2*q)} op_sel_hi:[1,0]", cfma(o_, c_, CF+2*q)[1]]
                    if n & 1: o += [f"v_cvt_pk_bf16_f32 v{OR_+(n>>1)}, v{ST+4}, v{ST+6}", f"v_cvt_pk_bf16_f32 v{OI_+(n>>1)}, v{ST+5}, v{ST+7}"]
                return o
            def wr(q):
                o = []
                for part in range(2):
                    b = O0 + 8*part + (q & 1)*OB; off = (q & 1)*TQ + part*16*144
                    o += [f"ds_write_b128 v{vW}, v[{b}:{b+3}] offset:{off}", f"ds_write_b128 v{vW}, v[{b+4}:{b+7}] offset:{off+16}"]
                for part in range(2):
                    for k in range(2):
                        d = LD0 + (q & 1)*LB + (part*2+k)*4
                        o += [f"ds_read_b64_tr_b16 v[{d+2*h}:{d+2*h+1}], v{vRd} offset:{(q & 1)*TQ + (part*16 + 4*h)*144 + k*16}" for h in range(2)]
                return o
            def st(q):
                o = [f"s_add_u32 s42, s41, {q}\ns_lshr_b32 s43, s42, 1\ns_lshl_b32 s43, s43, 12\ns_and_b32 s42, s42, 1\ns_lshl_b32 s42, s42, 9\ns_add_u32 s43, s43, s42\ns_add_u32 s43, s43, s40\ns_add_u32 s42, s43, {32*4096}\ns_waitcnt lgkmcnt(0)"]
                for part in range(2):
                    for k in range(2):
                        d = LD0 + (q & 1)*LB + (part*2+k)*4
                        o.append(f"buffer_store_dwordx4 v[{d}:{d+3}], v{vH}, s[{sWS}:{sWS+3}], s{43-part} offen offset:{k*2048}{SC}")
                return o
            for q in range(NS + 1):
                c = calc(q) if q < NS else []
                side = (wr(q-1) + st(q-1)) if q > 0 else []
                step = max(1, len(c) // max(1, len(side)))
                k = 0
                for n_, x in enumerate(c):
                    A(x)
                    if side and n_ % step == step - 1 and k < len(side): A(side[k]); k += 1
                for x in side[k:]: A(x)
            pstamp(A, opt, 1, 7)
            pstamp(A, opt, 2, 0)
            if ffn:
                A("s_branch L_k3_ffn")
            else:
                A("s_branch L_k3_ssm")
        if NP == 8:
            A(f"s_cmp_eq_u32 s{qRole}, 0\ns_cbranch_scc1 L_finAs")
            finish(True, "Af")
            A("L_finAs:")
            finish(False, "As")
        else:
            finish(False, "B")
    body(8, 1, "A")
    A("L_k2_B:")
    body(4, 5, "B")

    A("L_k3_code:")
    def role(ffn):
        nm = "ffn" if ffn else "ssm"
        A(f"L_k3_{nm}:")
        def frag_reads(j, st, hk, f):
            d = BF + j*4
            if f: return [Op(f"ds_read_b64_tr_b16 a[{d+2*h}:{d+2*h+1}], v{vR[j]} offset:{st*16384 + hk*8192 + h*1024}", 'lds', f"f{j}") for h in range(2)]
            return [Op(f"ds_read_b128 a[{d}:{d+3}], v{vR2[(j>>2)*2 + hk]} offset:{st*16384 + (j&3)*2048}", 'lds', f"f{j}")]
        if not ffn: setup3(False)
        A(cload(vFL, qCnt))
        for j in range(8): emit(frag_reads(j, 0, 0, True))
        wait_word(vFL, qCnt, 32, "ch" + nm, 0)
        emit(proa)
        pstamp(A, opt, 2, 1)
        A(f"s_mov_b32 s{sTrip}, 0\ns_barrier\ns_waitcnt vmcnt(0) lgkmcnt(0)")
        signal(A, sWV, sWS, sigS_addr, t0, "s" + nm)
        if ffn:
            extra = []
            for n in range(8):
                extra += [Op(f"s_add_u32 m0, s{qXL}, {n*1024}"), Op(f"s_add_u32 s3, s{qXo}, {n*16384}"),
                          Op(f"buffer_load_dwordx4 v{vXD}, s[{qO}:{qO+3}], s3 offen lds", 'vm', 'e')]
            for k in range(16):
                if k % 4 == 0 and k: extra.append(Op("s_add_u32 s66, s66, 4096"))
                extra.append(Op(f"buffer_load_dwordx4 v[{SR+k*4}:{SR+k*4+3}], v{vA}, s[{sWS}:{sWS+3}], s66 offen offset:{(k&3)*1024} sc1", 'vm', 'e'))
        else:
            extra = []
            for h in range(2):
                extra.append(Op(f"s_add_u32 m0, s{qXL}, {h*4096}"))
                if h: extra.append(Op(f"s_add_u32 s{qXo}, s{qXo}, 4096"))
                for n in range(4): extra.append(Op(f"buffer_load_dwordx4 v{vA}, s[{sWS}:{sWS+3}], s{qXo} offen offset:{n*1024} lds", 'vm', 'e'))
            for m in range(4): extra.append(Op(f"global_load_ushort v{28+m}, v{vXL}, s[44:45] offset:{m*32}", 'vm', 'e'))
        BARG = opt.get('barg3', 2)
        def trip(cur, nxt, kind):
            body = []
            ex = list(extra) if kind == 'last' else []
            for t in range(8):
                mf = []
                for j in range(8):
                    order = range(4) if j % 2 == 0 else range(3, -1, -1)
                    for n, i in enumerate(order):
                        if kind == 'F': c = f"v[{64+(j*4+i)*4}:{64+(j*4+i)*4+3}]" if j < 4 else f"a[{160+((j-4)*4+i)*4}:{160+((j-4)*4+i)*4+3}]"
                        else: c = f"v[{acc3(j,i)}:{acc3(j,i)+3}]"
                        cin = "0" if (kind in ('F', 'S0') and t == 0) else c
                        mf.append(Op(f"v_mfma_f32_16x16x32_bf16 {c}, a[{AB+t*16+i*4}:{AB+t*16+i*4+3}], a[{BF+j*4}:{BF+j*4+3}], {cin}",
                                     need_vm=(f"x{t}" if (j == 0 and n == 0) else None), need_lds=(f"f{j}" if n == 0 else None)))
                vmo = []
                if kind == 'F' and t + AD == 8:
                    vmo.append(Op(f"s_mov_b32 s55, 0x40000\nL_wcs:\nv_readfirstlane_b32 s3, v{vFL}\ns_cmp_ge_u32 s3, 32\ns_cbranch_scc0 L_k3_spin\nL_gcs:", need_vm='cs'))
                if kind == 'S0' and t >= 4:
                    if t < 7: vmo += a3(AD + 4 + 2*(t-4)) + a3(AD + 5 + 2*(t-4))
                elif kind == 'S1' and t < 2: pass
                elif t + AD < 8 or nxt is not None: vmo += a3(t + AD, switch=(kind == 'F'))
                if kind == 'S0' and t == 7:
                    for k in range(16):
                        if k % 4 == 0 and k: vmo.append(Op("s_add_u32 s66, s66, 4096"))
                        vmo.append(Op(f"buffer_store_dwordx4 v[{64+4*k}:{67+4*k}], v{vA}, s[{sWS}:{sWS+3}], s66 offen offset:{(k&3)*1024} sc1", 'vm', 'ps'))
                sg = (t + 5) >> 1
                if sg < 4: vmo += dma3(sg, (t + 1) % 2, cur)
                elif nxt is not None: vmo += dma3(sg % 4, (t + 1) % 2, nxt)
                if kind == 'F' and t + AD == 6: vmo.append(Op(cload(vFL, qCnt2), 'vm', 'cs'))
                if ffn and kind == 'loop' and t == 4: vmo.append(Op(cload(vFL, 67), 'vm', 'fl'))
                if kind == 'last':
                    nv = sum(1 for o in vmo if o.kind == 'vm')
                    while ex and nv < 8 and t >= 3:
                        o = ex.pop(0); vmo.append(o); nv += o.kind == 'vm'
                    if ffn and t == 7: vmo.append(Op(cload(vFL, qFL), 'vm', 'fl'))
                fin = nxt is None and t == 7
                if t % 2 == 0: st, hk, first = t >> 1, 1, 0
                else: st, hk, first = ((t >> 1) + 1) % 4, 0, BARG*4 - 1
                rd = []
                if not fin:
                    for j in range(8):
                        for o in frag_reads(j, st, hk, nxt if t == 7 else cur): rd.append((max(j*4 + 3, first), o))
                sp = 30.0 / max(1, len(vmo))
                vm = [(int(k*sp), o) for k, o in enumerate(vmo)]
                px = []
                if kind == 'S0':
                    if t in (0, 4):
                        r_ = t >> 2
                        px = [(6 + 3*k, Op(f"ds_write_b128 v{vXD}, a[{160+32*r_+4*k}:{160+32*r_+4*k+3}] offset:{k*1024}", 'lds', 'pw')) for k in range(8)]
                    if t in (1, 2, 5, 6):
                        r_ = t >> 2; k0 = 4*((t - 1) & 1); base = first + 1
                        px = [(base + k, Op(f"ds_read_b128 v[{44+4*k}:{47+4*k}], v27 offset:{(k0+k)*1024}", 'lds', f"pr{k}")) for k in range(4)]
                        for k in range(4):
                            y = 64 + (8*r_ + k0 + k)*4
                            e = base + 9 + 3*k + (k if t % 2 == 0 else 0)
                            px.append((e, Op(f"v_pk_add_f32 {pk(y)}, {pk(y)}, {pk(44+4*k)}\nv_pk_add_f32 {pk(y+2)}, {pk(y+2)}, {pk(46+4*k)}", need_lds=f"pr{k}")))
                slots = spread(32, [rd, vm], per_gap=1)
                slots2 = spread(32, [px], per_gap=1)
                for m in range(32):
                    body.append(mf[m])
                    if t % 2 == 1 and m == first and not fin:
                        body.append(Op("s_waitcnt lgkmcnt(0)", 'lgkm0', need_vm=f"d{st}"))
                        body.append(Op("s_barrier"))
                        if kind == 'S1' and t == 5:
                            body.append(Op(f"s_cmp_eq_u32 s{sWV}, 0\ns_cbranch_scc1 L_k3_sig\nL_k3_sigret:"))
                    body.extend(slots[m]); body.extend(slots2[m])
            assert not ex, len(ex)
            return body
        loop = trip(ffn, ffn, 'loop'); fin = trip(ffn, None, 'last')
        pstamp(A, opt, 2, 2)
        if not ffn:
            tF = trip(True, False, 'F'); tS = trip(False, False, 'S0')
            put(resolve_seq(trip(True, True, 'x'), tF, lgkm_slack=4))
            pstamp(A, opt, 0, 2)
            put(resolve_seq(tF, tS, lgkm_slack=4))
            pstamp(A, opt, 0, 3)
            tS1 = trip(False, False, 'S1')
            put(resolve_seq(tS, tS1, lgkm_slack=4))
            put(resolve_seq(tS1, loop, lgkm_slack=4))
        else:
            A(f".p2align 6\nL_k3_{nm}_loop:")
            put(resolve_loop(loop, lgkm_slack=4))
            A(f"s_add_u32 s{sTrip}, s{sTrip}, 1\ns_cmp_lt_u32 s{sTrip}, 5\ns_cbranch_scc1 L_k3_{nm}_loop")
        if ffn:
            nafter = 0
            for o in reversed(loop):
                if o.tag == 'fl': break
                nafter += o.kind == 'vm'
            wait_word(vFL, 67, 1, "fp", nafter)
        pstamp(A, opt, 0, 4)
        if opt.get('cpf', 1):
            A(f"s_getpc_b64 s[58:59]\nL_pc3{nm}:\ns_add_u32 s58, s58, L_k3_epi{nm}-L_pc3{nm}\ns_addc_u32 s59, s59, 0\nv_lshlrev_b32 v{t0}, 5, v0\nv_min_u32 v{t0}, L_text_end-L_k3_epi{nm}-4, v{t0}\nglobal_load_dword a238, v{t0}, s[58:59]")
        put(resolve_seq(loop, fin, lgkm_slack=4))
        A(f"L_k3_epi{nm}:")
        pstamp(A, opt, 2, 3)
        A(f"s_lshl_b32 s3, s{qKH}, 16\ns_lshl_b32 s4, s{qMH}, 14\ns_add_u32 s3, s3, s4\nv_add_u32 v2, s3, v{vA}\nv_xor_b32 v3, 0x10000, v2")
        XR = 32
        E = acc3(4, 0)
        def sloads():
            for k in range(16):
                if k % 4 == 0 and k: A(f"s_add_u32 s{qS}, s{qS}, 4096")
                A(f"buffer_load_dwordx4 v[{SR+k*4}:{SR+k*4+3}], v{vA}, s[{sWS}:{sWS+3}], s{qS} offen offset:{(k&3)*1024} sc1")
        A("s_nop 4")
        for k in range(16):
            r = E + k*4
            A(f"ds_write_b128 v2, v[{r}:{r+3}] offset:{k*1024}")
        A("s_waitcnt vmcnt(0)")
        for k in range(16):
            m, i = k >> 2, k & 3
            off = (i*512 + m*32) if ffn else ((m >> 1)*4096 + i*1024 + (m & 1)*512)
            A(f"ds_read_b64_tr_b16 v[{XR+2*k}:{XR+2*k+1}], v{vXR} offset:{off}")
        if ffn:
            for k in range(32): A(f"v_pk_add_f32 {pk(ACC+2*k)}, {pk(ACC+2*k)}, {pk(SR+2*k)}")
            A(f"v_readfirstlane_b32 s54, v{vFL}\ns_cmp_eq_u32 s54, 0\ns_cbranch_scc1 L_k3_late")
            sloads()
            A("L_k3_late:")
        A("s_waitcnt lgkmcnt(0)\ns_barrier")
        pstamp(A, opt, 2, 4)
        for k in range(16): A(f"ds_read_b128 v[{E+k*4}:{E+k*4+3}], v3 offset:{k*1024}")
        if not ffn: pstamp(A, opt, 2, 5)
        if ffn:
            srd(A, qO, 46, 47, 2048*1024*4)
            A(f"s_mov_b32 s4, {hx(f2u(-LOG2E))}\ns_mov_b32 s5, s4\ns_lshl_b32 s{qXo}, s{qXo}, 1")
            for r in range(16): A(f"s_add_u32 s{27+r}, s{qXo}, {r*4096}")
            KS = opt.get('ks', 6)
            def gate(k):
                y = ACC + k*4; e = E + k*4; xr = XR + 2*k
                o = [f"s_waitcnt lgkmcnt({15-k})"]
                o += [f"v_pk_add_f32 {pk(y+h)}, {pk(y+h)}, {pk(e+h)}" for h in (0, 2)]
                o += [f"v_pk_mul_f32 {pk(e+h)}, {pk(y+h)}, s[4:5]" for h in (0, 2)]
                o += [f"v_exp_f32 v{e+h}, v{e+h}" for h in range(4)] + ["s_nop 0"]
                o += [f"v_pk_add_f32 {pk(e+h)}, {pk(e+h)}, 1.0 op_sel_hi:[1,0]" for h in (0, 2)]
                o += [f"v_rcp_f32 v{e+h}, v{e+h}" for h in range(4)] + ["s_nop 0"]
                o += [f"v_pk_mul_f32 {pk(y+h)}, {pk(y+h)}, {pk(e+h)}" for h in (0, 2)]
                o += [f"v_lshlrev_b32 v{e}, 16, v{xr}", f"v_and_b32 v{e+1}, 0xffff0000, v{xr}", f"v_lshlrev_b32 v{e+2}, 16, v{xr+1}", f"v_and_b32 v{e+3}, 0xffff0000, v{xr+1}"]
                return o
            def outp(k):
                m, i = k >> 2, k & 3
                y = ACC + k*4; e = E + k*4; s_ = SR + k*4
                o = [f"s_waitcnt vmcnt({min(63, 15-k+4*k)})\n" + "\n".join(f"v_pk_fma_f32 {pk(e+h)}, {pk(y+h)}, {pk(s_+h)}, {pk(e+h)}" for h in (0, 2))]
                o += [f"buffer_store_dword v{e+r}, v{vXL}, s[{qO}:{qO+3}], s{27+4*i+r} offen offset:{m*64}{OSC}" for r in range(4)]
                return o
            A(cload(vFL, qFL))
            for k in range(KS - 3):
                for x in gate(k): A(x)
            pstamp(A, opt, 2, 5)
            A("s_cmp_lg_u32 s54, 0\ns_cbranch_scc1 L_k3_have")
            wait_word(vFL, qFL, 1, "fs", 0)
            sloads()
            A("L_k3_have:")
            for k in range(KS - 3, KS):
                for x in gate(k): A(x)
            gs = [(k, x) for k in range(KS, 16) for x in gate(k)]
            os_ = [(k, x) for k in range(16) for x in outp(k)]
            oi = 0
            for n_, (k, x) in enumerate(gs):
                A(x)
                if n_ % 3 == 2 and oi < len(os_) and os_[oi][0] < k: A(os_[oi][1]); oi += 1
            for k, x in os_[oi:]: A(x)
            pstamp(A, opt, 2, 6)
            if opt.get('prof'): A("s_waitcnt vmcnt(0)")
            pstamp(A, opt, 2, 7)
            A("s_endpgm")
        else:
            A(f"s_cmp_eq_u32 s{qKH}, 0\ns_cselect_b32 s4, 2.0, -2.0\ns_mov_b32 s5, s4")
            for k in range(16):
                m, i = k >> 2, k & 3
                y = ACC + k*4; e = E + k*4; xr = XR + 2*k
                if i == 0: A(f"v_lshlrev_b32 v10, 16, v{28+m}")
                A(f"v_lshlrev_b32 v4, 16, v{xr}\nv_and_b32 v5, 0xffff0000, v{xr}\nv_lshlrev_b32 v6, 16, v{xr+1}\nv_and_b32 v7, 0xffff0000, v{xr+1}")
                A("v_pk_mul_f32 v[4:5], v[4:5], v[10:11] op_sel_hi:[1,0]\nv_pk_mul_f32 v[6:7], v[6:7], v[10:11] op_sel_hi:[1,0]")
                A("v_cvt_pk_bf16_f32 v12, v4, v5\nv_cvt_pk_bf16_f32 v13, v6, v7")
                A("v_lshlrev_b32 v4, 16, v12\nv_and_b32 v5, 0xffff0000, v12\nv_lshlrev_b32 v6, 16, v13\nv_and_b32 v7, 0xffff0000, v13")
                A(f"s_waitcnt lgkmcnt({15-k})")
                for h in (0, 2): A(f"v_pk_add_f32 {pk(y+h)}, {pk(y+h)}, {pk(e+h)} neg_lo:[0,1] neg_hi:[0,1]")
                for h in (0, 2): A(f"v_pk_fma_f32 {pk(y+h)}, {pk(y+h)}, s[4:5], {pk(4+h)}")
                if k % 4 == 0 and k: A(f"s_add_u32 s{qS}, s{qS}, 4096")
                A(f"buffer_store_dwordx4 v[{y}:{y+3}], v{vA}, s[{sWS}:{sWS+3}], s{qS} offen offset:{(k&3)*1024} sc1")
            pstamp(A, opt, 2, 6)
            A("s_waitcnt vmcnt(0)\ns_barrier")
            signal(A, sWV, sWS, f"s_mov_b32 s3, s{qFL}", 2, "fl")
            pstamp(A, opt, 2, 7)
            A("s_endpgm")
            A("L_k3_sig:")
            signal(A, sWV, sWS, "s_mov_b32 s3, s67", t0, "pf")
            A("s_branch L_k3_sigret")
            A("L_k3_spin:\ns_sleep 1\n" + cload(vFL, qCnt2) + "\ns_waitcnt vmcnt(0)\ns_sub_u32 s55, s55, 1\ns_cmp_lg_u32 s55, 0\ns_cbranch_scc1 L_wcs\ns_branch L_gcs")
    role(True)
    role(False)
    A("L_end:\ns_endpgm")
    return kernel_desc("main_kernel", 512, 256, 102)
```

```python
from gen import *

def pstamp(A, opt, k, n, early=False):
    if not opt.get('prof'): return
    A("s_memtime s[96:97]\ns_memrealtime s[98:99]\ns_waitcnt lgkmcnt(0)")
    if early: A("s_mov_b32 s94, s96\ns_mov_b32 s95, s98"); return
    A(f"v_accvgpr_write_b32 a254, s96\nv_accvgpr_write_b32 a255, s98\ns_add_u32 s101, s100, {k*0x10000}\nbuffer_store_dwordx2 a[254:255], off, s[20:23], s101 offset:{n*8}")

def gen_main(A, opt):
    kernel_head(A, "main_kernel")
    pk = lambda r: f"v[{r}:{r+1}]"
    WSZ = WS_SIZE if opt.get('prof') else WSB + 0x2300000 + 0x800000
    WF = 64; XB = 136; PAR = 200; STASH = 240
    vWD = list(range(1, 10)); vX = 10
    vRW = [11, 12]; vRB = [[13, 14], [15, 16]]
    L = 18; t0, t1, t2, t3 = 19, 20, 21, 22
    vP = [23, 24]
    sW, sB, sX, sWS = 8, 12, 16, 20
    sRB, sU, sWV = 24, 25, 26
    sWoff, sBoff, sXoff = 27, 28, 29
    sM = [30, 31]; sMB = [32, 33]
    sDelta, sTrip, sTB, sCol, sCh = 34, 35, 36, 37, 38
    XD = 3
    WNT = " nt" if opt.get('wnt', 1) else ""
    SC = " sc1"
    PF = opt.get('pft', 9) == 9
    ACC = 128
    acc3 = lambda j, i: ACC + (j*4+i)*4
    BF = 0; AB = 32
    AD = opt.get('ad3', 2)
    OSC = ["", " sc1", " nt"][opt.get('osc', 2)]
    vD = list(range(1, 9)); vA = 9; vR = list(range(10, 18))
    vXL, vXD, vXR, vFL = 23, 24, 25, 26
    SR = 64; XLDS = 131072
    qRB, qCB, qKH, qMH, qRole, qTB = 60, 61, 62, 63, 64, 65
    qB = 68; qPB = [72, 73, 74, 75]; qM, qBb, qBoff, qRho = 76, 77, 78, 79
    qA, qO, qC = 20, 12, 8
    vD2 = list(range(32, 40)); vR2 = list(range(40, 44)); qPC = [16, 17, 18, 19]; qCb, qAb2, qCnt2 = 91, 92, 93
    P_OFF = WSB + 0x2300000
    qPA = [80, 81, 82, 83]; qAb, qAoff, qFL, qS, qXo, qXL, qCnt = 84, 85, 86, 87, 88, 89, 90
    CNT_H = FL_OFF + 256*128; CNT_S = FL_OFF + 512*128; vFO = 44; CNT_X = FL_OFF + 768*128
    def put(lines):
        prev = ""
        for x in lines:
            if ' m0,' in prev and x.endswith('lds'): A("s_nop 0")
            A(x); prev = x
    emit = lambda ops: put([o.text for o in ops])

    A("s_cmp_ge_u32 s2, 256\ns_cbranch_scc1 L_end")
    pstamp(A, opt, 1, 0, early=True)
    A(f"s_load_dwordx2 s[60:61], s[0:1], {KA['x']}")
    A(f"s_load_dwordx4 s[48:51], s[0:1], {KA['dbg']}")
    A(f"s_load_dwordx4 s[40:43], s[0:1], {KA['wg']}")
    A(f"s_load_dwordx4 s[44:47], s[0:1], {KA['bre']}")
    A(f"s_load_dwordx4 s[64:67], s[0:1], {KA['lre']}")
    A(f"s_load_dwordx2 s[62:63], s[0:1], {KA['ldt']}")
    A(f"s_load_dwordx4 s[52:55], s[0:1], {KA['cre']}")
    A(f"s_load_dwordx2 s[56:57], s[0:1], {KA['wd']}")
    A(f"v_lshrrev_b32 v17, 6, v0\nv_and_b32 v{L}, 63, v0")
    A(f"s_and_b32 s3, s2, 7\ns_bfe_u32 s{sU}, s2, 0x20003\ns_lshr_b32 s{sRB}, s2, 5")
    A(f"v_readfirstlane_b32 s{sWV}, v17")
    A(f"s_mul_i32 s{sCol}, s3, 448\ns_lshl_b32 s4, s{sU}, 7\ns_add_u32 s{sCol}, s{sCol}, s4")
    A(f"s_lshl_b32 s{sCh}, s3, 7\ns_lshl_b32 s4, s{sU}, 4\ns_add_u32 s{sCh}, s{sCh}, s4")
    A(f"v_lshlrev_b32 v{vX}, 4, v{L}")
    A(f"s_lshl_b32 s{sTB}, s{sRB}, 2\ns_add_u32 s{sTB}, s{sTB}, s{sWV}\ns_lshl_b32 s{sXoff}, s{sTB}, 17")
    if XN_OFF: A(f"s_add_u32 s{sXoff}, s{sXoff}, {XN_OFF}")
    A(f"s_mov_b32 s{sWoff}, 0\ns_mov_b32 s{sBoff}, 0\ns_mov_b32 s{sDelta}, {2*STAGE2}")
    A(f"s_mov_b32 s{sW+2}, {1024*3584*2}\ns_mov_b32 s{sW+3}, 0x00020000\ns_mov_b32 s{sB+2}, {1024*1024*2}\ns_mov_b32 s{sB+3}, 0x00020000")
    A(f"s_and_b32 s5, s{sWV}, 1\ns_mul_i32 s6, s5, {32*7168}\ns_lshl_b32 s7, s{sCol}, 1\ns_add_u32 s6, s6, s7\ns_movk_i32 s7, 7168")
    vLS, vLW, vLR, vCH = 25, 26, 27, 28
    PB = 4*STAGE2; PWL = PB + 1280; LNL = PB + 11520
    A("v_and_b32 v29, 7, v0\nv_lshrrev_b32 v30, 3, v0")
    A("s_lshr_b32 s68, s2, 3\ns_bfe_u32 s69, s2, 0x10002\ns_and_b32 s70, s2, 3")
    A("s_lshl_b32 s71, s68, 6\ns_lshl_b32 s3, s69, 5\ns_add_u32 s71, s71, s3\ns_lshl_b32 s3, s70, 2\ns_add_u32 s71, s71, s3")
    A(f"v_lshrrev_b32 v{t0}, 2, v29\nv_lshlrev_b32 v{t0}, 4, v{t0}\nv_and_b32 v{t1}, 3, v29\nv_add3_u32 v{t0}, v{t0}, v{t1}, s71\nv_lshlrev_b32 v{t0}, 11, v{t0}\nv_lshl_add_u32 v{t0}, v30, 4, v{t0}")
    A(f"s_cmp_eq_u32 s{sU}, 3\ns_cselect_b32 s3, 79, 15\nv_min_u32 v{vCH}, s3, v0\nv_add_lshl_u32 v{t1}, v{vCH}, s{sCh}, 1\nv_lshlrev_b32 v{vCH}, 3, v{vCH}")
    A("s_waitcnt lgkmcnt(0)")
    srd(A, sWS, 50, 51, WSZ)
    A(f"s_cmp_lt_u32 s{sWV}, 2\ns_cselect_b32 s{sW}, s40, s42\ns_cselect_b32 s{sW+1}, s41, s43\ns_cselect_b32 s{sB}, s44, s46\ns_cselect_b32 s{sB+1}, s45, s47")
    A(f"s_cselect_b32 s52, s52, s54\ns_cselect_b32 s53, s53, s55")
    A("s_cmp_ge_u32 s2, 16\ns_cbranch_scc1 L_noclr")
    A("s_cmp_lt_u32 s2, 7\ns_cselect_b32 s3, 1, 0\nv_mov_b32 v32, 0\nv_mov_b32 v33, s3\nv_mov_b32 v34, 0\nv_mov_b32 v35, s3\nv_lshlrev_b32 v36, 4, v0\nv_lshrrev_b32 v37, 2, v0\nv_lshlrev_b32 v37, 7, v37")
    A(f"s_lshl_b32 s3, s2, 13\ns_add_u32 s3, s3, {FL_OFF}\nbuffer_store_dword v32, v37, s[{sWS}:{sWS+3}], s3 offen sc1")
    A(f"s_lshl_b32 s3, s2, 14\ns_add_u32 s3, s3, {EX_OFF}")
    for k in range(4): A(f"buffer_store_dwordx4 v[32:35], v36, s[{sWS}:{sWS+3}], s3 offen sc1\ns_add_u32 s3, s3, 4096")
    A("L_noclr:")
    for m in range(4): A(f"global_load_dwordx4 v[{40+4*m}:{43+4*m}], v{t0}, s[60:61] offset:{m*512}")
    A(f"global_load_ushort v56, v{t1}, s[64:65]\nglobal_load_ushort v57, v{t1}, s[66:67]\nglobal_load_ushort v58, v{t1}, s[62:63]")
    NE = 3
    PFR = opt.get('pfr', 6)
    if PFR:
        A(f"v_bfe_u32 v{t2}, v0, 3, 4\nv_min_u32 v{t2}, {PFR-1}, v{t2}\nv_min_u32 v{t3}, 6, v29\ns_mul_i32 s3, s68, {PFR}\nv_add_u32 v{t2}, s3, v{t2}\nv_mul_u32_u24 v{t2}, s7, v{t2}")
        A(f"s_and_b32 s3, s2, 7\ns_mul_i32 s3, s3, 896\nv_lshl_add_u32 v{t2}, v{t3}, 7, v{t2}\nbuffer_load_dword a236, v{t2}, s[{sW}:{sW+3}], s3 offen")
        A(f"s_and_b32 s3, s2, 7\ns_lshl_b32 s3, s3, 18\ns_lshl_b32 s4, s68, 13\ns_add_u32 s3, s3, s4\nv_and_b32 v{t2}, 15, v0\nv_min_u32 v{t2}, {PFR//2-1}, v{t2}\nv_bfe_u32 v{t3}, v0, 4, 2\nv_lshlrev_b32 v{t3}, 11, v{t3}\nv_lshl_add_u32 v{t2}, v{t2}, 7, v{t3}")
        A(f"buffer_load_dword a236, v{t2}, s[{sB}:{sB+3}], s3 offen")
        NE += 2
    if opt.get('cpf', 1):
        code_prefetch(A, "L_noclr", "L_text_end", 58, t2, "a237", opt.get("cpfn", 24), "1", back=True); NE += 1
    A("s_cmp_ge_u32 s2, 16\ns_cbranch_scc1 L_noclr2")
    A(f"s_waitcnt vmcnt({4+NE})\ns_barrier\ns_cmp_lg_u32 s{sWV}, 0\ns_cbranch_scc1 L_noclr2")
    A("s_lshl_b32 s3, s2, 2\nv_mov_b32 v36, s3\nv_mov_b32 v37, 1\ns_mov_b64 exec, 1\nglobal_store_dword v36, v37, s[48:49] sc1\ns_mov_b64 exec, -1")
    A("L_noclr2:")
    A(f"s_lshl_b32 s71, s68, 17\ns_lshl_b32 s3, s70, 10\ns_add_u32 s71, s71, s3\ns_lshl_b32 s3, s69, 7\ns_add_u32 s71, s71, s3")
    if XN_OFF: A(f"s_add_u32 s71, s71, {XN_OFF}")
    A(f"v_lshrrev_b32 v{vLS}, 2, v30\nv_lshlrev_b32 v{vLS}, 12, v{vLS}\nv_and_b32 v{t2}, 3, v30\nv_lshlrev_b32 v{t2}, 8, v{t2}\nv_add3_u32 v{vLS}, v{vLS}, v{t2}, s71\nv_lshl_add_u32 v{vLS}, v29, 4, v{vLS}")
    A(f"v_lshlrev_b32 v{vLR}, 4, v29\nv_add_u32 v{vLR}, {LNL}, v{vLR}\nv_lshl_add_u32 v{vLW}, v17, 2, v{vLR}")
    A(f"s_cmp_eq_u32 s{sU}, 3\ns_cbranch_scc1 L_k2_B")

    def dma3(st, part, ffn=True):
        D, B, PB, Bb, BSH = (vD, qB, qPB, qBb, 17) if ffn else (vD2, qC, qPC, qCb, 7)
        o = []
        if part == 0: o.append(Op(f"s_add_u32 s{qBoff}, s{Bb}, s{PB[st]}"))
        o.append(Op(f"s_add_u32 m0, s{qM}, {st*16384 + part*4096}"))
        for n in range(4*part, 4*part+4):
            o.append(Op(f"buffer_load_dwordx4 v{D[n]}, s[{B}:{B+3}], s{qBoff} offen offset:{(n&3)*1024} lds", 'vm', f"d{st}"))
        if part == 1 and st == 3: o.append(Op(f"s_add_u32 s{Bb}, s{Bb}, {4 << BSH}"))
        return o
    def a3(ts, switch=False):
        ts %= 8
        o = [Op(f"s_add_u32 s{qAoff}, s{qAb}, s{qPA[ts >> 1]}") if ts % 2 == 0 else Op(f"s_add_u32 s{qAoff}, s{qAoff}, 4096")]
        for i in range(4):
            r = AB + ts*16 + i*4
            o.append(Op(f"buffer_load_dwordx4 a[{r}:{r+3}], v{vA}, s[{qA}:{qA+3}], s{qAoff} offen offset:{i*1024} sc1", 'vm', f"x{ts}"))
        if ts == 7: o.append(Op(f"s_mov_b32 s{qAb}, s{qAb2}") if switch else Op(f"s_add_u32 s{qAb}, s{qAb}, 32768"))
        return o
    def early3(nm, can_ffn):
        A(f"s_bfe_u32 s{qRole}, s2, 0x10004\ns_xor_b32 s{qRole}, s{qRole}, 1")
        A(f"s_bfe_u32 s4, s2, 0x20006\ns_bfe_u32 s6, s2, 0x10005\ns_lshl_b32 s6, s6, 1\ns_bfe_u32 s3, s2, 0x10003\ns_add_u32 s6, s6, s3")
        A(f"s_bfe_u32 s3, s2, 0x20001\ns_lshl_b32 s3, s3, 2\ns_add_u32 s{qRB}, s3, s4\ns_and_b32 s3, s2, 1\ns_lshl_b32 s3, s3, 2\ns_add_u32 s{qCB}, s3, s6")
        A(f"s_add_u32 s{qRho}, s4, s6\ns_and_b32 s{qRho}, s{qRho}, 3")
        A(f"s_lshr_b32 s{qKH}, s{sWV}, 1\ns_and_b32 s{qMH}, s{sWV}, 1\ns_lshl_b32 s{qTB}, s{qRB}, 1\ns_add_u32 s{qTB}, s{qTB}, s{qMH}")
        A(f"s_lshl_b32 s{qM}, s{qKH}, 16\ns_lshl_b32 s3, s{qMH}, 13\ns_add_u32 s{qM}, s{qM}, s3\ns_mov_b32 s{qB+3}, 0x00020000")
        for n in range(4): A(f"s_xor_b32 s{qPB[n]}, s{qRho}, {n}\ns_lshl_b32 s{qPB[n]}, s{qPB[n]}, 17")
        A(f"s_lshl_b32 s3, s{qMH}, 16\ns_lshl_b32 s4, s{qCB}, 8\ns_add_u32 s3, s3, s4")
        A(f"v_lshrrev_b32 v{t0}, 4, v{L}\nv_bfe_u32 v{t1}, v{L}, 1, 3\nv_xor_b32 v{t1}, v{t1}, v{t0}\nv_and_b32 v{t2}, 1, v{L}")
        A(f"v_lshlrev_b32 v{t2}, 4, v{t2}\nv_lshl_add_u32 v{t2}, v{t0}, 11, v{t2}\nv_add_u32 v{t2}, s3, v{t2}")
        A(f"v_lshl_add_u32 v{t0}, v{t1}, 5, v{t2}\nv_xor_b32 v{t1}, 4, v{t1}\nv_lshl_add_u32 v{t1}, v{t1}, 5, v{t2}")
        for n in range(8):
            A(f"v_add_u32 v{t2}, {n*8192 - (n&3)*1024}, v{t1 if (n>>1)&1 else t0}\nv_accvgpr_write_b32 a{STASH+n}, v{t2}")
        A(f"s_mul_i32 s{qBb}, s{qKH}, {1792*2048}\ns_lshl_b32 s3, s{qRole}, 19\ns_add_u32 s{qBb}, s{qBb}, s3")
        A(f"s_mov_b32 s{qB}, s56\ns_mov_b32 s{qB+1}, s57\ns_mov_b32 s{qB+2}, {3584*1024*2}")
    def setup3(ffn):
        A(f"s_load_dwordx2 s[44:45], s[0:1], {KA['x'] if ffn else KA['dsk']}\ns_load_dwordx2 s[46:47], s[0:1], {KA['out']}")
        for n in range(8): A(f"v_accvgpr_read_b32 v{vD[n]}, a{STASH+n}")
        A(f"v_and_b32 v{L}, 63, v0\nv_lshlrev_b32 v{vA}, 4, v{L}")
        for n in range(4): A(f"s_xor_b32 s{qPA[n]}, s{qRho}, {n}\ns_lshl_b32 s{qPA[n]}, s{qPA[n]}, 13")
        A(f"s_lshl_b32 s3, s{qRB}, 3\ns_add_u32 s3, s3, s{qCB}\ns_lshl_b32 s{qFL}, s3, 7\ns_add_u32 s{qFL}, s{qFL}, {FL_OFF}")
        A(f"s_lshl_b32 s{qS}, s3, 16\ns_lshl_b32 s3, s{sWV}, 14\ns_add_u32 s{qS}, s{qS}, s3\ns_add_u32 s{qS}, s{qS}, {S_OFF}")
        A(f"s_lshr_b32 s{qCnt}, s{qRB}, 1\ns_lshl_b32 s{qCnt}, s{qCnt}, 12\ns_add_u32 s{qCnt2}, s{qCnt}, {CNT_S}\ns_add_u32 s{qCnt}, s{qCnt}, {CNT_H}")
        A(f"s_lshl_b32 s{qXL}, s{sWV}, 13\ns_add_u32 s{qXL}, s{qXL}, {XLDS}")
        A(f"s_mul_i32 s{qAb}, s{qTB}, 112\ns_mul_i32 s3, s{qKH}, 56\ns_add_u32 s{qAb}, s{qAb}, s3\ns_lshl_b32 s{qAb}, s{qAb}, 12\ns_add_u32 s{qAb}, s{qAb}, {H_OFF + (32768 if ffn else 0)}")
        A(f"v_bfe_u32 v{t0}, v{L}, 2, 2\nv_lshrrev_b32 v{t1}, 4, v{L}\nv_lshl_add_u32 v{t2}, v{t1}, 3, v{t0}\nv_lshlrev_b32 v{t2}, 8, v{t2}")
        A(f"v_and_b32 v{t3}, 3, v{L}\nv_lshl_add_u32 v{t2}, v{t3}, 3, v{t2}\ns_lshl_b32 s3, s{qKH}, 16\nv_add_u32 v{t2}, s3, v{t2}")
        A(f"v_bfe_u32 v{t0}, v{L}, 2, 3\ns_lshl_b32 s3, s{qKH}, 2\nv_xor_b32 v{t0}, s3, v{t0}")
        for j in range(8): A(f"v_xor_b32 v{t1}, {j}, v{t0}\nv_lshl_add_u32 v{vR[j]}, v{t1}, 5, v{t2}")
        if ffn:
            A(f"v_lshrrev_b32 v{t0}, 3, v{L}\nv_and_b32 v{t1}, 7, v{L}\nv_lshlrev_b32 v{t0}, 11, v{t0}\nv_lshl_add_u32 v{vXD}, v{t1}, 4, v{t0}")
            A(f"s_lshl_b32 s{qXo}, s{qTB}, 17\ns_lshl_b32 s3, s{qCB}, 8\ns_add_u32 s{qXo}, s{qXo}, s3\ns_lshl_b32 s3, s{qKH}, 7\ns_add_u32 s{qXo}, s{qXo}, s3")
            A(f"v_lshrrev_b32 v{t0}, 4, v{L}\nv_bfe_u32 v{t1}, v{L}, 2, 2\nv_lshl_add_u32 v{t0}, v{t0}, 4, v{t1}\nv_lshlrev_b32 v{t0}, 7, v{t0}")
            A(f"v_and_b32 v{t1}, 3, v{L}\nv_lshl_add_u32 v{t0}, v{t1}, 3, v{t0}\nv_add_u32 v{vXR}, s{qXL}, v{t0}")
            A(f"v_lshrrev_b32 v{t0}, 4, v{L}\nv_lshlrev_b32 v{t0}, 16, v{t0}\nv_and_b32 v{t1}, 15, v{L}\nv_lshl_add_u32 v{vXL}, v{t1}, 2, v{t0}")
            for r in range(128, 256): A(f"v_mov_b32 v{r}, 0")
        else:
            for n in range(4): A(f"s_lshr_b32 s{qPC[n]}, s{qPA[n]}, 6")
            A(f"s_lshl_b32 s3, s{qCB}, 18\ns_lshl_b32 s4, s{qMH}, 17\ns_add_u32 s3, s3, s4")
            A(f"v_lshrrev_b32 v{t0}, 4, v{L}\nv_and_b32 v{t1}, 7, v{L}\nv_xor_b32 v{t1}, v{t1}, v{t0}\nv_lshrrev_b32 v{t2}, 3, v{L}")
            A(f"v_lshlrev_b32 v{t2}, 11, v{t2}\nv_add_u32 v{t2}, s3, v{t2}")
            A(f"v_lshl_add_u32 v{t0}, v{t1}, 4, v{t2}\nv_xor_b32 v{t1}, 4, v{t1}\nv_lshl_add_u32 v{t1}, v{t1}, 4, v{t2}")
            for n in range(8): A(f"v_add_u32 v{vD2[n]}, {n*16384 - (n&3)*1024}, v{t1 if n&1 else t0}")
            A(f"s_mov_b32 s{qCb}, 0")
            srd(A, qC, 52, 53, 1024*1024*2)
            A(f"s_lshl_b32 s{qAb2}, s{qTB}, 1\ns_add_u32 s{qAb2}, s{qAb2}, s{qKH}\ns_lshl_b32 s{qAb2}, s{qAb2}, 17\ns_add_u32 s{qAb2}, s{qAb2}, {HS_OFF}")
            A(f"v_and_b32 v{t0}, 15, v{L}\nv_lshrrev_b32 v{t1}, 1, v{t0}\nv_lshrrev_b32 v{t2}, 4, v{L}\nv_xor_b32 v{t1}, v{t1}, v{t2}\nv_lshlrev_b32 v{t1}, 4, v{t1}")
            A(f"v_lshl_add_u32 v{t0}, v{t0}, 7, v{t1}\ns_mul_i32 s3, s{qKH}, {65536+8192}\nv_add_u32 v{vR2[0]}, s3, v{t0}\nv_xor_b32 v{vR2[1]}, 64, v{vR2[0]}")
            A(f"v_xor_b32 v{vR2[2]}, 8192, v{vR2[0]}\nv_xor_b32 v{vR2[3]}, 8192, v{vR2[1]}")
            A(f"s_lshl_b32 s{qXo}, s{qTB}, 5\ns_lshl_b32 s3, s{qCB}, 2\ns_add_u32 s{qXo}, s{qXo}, s3\ns_lshl_b32 s3, s{qKH}, 1\ns_add_u32 s{qXo}, s{qXo}, s3\ns_lshl_b32 s{qXo}, s{qXo}, 12")
            if XN_OFF: A(f"s_add_u32 s{qXo}, s{qXo}, {XN_OFF}")
            A(f"v_bfe_u32 v{t0}, v{L}, 1, 1\nv_lshlrev_b32 v{t0}, 8, v{t0}\nv_lshrrev_b32 v{t1}, 2, v{L}\nv_lshl_add_u32 v{t0}, v{t1}, 4, v{t0}")
            A(f"v_and_b32 v{t1}, 1, v{L}\nv_lshl_add_u32 v{t0}, v{t1}, 3, v{t0}\nv_add_u32 v{vXR}, s{qXL}, v{t0}")
            A(f"s_lshl_b32 s3, s{qCB}, 8\ns_lshl_b32 s4, s{qKH}, 7\ns_add_u32 s3, s3, s4\nv_and_b32 v{t0}, 15, v{L}\nv_lshl_add_u32 v{vXL}, v{t0}, 1, s3")
            A(f"v_add_u32 v{vXD}, s{qXL}, v{vA}\nv_xor_b32 v27, 0x4000, v{vXD}")
        A(f"s_add_u32 s66, s{qS}, {P_OFF - S_OFF}\ns_add_u32 s67, s{qFL}, {128*128}")
        A("s_waitcnt lgkmcnt(0)")
        if ffn: srd(A, qO, 44, 45, 2048*1024*2)
    cload = lambda v, s_: f"buffer_load_dword v{v}, off, s[{sWS}:{sWS+3}], s{s_} sc1"
    def wait_word(v, s_, target, uid, first_wait):
        A(f"s_mov_b32 s55, 0x40000\ns_waitcnt vmcnt({first_wait})")
        A(f"L_w{uid}:\nv_readfirstlane_b32 s3, v{v}\ns_cmp_ge_u32 s3, {target}\ns_cbranch_scc1 L_g{uid}\ns_sleep 1")
        A(cload(v, s_) + "\ns_waitcnt vmcnt(0)")
        A(f"s_sub_u32 s55, s55, 1\ns_cmp_lg_u32 s55, 0\ns_cbranch_scc1 L_w{uid}\nL_g{uid}:")
    sigS_addr = f"s_lshl_b32 s3, s2, 7\ns_add_u32 s3, s3, {CNT_S}"
    mload = lambda s_: f"buffer_load_dword v{vFL}, v{vFO}, s[{sWS}:{sWS+3}], s{s_} offen sc1"
    def wait_all(s_, uid):
        A(f"s_mov_b32 s55, 0x40000\ns_waitcnt vmcnt(0)")
        A(f"L_w{uid}:\nv_cmp_ne_u32 vcc, 1, v{vFL}\ns_cbranch_vccz L_g{uid}\ns_sleep 1")
        A(mload(s_) + "\ns_waitcnt vmcnt(0)")
        A(f"s_sub_u32 s55, s55, 1\ns_cmp_lg_u32 s55, 0\ns_cbranch_scc1 L_w{uid}\nL_g{uid}:")
    proa = []
    for t_ in range(-AD, 0): proa += a3(t_ + AD)

    def body(NP, NS, nm):
        NT = 2*NP + 2*NS
        NWI = 8 if NP == 8 else 4
        WB = 8448 if NP == 8 else 4224
        BOFF = 4*WB
        NCH = 16*NS
        def acc(j, i): return ('v', 32 + (j*4+i)*4) if j < 14 else ('a', ((j-14)*4+i)*4)
        def rd(dst, j, i, r):
            f, b = acc(j, i)
            return f"v_mov_b32 v{dst}, v{b+r}" if f == 'v' else f"v_accvgpr_read_b32 v{dst}, a{b+r}"
        jre = lambda q: 2*NP + q
        jim = lambda q: 2*NP + NS + q
        if NP == 8:
            A(f"v_bfe_u32 v{t0}, v{L}, 4, 1\nv_bfe_u32 v{t1}, v{L}, 5, 1\nv_lshlrev_b32 v{t0}, 2, v{t0}\nv_lshl_or_b32 v{t0}, v{t1}, 4, v{t0}\nv_and_b32 v{t1}, 15, v{L}")
        else:
            A(f"v_bfe_u32 v{t0}, v{L}, 3, 1\nv_bfe_u32 v{t1}, v{L}, 4, 1\nv_lshlrev_b32 v{t0}, 3, v{t0}\nv_lshl_or_b32 v{t0}, v{t1}, 2, v{t0}\nv_bfe_u32 v{t1}, v{L}, 5, 1\nv_lshl_or_b32 v{t0}, v{t1}, 4, v{t0}\nv_and_b32 v{t1}, 7, v{L}")
        A(f"v_mul_u32_u24 v{t0}, s7, v{t0}\nv_lshl_add_u32 v{t0}, v{t1}, 4, v{t0}\nv_add_u32 v{vWD[0]}, s6, v{t0}")
        for n in range(1, NWI): A(f"v_add_u32 v{vWD[n]}, {((n&3) + 8*(n>>2))*7168 - (n&3)*1056}, v{vWD[0]}")
        vBD = vWD[NWI:NWI+NS]
        A(f"s_mul_i32 s3, s5, {8*NS}\ns_add_u32 s3, s3, s{sCh}\ns_lshl_b32 s3, s3, 11\ns_lshl_b32 s4, s5, 2")
        A(f"v_lshrrev_b32 v{t0}, 4, v{L}\nv_and_b32 v{t1}, 7, v{L}\nv_xor_b32 v{t1}, v{t1}, v{t0}\nv_xor_b32 v{t1}, s4, v{t1}\nv_lshrrev_b32 v{t2}, 3, v{L}\nv_lshlrev_b32 v{t2}, 11, v{t2}\nv_add_u32 v{t2}, s3, v{t2}")
        A(f"v_lshl_add_u32 v{vBD[0]}, v{t1}, 4, v{t2}")
        if NS > 1:
            A(f"v_xor_b32 v{t1}, 64, v{vBD[0]}")
            for n in range(1, NS): A(f"v_add_u32 v{vBD[n]}, {n*16384 - (n&3)*1024}, v{t1 if n&1 else vBD[0]}")
        A(f"s_mul_i32 s{sM[0]}, s{sWV}, {WB}\ns_add_u32 s{sM[1]}, s{sM[0]}, {STAGE2}")
        A(f"s_mul_i32 s{sMB[0]}, s{sWV}, {NS*1024}\ns_add_u32 s{sMB[0]}, s{sMB[0]}, {BOFF}\ns_add_u32 s{sMB[1]}, s{sMB[0]}, {STAGE2}")
        srd(A, sX, 50, 51, XN_OFF + 2048*1024*2)
        def dma_ops(par, part):
            tag = f"d{par}"
            wl = lambda n: Op(f"buffer_load_dwordx4 v{vWD[n]}, s[{sW}:{sW+3}], s{sWoff} offen offset:{(n&3)*1056}{WNT} lds", 'vm', tag)
            bl = lambda n: Op(f"buffer_load_dwordx4 v{vBD[n]}, s[{sB}:{sB+3}], s{sBoff} offen offset:{(n&3)*1024}{WNT} lds", 'vm', tag + "e")
            o = []
            if part == 0:
                o.append(Op(f"s_mov_b32 m0, s{sM[par]}")); o += [wl(n) for n in range(4)]
            else:
                if NWI == 8:
                    o.append(Op(f"s_add_u32 m0, s{sM[par]}, {4*1056}")); o += [wl(n) for n in range(4, 8)]
                o.append(Op(f"s_mov_b32 m0, s{sMB[par]}"))
                o.append(Op(f"s_add_u32 s{sWoff}, s{sWoff}, {64*7168}"))
                o += [bl(n) for n in range(min(NS, 4))]
                if NS == 5:
                    o.append(Op(f"s_add_u32 m0, s{sMB[par]}, 4096")); o.append(bl(4))
                o.append(Op(f"s_add_u32 s{sBoff}, s{sBoff}, 128"))
                o.append(Op(f"s_add_u32 s{sM[par]}, s{sM[par]}, s{sDelta}"))
                o.append(Op(f"s_add_u32 s{sMB[par]}, s{sMB[par]}, s{sDelta}"))
            return o
        def x_ops(buf):
            o = []
            for i in range(4):
                r = XB + buf*16 + i*4
                o.append(Op(f"buffer_load_dwordx4 a[{r}:{r+3}], v{vX}, s[{sX}:{sX+3}], s{sXoff} offen offset:{i*1024} sc1", 'vm', f"x{buf}"))
            o.append(Op(f"s_add_u32 s{sXoff}, s{sXoff}, 4096"))
            return o
        if opt.get('prof'):
            A(f"s_lshl_b32 s100, s2, 2\ns_add_u32 s100, s100, s{sWV}\ns_lshl_b32 s100, s100, 6\ns_add_u32 s100, s100, {PROF_OFF}")
        A(f"s_waitcnt vmcnt({NE})")
        pstamp(A, opt, 0, 6)
        X = 64
        for r in range(16): A(f"v_lshlrev_b32 v{X+2*r}, 16, v{40+r}\nv_and_b32 v{X+2*r+1}, 0xffff0000, v{40+r}")
        def reduce(off, side):
            A("v_add_f32 v32, v32, v33\ns_nop 1\nv_add_f32_dpp v32, v32, v32 row_ror:8 row_mask:0xf bank_mask:0xf")
            A("v_mov_b32 v33, v32\ns_nop 1\nv_permlane16_swap_b32 v32, v33\ns_nop 1\nv_add_f32 v32, v32, v33")
            A("v_mov_b32 v33, v32\ns_nop 1\nv_permlane32_swap_b32 v32, v33\ns_nop 1\nv_add_f32 v32, v32, v33")
            A(f"ds_write_b32 v{vLW}, v32 offset:{off}")
            emit(side)
            A(f"s_waitcnt lgkmcnt(0)\ns_barrier\nds_read_b128 v[32:35], v{vLR} offset:{off}\ns_waitcnt lgkmcnt(0)")
            A("v_pk_add_f32 v[32:33], v[32:33], v[34:35]\nv_add_f32 v32, v32, v33")
        A(f"v_pk_add_f32 v[32:33], {pk(X)}, {pk(X+2)}\nv_pk_add_f32 v[34:35], {pk(X+4)}, {pk(X+6)}")
        for r in range(4, 16): A(f"v_pk_add_f32 {pk(32+2*(r&1))}, {pk(32+2*(r&1))}, {pk(X+2*r)}")
        A("v_pk_add_f32 v[32:33], v[32:33], v[34:35]")
        reduce(0, dma_ops(0, 0))
        A(f"v_mul_f32 v38, {hx(f2u(-1.0/1024))}, v32")
        for r in range(16):
            t = 96 + 2*(r & 3); d = 32 + 2*(r & 1)
            A(f"v_pk_add_f32 {pk(t)}, {pk(X+2*r)}, v[38:39] op_sel_hi:[1,0]")
            A(f"v_pk_mul_f32 {pk(d)}, {pk(t)}, {pk(t)}" if r < 2 else f"v_pk_fma_f32 {pk(d)}, {pk(t)}, {pk(t)}, {pk(d)}")
        A("v_pk_add_f32 v[32:33], v[32:33], v[34:35]")
        reduce(128, dma_ops(0, 1))
        A(f"v_mul_f32 v39, {hx(f2u(1.0/1024))}, v32\nv_cvt_pk_bf16_f32 v36, v38, v39\nv_lshlrev_b32 v38, 16, v36\nv_and_b32 v36, 0xffff0000, v36")
        A(f"v_add_f32 v36, {hx(f2u(1e-5))}, v36\nv_cvt_pk_bf16_f32 v36, v36, v36\nv_lshlrev_b32 v36, 16, v36")
        A("v_sqrt_f32 v36, v36\ns_nop 0\nv_cvt_pk_bf16_f32 v36, v36, v36\nv_lshlrev_b32 v36, 16, v36\nv_rcp_f32 v36, v36")
        for m in range(4):
            rs = range(4*m, 4*m+4)
            for r in rs: A(f"v_pk_add_f32 {pk(X+2*r)}, {pk(X+2*r)}, v[38:39] op_sel_hi:[1,0]")
            for r in rs: A(f"v_cvt_pk_bf16_f32 v{40+r}, v{X+2*r}, v{X+2*r+1}")
            for r in rs: A(f"v_lshlrev_b32 v{X+2*r}, 16, v{40+r}\nv_and_b32 v{X+2*r+1}, 0xffff0000, v{40+r}")
            for r in rs: A(f"v_pk_mul_f32 {pk(X+2*r)}, {pk(X+2*r)}, v[36:37] op_sel_hi:[1,0]")
            for r in rs: A(f"v_cvt_pk_bf16_f32 v{40+r}, v{X+2*r}, v{X+2*r+1}")
            A(f"s_mov_b32 s3, {m*32768}\nbuffer_store_dwordx4 v[{40+4*m}:{43+4*m}], v{vLS}, s[{sWS}:{sWS+3}], s3 offen sc1")
        A(f"v_and_b32 v{vLS}, 15, v0\nv_lshlrev_b32 v{vLS}, 2, v{vLS}\nglobal_load_dword v59, v{vLS}, s[48:49] sc1")
        c_hi = struct.unpack("<f", struct.pack("<f", 1/(2*math.pi)))[0]; c_lo = 1/(2*math.pi) - c_hi
        A(f"s_mov_b32 s3, {hx(f2u(LOG2E))}\ns_mov_b32 s4, {hx(f2u(c_hi))}\ns_mov_b32 s6, {hx(f2u(c_lo))}")
        A("s_waitcnt vmcnt(14)")
        lr, li, ld = 56, 57, 58
        la, lb, cr, ci = 64, 65, 66, 67
        dt, zr, zi, hi, lo, mag = range(68, 74)
        A(f"v_lshlrev_b32 v{lr}, 16, v{lr}\nv_lshlrev_b32 v{li}, 16, v{li}\nv_lshlrev_b32 v{ld}, 16, v{ld}")
        A(f"v_mul_f32 v{dt}, s3, v{ld}\nv_exp_f32 v{dt}, v{dt}\ns_nop 0\nv_cvt_pk_bf16_f32 v{dt}, v{dt}, v{dt}\nv_lshlrev_b32 v{dt}, 16, v{dt}")
        A(f"v_mul_f32 v{zr}, v{dt}, v{lr}\nv_mul_f32 v{zi}, v{dt}, v{li}")
        A(f"v_mul_f32 v{mag}, s3, v{zr}\nv_exp_f32 v{mag}, v{mag}")
        A(f"v_mul_f32 v{hi}, s4, v{zi}\nv_fma_f32 v{lo}, v{zi}, s4, -v{hi}\nv_fma_f32 v{lo}, v{zi}, s6, v{lo}")
        A(f"v_rndne_f32 v{la}, v{hi}\nv_sub_f32 v{hi}, v{hi}, v{la}\nv_add_f32 v{hi}, v{hi}, v{lo}")
        A(f"v_cos_f32 v{la}, v{hi}\nv_sin_f32 v{lb}, v{hi}\ns_nop 0\nv_mul_f32 v{la}, v{la}, v{mag}\nv_mul_f32 v{lb}, v{lb}, v{mag}")
        am1, den = dt, zr
        A(f"v_add_f32 v{am1}, -1.0, v{la}\nv_mul_f32 v{den}, v{lr}, v{lr}\nv_fmac_f32 v{den}, v{li}, v{li}\nv_rcp_f32 v{den}, v{den}")
        A(f"v_mul_f32 v{cr}, v{am1}, v{lr}\nv_fmac_f32 v{cr}, v{lb}, v{li}\nv_mul_f32 v{ci}, v{lb}, v{lr}\nv_fma_f32 v{ci}, -v{am1}, v{li}, v{ci}")
        A(f"v_mul_f32 v{cr}, v{cr}, v{den}\nv_mul_f32 v{ci}, v{ci}, v{den}")
        def cmul(d, a, b):
            A(f"v_pk_mul_f32 {pk(d)}, {pk(a)}, {pk(b)} op_sel_hi:[1,0]")
            A(f"v_pk_fma_f32 {pk(d)}, {pk(a)}, {pk(b)}, {pk(d)} op_sel:[1,1,0] op_sel_hi:[0,1,1] neg_lo:[0,1,0]")
        A(f"v_lshlrev_b32 v74, 1, v{vCH}\nv_add_u32 v74, {PB}, v74\nv_add_u32 v75, {PWL}, v{vCH}\nds_write_b128 v74, v[64:67]")
        cmul(76, 64, 64); cmul(78, 76, 76); cmul(76, 78, 78); cmul(78, 76, 76)
        A(f"v_mov_b32 v80, 1.0\nv_mov_b32 v81, 0\nds_write_b64 v75, v[80:81]\nds_write_b64 v75, v[78:79] offset:640")
        for k in range(2, 17):
            d = 80 + 2*(k % 4); p_ = 78 if k == 2 else 80 + 2*((k-1) % 4)
            cmul(d, p_, 78)
            if k < 16: A(f"ds_write_b64 v75, {pk(d)} offset:{k*640}")
        A(f"v_accvgpr_write_b32 a{PAR+30}, v78\nv_accvgpr_write_b32 a{PAR+31}, v79\nv_accvgpr_write_b32 a{PAR+32}, v80\nv_accvgpr_write_b32 a{PAR+33}, v81")
        A(f"s_mov_b32 s55, 0x40000\ns_waitcnt vmcnt(0)")
        A(f"L_wc{nm}:\nv_cmp_ne_u32 vcc, 1, v59\ns_cbranch_vccz L_gc{nm}\ns_sleep 1\nglobal_load_dword v59, v{vLS}, s[48:49] sc1\ns_waitcnt vmcnt(0)")
        A(f"s_sub_u32 s55, s55, 1\ns_cmp_lg_u32 s55, 0\ns_cbranch_scc1 L_wc{nm}\nL_gc{nm}:")
        A("s_waitcnt lgkmcnt(0)\ns_barrier")
        signal(A, sWV, sWS, f"s_lshl_b32 s3, s2, 7\ns_add_u32 s3, s3, {CNT_X}", 59, f"x{nm}")
        pstamp(A, opt, 0, 7)
        emit(dma_ops(1, 0) + dma_ops(1, 1) + dma_ops(0, 0))
        A(f"v_and_b32 v{t0}, 15, v{L}\nv_lshlrev_b32 v{t1}, 4, v{t0}\nv_add_u32 v{t1}, {PB}, v{t1}\nv_lshrrev_b32 v{t2}, 4, v0\nv_mul_u32_u24 v{t2}, 640, v{t2}\nv_lshl_add_u32 v{t2}, v{t0}, 3, v{t2}\nv_add_u32 v{t2}, {PWL}, v{t2}")
        for q in range(NS):
            pa = PAR + q*6
            A(f"ds_read_b128 a[{pa}:{pa+3}], v{t1} offset:{q*256}\nds_read_b64 a[{pa+4}:{pa+5}], v{t2} offset:{q*128}")
        for r in range(32, 256): A(f"v_mov_b32 v{r}, 0")
        A(f"v_and_b32 v{vLW}, 31, v0\nv_lshlrev_b32 v{vLW}, 7, v{vLW}\ns_lshl_b32 s58, s{sRB}, 12\ns_add_u32 s58, s58, {CNT_X}")
        xpoll = f"buffer_load_dword v{vLR}, v{vLW}, s[{sWS}:{sWS+3}], s58 offen sc1"
        A(xpoll)
        for r in range(64): A(f"v_accvgpr_write_b32 a{r}, 0")
        if NP == 8: A(f"v_bfe_u32 v{t0}, v{L}, 2, 3\nv_mul_u32_u24 v{t0}, 1056, v{t0}")
        else: A(f"v_bfe_u32 v{t0}, v{L}, 2, 2\nv_mul_u32_u24 v{t0}, 1056, v{t0}\nv_bfe_u32 v{t1}, v{L}, 4, 1\nv_lshl_add_u32 v{t0}, v{t1}, 7, v{t0}")
        A(f"v_bfe_u32 v{t1}, v{L}, 5, 1\nv_lshl_add_u32 v{t0}, v{t1}, 9, v{t0}\nv_and_b32 v{t1}, 3, v{L}\nv_lshl_add_u32 v{vRW[0]}, v{t1}, 3, v{t0}\nv_add_u32 v{vRW[1]}, {STAGE2}, v{vRW[0]}")
        A(f"v_and_b32 v{t0}, 15, v{L}\nv_lshrrev_b32 v{t1}, 1, v{t0}\nv_lshrrev_b32 v{t2}, 4, v{L}\nv_xor_b32 v{t1}, v{t1}, v{t2}\nv_lshlrev_b32 v{t1}, 4, v{t1}")
        A(f"v_lshl_add_u32 v{t0}, v{t0}, 7, v{t1}\nv_xor_b32 v{t1}, 64, v{t0}\nv_add_u32 v{vRB[0][0]}, {BOFF}, v{t0}\nv_add_u32 v{vRB[0][1]}, {BOFF}, v{t1}")
        A(f"v_add_u32 v{vRB[1][0]}, {STAGE2}, v{vRB[0][0]}\nv_add_u32 v{vRB[1][1]}, {STAGE2}, v{vRB[0][1]}")
        if PF:
            A(f"s_lshl_b32 s3, s2, 2\ns_add_u32 s3, s3, s{sWV}\ns_lshl_b32 s4, s3, 3\nv_and_b32 v{t0}, 7, v{L}\nv_add_lshl_u32 v{vP[0]}, v{t0}, s4, 7")
            A(f"s_lshl_b32 s3, s2, 1\ns_add_u32 s3, s3, s5\ns_lshl_b32 s3, s3, 2\nv_and_b32 v{t0}, 3, v{L}\nv_add_lshl_u32 v{vP[1]}, v{t0}, s3, 7")
        def frag_reads(j, par, kh, tag):
            d = WF + j*4
            if j < 2*NP:
                p, gu = j >> 1, j & 1
                return [Op(f"ds_read_b64_tr_b16 a[{d+2*h}:{d+2*h+1}], v{vRW[par]} offset:{gu*2*WB + kh*WB + h*256 + p*32}", 'lds', tag) for h in range(2)]
            return [Op(f"ds_read_b128 a[{d}:{d+3}], v{vRB[par][kh]} offset:{(j-2*NP)*2048}", 'lds', tag)]
        pfC = [Op(f"global_load_dword a236, v{vP[1]}, s[52:53]", 'vm', 'pf'), Op(f"v_add_u32 v{vP[1]}, {2048*128}, v{vP[1]}")]
        pfW = [Op(f"global_load_dword a236, v{vP[0]}, s[56:57]", 'vm', 'pf'), Op(f"v_add_u32 v{vP[0]}, {8192*128}, v{vP[0]}")]
        if opt.get('prof'):
            A(f"v_accvgpr_write_b32 a254, s94\nv_accvgpr_write_b32 a255, s95\ns_add_u32 s101, s100, 0x10000\nbuffer_store_dwordx2 a[254:255], off, s[20:23], s101")
            A("s_getreg_b32 s96, hwreg(HW_REG_XCC_ID)\ns_getreg_b32 s98, hwreg(HW_REG_HW_ID)\nv_accvgpr_write_b32 a254, s96\nv_accvgpr_write_b32 a255, s98\nbuffer_store_dwordx2 a[254:255], off, s[20:23], s100 offset:40")
        for j in range(NT): emit(frag_reads(j, 0, 0, None))
        A(f"s_mov_b32 s55, 0x40000\ns_waitcnt vmcnt(0)")
        A(f"L_wx{nm}:\nv_cmp_ne_u32 vcc, 1, v{vLR}\ns_cbranch_vccz L_gx{nm}\ns_sleep 1\n{xpoll}\ns_waitcnt vmcnt(0)")
        A(f"s_sub_u32 s55, s55, 1\ns_cmp_lg_u32 s55, 0\ns_cbranch_scc1 L_wx{nm}\nL_gx{nm}:")
        pstamp(A, opt, 1, 1)
        emit(x_ops(0) + x_ops(1) + x_ops(2))
        if PF: emit(pfC)
        early3(nm, NP == 8)
        A(f"s_mov_b32 s{sDelta}, {hx(-2*STAGE2)}\ns_mov_b32 s{sTrip}, 0\ns_waitcnt vmcnt({1 if PF else 0}) lgkmcnt(0)")
        BARG = opt.get('barg', 3)
        def mfma(j, i, wreg, xreg, **kw):
            f, b = acc(j, i); c = f"{f}[{b}:{b+3}]"
            w = f"a[{wreg}:{wreg+3}]"; x = f"a[{xreg}:{xreg+3}]"
            return Op(f"v_mfma_f32_16x16x32_bf16 {c}, {w}, {x}, {c}" if j < 2*NP else f"v_mfma_f32_16x16x32_bf16 {c}, {x}, {w}, {c}", **kw)
        def trip(n):
            out = []
            for t in range(4):
                gs = 4*n + t
                mf = []
                for j in range(NT):
                    order = range(4) if j % 2 == 0 else range(3, -1, -1)
                    for k, i in enumerate(order):
                        mf.append(mfma(j, i, WF+j*4, XB+t*16+i*4, need_vm=(f"x{t}" if (j == 0 and k == 0) else None), need_lds=(f"f{j}" if k == 0 else None)))
                if t % 2 == 0: par, kh, firstm = t >> 1, 1, 0
                else: par, kh, firstm = ((t >> 1) + 1) % 2, 0, BARG*4 - 1
                fin = gs == 31
                rds = []
                if not fin:
                    for j in range(NT):
                        for o in frag_reads(j, par, kh, f"f{j}"): rds.append((max(j*4 + 3, firstm), o))
                vmo = []
                if gs + XD < 32: vmo += x_ops((t + XD) % 4)
                if (gs + 5) >> 1 < 16: vmo += dma_ops(((t + 5) >> 1) % 2, (t + 1) % 2)
                if PF and n < 7 and t == 1: vmo += pfW
                if PF and n < 7 and t == 3: vmo += pfC
                if gs == 29: vmo += [Op(f"v_accvgpr_read_b32 v{vD[k]}, a{STASH+k}") for k in range(8)]
                if gs == 30: vmo += [Op(o.text, o.kind, 'k3') for o in dma3(0, 0) + dma3(0, 1) + dma3(1, 0)]
                if gs == 31: vmo += [Op(o.text, o.kind, 'k3') for o in dma3(1, 1) + dma3(2, 0)]
                sp = 68.0 / max(1, len(vmo))
                vm = [(1 + int(k*sp), o) for k, o in enumerate(vmo)]
                misc = []
                if n != 7:
                    if t == 2: misc += [(40, Op(f"v_subrev_u32 v{r}, s{sDelta}, v{r}")) for r in (vRW[0], vRB[0][0], vRB[0][1])]
                    if t == 3: misc += [(2, Op(f"v_subrev_u32 v{r}, s{sDelta}, v{r}")) for r in (vRW[1], vRB[1][0], vRB[1][1])]
                    if t == 3: misc += [(60, Op(f"s_sub_u32 s{sDelta}, 0, s{sDelta}"))]
                slots = spread(72, [rds, vm, misc], per_gap=1)
                for m in range(72):
                    out.append(mf[m])
                    if t % 2 == 1 and m == firstm and not fin:
                        out.append(Op("s_waitcnt lgkmcnt(0)", 'lgkm0', need_vm=f"d{par}e"))
                        out.append(Op("s_barrier"))
                    out.extend(slots[m])
            return out
        b0, b6, b7 = trip(0), trip(6), trip(7)
        pstamp(A, opt, 1, 2)
        A(f".p2align 6\nL_k2_loop{nm}:"); put(resolve_loop(b0))
        A(f"s_add_u32 s{sTrip}, s{sTrip}, 1\ns_cmp_lt_u32 s{sTrip}, 6\ns_cbranch_scc1 L_k2_loop{nm}")
        put(resolve_seq(b0, b6))
        if opt.get('cpf', 1):
            code_prefetch(A, "L_k3_code", "L_text_end", 58, t0, "a237", opt.get("cpfn3", 11), "2" + nm)
            A(f"s_getpc_b64 s[58:59]\nL_pce{nm}:\ns_add_u32 s58, s58, L_k2_epi{nm}-L_pce{nm}\ns_addc_u32 s59, s59, 0\nv_lshlrev_b32 v{t0}, 6, v0\nglobal_load_dword a238, v{t0}, s[58:59]")
        put(resolve_seq(b6, b7))
        A(f"L_k2_epi{nm}:")
        pstamp(A, opt, 1, 3)
        LAM = [2 + 2*q for q in range(NS)]
        for q in range(NS): A(f"v_accvgpr_read_b32 v{LAM[q]}, a{PAR+q*6}\nv_accvgpr_read_b32 v{LAM[q]+1}, a{PAR+q*6+1}")
        def cfma(d, h, c):
            return [f"v_pk_fma_f32 {pk(d)}, {pk(h)}, {pk(c)}, {pk(d)} op_sel_hi:[1,0,1]",
                    f"v_pk_fma_f32 {pk(d)}, {pk(h)}, {pk(c)}, {pk(d)} op_sel:[1,1,0] op_sel_hi:[0,1,1] neg_lo:[0,1,0]"]
        A("s_nop 7")
        T = lambda q, n: 12 + 4*q + 2*(n & 1)
        for n in range(16):
            i, r = n >> 2, n & 3
            for q in range(NS): A(rd(T(q, n), jre(q), i, r) + "\n" + rd(T(q, n)+1, jim(q), i, r))
            if n > 0:
                for h in range(2):
                    for q in range(NS): A(cfma(T(q, n), T(q, n-1), LAM[q])[h])
        EL, PL, HL, EP = 45056, 45056 + 10240, 36864, 640
        vE = 1
        A(f"v_lshrrev_b32 v12, 4, v0\nv_mul_u32_u24 v12, {EP}, v12\nv_and_b32 v{vE}, 15, v0\nv_lshl_add_u32 v{vE}, v{vE}, 3, v12")
        for q in range(NS): A(f"ds_write_b64 v{vE}, {pk(T(q, 15))} offset:{EL + q*128}")
        A("s_waitcnt lgkmcnt(0)\ns_barrier")
        NXW = (NCH + 63) // 64
        NL2 = opt.get('l2pf', 0)
        if NL2:
            A(f"v_bfe_u32 v12, v0, 3, 2\nv_bfe_u32 v13, v0, 5, 1\nv_lshl_add_u32 v12, v13, 8, v12\nv_lshlrev_b32 v12, 11, v12\nv_and_b32 v13, 7, v0\nv_lshl_add_u32 v12, v13, 7, v12")
            A(f"s_mul_i32 s3, s{qKH}, 1792\ns_lshr_b32 s4, s2, 3\ns_lshl_b32 s4, s4, 3\ns_add_u32 s3, s3, s4\ns_lshl_b32 s4, s{qMH}, 2\ns_add_u32 s3, s3, s4\ns_add_u32 s3, s3, 512\ns_lshl_b32 s3, s3, 11\ns_and_b32 s4, s2, 1\ns_lshl_b32 s4, s4, 10\ns_add_u32 s3, s3, s4")
            A(f"buffer_load_dword a236, v12, s[{qB}:{qB+3}], s3 offen")
            if NL2 > 2: A(f"s_add_u32 s3, s3, {512*2048}\nbuffer_load_dword a236, v12, s[{qB}:{qB+3}], s3 offen")
            A(f"v_bfe_u32 v12, v0, 3, 3\nv_lshlrev_b32 v12, 11, v12\nv_lshl_add_u32 v12, v13, 7, v12")
            A(f"s_and_b32 s3, s2, 1\ns_lshl_b32 s3, s3, 9\ns_lshr_b32 s4, s2, 3\ns_lshl_b32 s4, s4, 4\ns_add_u32 s3, s3, s4\ns_lshl_b32 s4, s{qMH}, 3\ns_add_u32 s3, s3, s4\ns_lshl_b32 s3, s3, 11\nv_add_u32 v12, s3, v12")
            A(f"global_load_dword a237, v12, s[52:53]")
            if NL2 > 2: A(f"global_load_dword a237, v12, s[52:53] offset:1024")
        vC = 12
        A(f"v_min_u32 v{vC}, {NCH-1}, v0\nv_lshlrev_b32 v{vC}, 3, v{vC}")
        A(f"s_lshl_b32 s39, s{sRB}, 14\ns_lshl_b32 s3, s{sCh}, 4\ns_add_u32 s39, s39, s3\ns_add_u32 s39, s39, {EX_OFF}")
        A(f"s_cmp_ge_u32 s{sWV}, {NXW}\ns_cbranch_scc1 L_k2_nox1{nm}")
        for s_ in range(16): A(f"ds_read_b64 a[{WF+2*s_}:{WF+2*s_+1}], v{vC} offset:{EL + s_*EP}")
        A(f"v_accvgpr_read_b32 v14, a{PAR+30}\nv_accvgpr_read_b32 v15, a{PAR+31}")
        A(f"v_mov_b32 v16, 0\nv_mov_b32 v17, 0\nds_write_b64 v{vC}, v[16:17] offset:{PL}\ns_waitcnt lgkmcnt(0)")
        R = [16, 18, 20, 22]
        for s_ in range(16):
            p_ = R[s_ % 4]; c_ = R[(s_+1) % 4]
            A(f"v_accvgpr_read_b32 v{c_}, a{WF+2*s_}\nv_accvgpr_read_b32 v{c_+1}, a{WF+2*s_+1}")
            for x in cfma(c_, p_, 14): A(x)
            if s_ < 15: A(f"ds_write_b64 v{vC}, {pk(c_)} offset:{PL+(s_+1)*EP}")
        A(f"v_mov_b32 v24, v16\nv_mov_b32 v25, 1\nv_mov_b32 v26, v17\nv_mov_b32 v27, 1\nv_lshlrev_b32 v13, 1, v{vC}\ns_add_u32 s3, s39, {7*16384}")
        A(f"buffer_store_dwordx4 v[24:27], v13, s[{sWS}:{sWS+3}], s3 offen sc1")
        A(f"L_k2_nox1{nm}:")
        pstamp(A, opt, 1, 4)
        C1 = -2.0*math.sqrt(2/math.pi)*LOG2E; C2 = C1*0.044715
        A(f"s_mov_b32 s4, {hx(f2u(C1))}\ns_mov_b32 s6, {hx(f2u(C2))}\ns_mov_b32 s7, s6")
        vH = 30
        A(f"v_bfe_u32 v16, v0, 4, 1\nv_bfe_u32 v17, v0, 5, 1\nv_and_b32 v18, 15, v0\nv_lshlrev_b32 v{vH}, 10, v16\nv_lshl_add_u32 v{vH}, v17, 8, v{vH}\nv_lshl_add_u32 v{vH}, v18, 4, v{vH}")
        A(f"v_mov_b32 v16, s4\nv_lshlrev_b32 v13, 1, v12\nv_mov_b32 v31, v{vE}")
        vE = 31
        A(f"s_mul_i32 s40, s{sTB}, {112*4096}\ns_add_u32 s40, s40, {H_OFF}\ns_lshl_b32 s41, s{sCol}, 7\ns_add_u32 s40, s40, s41")
        for k in range(1, NP // 2): A(f"s_add_u32 s{40+k}, s40, {k*4096}")
        TMP = [18, 20, 22, 28]
        NB = 2*NP
        ER = 32
        eloads = []
        for d in range(7):
            eloads.append(f"s_add_u32 s3, s39, {d*16384}")
            eloads.append(f"buffer_load_dwordx4 v[{ER+4*d}:{ER+4*d+3}], v13, s[{sWS}:{sWS+3}], s3 offen sc1")
        ESLOT = NB - opt.get('eslot', 4)
        nst_after = 0
        for b in range(NB):
            p, i0 = b >> 1, (b & 1)*2
            if 2*p < 14:
                G = acc(2*p, i0)[1]; U = acc(2*p+1, i0)[1]
            else:
                G = acc(4, i0)[1]; U = acc(5, i0)[1]
                for h in range(8): A(rd(G+h, 2*p, i0 + (h >> 2), h & 3) + "\n" + rd(U+h, 2*p+1, i0 + (h >> 2), h & 3))
            if b == ESLOT:
                A(f"s_cmp_ge_u32 s{sWV}, {NXW}\ns_cbranch_scc1 L_k2_noel{nm}")
                for x in eloads: A(x)
                A(f"L_k2_noel{nm}:")
            for h in range(4): A(f"v_pk_mul_f32 {pk(TMP[h])}, {pk(G+2*h)}, {pk(G+2*h)}")
            for h in range(4): A(f"v_pk_mul_f32 {pk(U+2*h)}, {pk(U+2*h)}, {pk(G+2*h)}")
            for h in range(4): A(f"v_pk_fma_f32 {pk(TMP[h])}, {pk(TMP[h])}, s[6:7], v[16:17] op_sel_hi:[1,1,0]")
            for h in range(4): A(f"v_pk_mul_f32 {pk(G+2*h)}, {pk(G+2*h)}, {pk(TMP[h])}")
            for h in range(8): A(f"v_exp_f32 v{G+h}, v{G+h}")
            for h in range(4): A(f"v_pk_add_f32 {pk(G+2*h)}, {pk(G+2*h)}, 1.0 op_sel_hi:[1,0]")
            for h in range(8): A(f"v_rcp_f32 v{G+h}, v{G+h}")
            for h in range(4): A(f"v_pk_mul_f32 {pk(U+2*h)}, {pk(U+2*h)}, {pk(G+2*h)}")
            for h in (0, 2, 1, 3): A(f"v_cvt_pk_bf16_f32 v{G+h}, v{U+2*h}, v{U+2*h+1}")
            A(f"v_permlane16_swap_b32 v{G}, v{G+2}\ns_nop 0\nv_permlane16_swap_b32 v{G+1}, v{G+3}")
            A(f"buffer_store_dwordx4 v[{G}:{G+3}], v{vH}, s[{sWS}:{sWS+3}], s{40+(p>>1)} offen offset:{(p&1)*512 + i0*1024}{SC}")
            if b >= ESLOT: nst_after += 1
        pstamp(A, opt, 1, 5)
        A(f"s_cmp_ge_u32 s{sWV}, {NXW}\ns_cbranch_scc1 L_k2_nox2{nm}")
        A(f"s_mov_b32 s55, 0x40000\ns_waitcnt vmcnt({nst_after})")
        A(f"L_k2_poll{nm}:\nv_mov_b32 v18, 1")
        for d in range(7): A(f"v_min3_u32 v18, v18, v{ER+4*d+1}, v{ER+4*d+3}")
        A(f"v_cmp_ne_u32 vcc, 1, v18\ns_cbranch_vccz L_k2_got{nm}\ns_sleep 1")
        for x in eloads: A(x)
        A(f"s_waitcnt vmcnt(0)\ns_sub_u32 s55, s55, 1\ns_cmp_lg_u32 s55, 0\ns_cbranch_scc1 L_k2_poll{nm}\nL_k2_got{nm}:")
        A(f"v_accvgpr_read_b32 v18, a{PAR+32}\nv_accvgpr_read_b32 v19, a{PAR+33}")
        for d in range(7): A(f"v_mov_b32 v{ER+4*d+1}, v{ER+4*d+2}")
        for d in range(1, 7):
            for x in cfma(ER+4*d, ER+4*(d-1), 18): A(x)
        A(f"ds_write_b64 v{vC}, {pk(ER+24)} offset:{HL}\ns_waitcnt lgkmcnt(0)")
        A(f"L_k2_nox2{nm}:")

        def finish(ffn, u):
            if ffn: setup3(True)
            A("s_waitcnt vmcnt(0)\ns_barrier")
            signal(A, sWV, sWS, f"s_lshl_b32 s3, s2, 7\ns_add_u32 s3, s3, {CNT_H}", 28, f"h{u}")
            pstamp(A, opt, 1, 6)
            CY, HH, PW_, CF, LM = 32, 44, 56, 68, 80
            vW, vRd = 28, 29
            A("v_and_b32 v90, 15, v0\nv_lshlrev_b32 v90, 3, v90")
            for q in range(NS):
                A(f"ds_read_b64 {pk(CY+2*q)}, v{vE} offset:{PL+q*128}\nds_read_b64 {pk(HH+2*q)}, v90 offset:{HL+q*128}")
            for q in range(NS):
                for h in range(2): A(f"v_accvgpr_read_b32 v{PW_+2*q+h}, a{PAR+q*6+4+h}\nv_accvgpr_read_b32 v{CF+2*q+h}, a{PAR+q*6+2+h}\nv_accvgpr_read_b32 v{LM+2*q+h}, a{PAR+q*6+h}")
            TB0 = 110592; TQ = 32*144
            A(f"s_mul_i32 s3, s{sWV}, {2*TQ}\ns_add_u32 s3, s3, {TB0}")
            A(f"v_and_b32 v{vW}, 15, v0\nv_mul_u32_u24 v{vW}, 144, v{vW}\nv_bfe_u32 v91, v0, 4, 2\nv_lshl_add_u32 v{vW}, v91, 5, v{vW}\nv_add_u32 v{vW}, s3, v{vW}")
            A(f"v_bfe_u32 v{vRd}, v0, 5, 1\nv_bfe_u32 v91, v0, 2, 2\nv_lshl_add_u32 v{vRd}, v{vRd}, 3, v91\nv_mul_u32_u24 v{vRd}, 144, v{vRd}\nv_and_b32 v91, 3, v0\nv_lshl_add_u32 v{vRd}, v91, 5, v{vRd}\nv_bfe_u32 v91, v0, 4, 1\nv_lshl_add_u32 v{vRd}, v91, 3, v{vRd}\nv_add_u32 v{vRd}, s3, v{vRd}")
            A(f"s_lshl_b32 s40, s{sTB}, 18\ns_add_u32 s40, s40, {HS_OFF}\ns_lshr_b32 s41, s{sCh}, 4")
            A("s_waitcnt lgkmcnt(0)")
            for h in range(2):
                for q in range(NS): A(cfma(CY+2*q, HH+2*q, PW_+2*q)[h])
            if NS == 1: ST, O0, OB, LD0, LB = 44, 96, 0, 112, 0
            else: ST, O0, OB, LD0, LB = 44, 96, 32, 112, 32
            def calc(q):
                OR_, OI_ = O0 + (q & 1)*OB, O0 + 8 + (q & 1)*OB
                o = []
                for n in range(16):
                    i, r = n >> 2, n & 3
                    c_ = ST + 2*(n & 1); p_ = CY + 2*q if n == 0 else ST + 2*((n-1) & 1); o_ = ST + 4 + 2*(n & 1)
                    o += [rd(c_, jre(q), i, r), rd(c_+1, jim(q), i, r)] + cfma(c_, p_, LM+2*q)
                    o += [f"v_pk_mul_f32 {pk(o_)}, {pk(c_)}, {pk(CF+2*q)} op_sel_hi:[1,0]", cfma(o_, c_, CF+2*q)[1]]
                    if n & 1: o += [f"v_cvt_pk_bf16_f32 v{OR_+(n>>1)}, v{ST+4}, v{ST+6}", f"v_cvt_pk_bf16_f32 v{OI_+(n>>1)}, v{ST+5}, v{ST+7}"]
                return o
            def wr(q):
                o = []
                for part in range(2):
                    b = O0 + 8*part + (q & 1)*OB; off = (q & 1)*TQ + part*16*144
                    o += [f"ds_write_b128 v{vW}, v[{b}:{b+3}] offset:{off}", f"ds_write_b128 v{vW}, v[{b+4}:{b+7}] offset:{off+16}"]
                for part in range(2):
                    for k in range(2):
                        d = LD0 + (q & 1)*LB + (part*2+k)*4
                        o += [f"ds_read_b64_tr_b16 v[{d+2*h}:{d+2*h+1}], v{vRd} offset:{(q & 1)*TQ + (part*16 + 4*h)*144 + k*16}" for h in range(2)]
                return o
            def st(q):
                o = [f"s_add_u32 s42, s41, {q}\ns_lshr_b32 s43, s42, 1\ns_lshl_b32 s43, s43, 12\ns_and_b32 s42, s42, 1\ns_lshl_b32 s42, s42, 9\ns_add_u32 s43, s43, s42\ns_add_u32 s43, s43, s40\ns_add_u32 s42, s43, {32*4096}\ns_waitcnt lgkmcnt(0)"]
                for part in range(2):
                    for k in range(2):
                        d = LD0 + (q & 1)*LB + (part*2+k)*4
                        o.append(f"buffer_store_dwordx4 v[{d}:{d+3}], v{vH}, s[{sWS}:{sWS+3}], s{43-part} offen offset:{k*2048}{SC}")
                return o
            for q in range(NS + 1):
                c = calc(q) if q < NS else []
                side = (wr(q-1) + st(q-1)) if q > 0 else []
                step = max(1, len(c) // max(1, len(side)))
                k = 0
                for n_, x in enumerate(c):
                    A(x)
                    if side and n_ % step == step - 1 and k < len(side): A(side[k]); k += 1
                for x in side[k:]: A(x)
            pstamp(A, opt, 1, 7)
            pstamp(A, opt, 2, 0)
            if ffn:
                A("s_branch L_k3_ffn")
            else:
                A("s_branch L_k3_ssm")
        if NP == 8:
            A(f"s_cmp_eq_u32 s{qRole}, 0\ns_cbranch_scc1 L_finAs")
            finish(True, "Af")
            A("L_finAs:")
            finish(False, "As")
        else:
            finish(False, "B")
    body(8, 1, "A")
    A("L_k2_B:")
    body(4, 5, "B")

    A("L_k3_code:")
    def role(ffn):
        nm = "ffn" if ffn else "ssm"
        A(f"L_k3_{nm}:")
        def frag_reads(j, st, hk, f):
            d = BF + j*4
            if f: return [Op(f"ds_read_b64_tr_b16 a[{d+2*h}:{d+2*h+1}], v{vR[j]} offset:{st*16384 + hk*8192 + h*1024}", 'lds', f"f{j}") for h in range(2)]
            return [Op(f"ds_read_b128 a[{d}:{d+3}], v{vR2[(j>>2)*2 + hk]} offset:{st*16384 + (j&3)*2048}", 'lds', f"f{j}")]
        if not ffn: setup3(False)
        A(f"v_and_b32 v{vFO}, 31, v0\nv_lshlrev_b32 v{vFO}, 7, v{vFO}")
        A(mload(qCnt))
        for j in range(8): emit(frag_reads(j, 0, 0, True))
        wait_all(qCnt, "ch" + nm)
        emit(proa)
        pstamp(A, opt, 2, 1)
        A(f"s_mov_b32 s{sTrip}, 0\ns_barrier\ns_waitcnt vmcnt(0) lgkmcnt(0)")
        signal(A, sWV, sWS, sigS_addr, t0, "s" + nm)
        if ffn:
            extra = []
            for n in range(8):
                extra += [Op(f"s_add_u32 m0, s{qXL}, {n*1024}"), Op(f"s_add_u32 s3, s{qXo}, {n*16384}"),
                          Op(f"buffer_load_dwordx4 v{vXD}, s[{qO}:{qO+3}], s3 offen lds", 'vm', 'e')]
            for k in range(16):
                if k % 4 == 0 and k: extra.append(Op("s_add_u32 s66, s66, 4096"))
                extra.append(Op(f"buffer_load_dwordx4 v[{SR+k*4}:{SR+k*4+3}], v{vA}, s[{sWS}:{sWS+3}], s66 offen offset:{(k&3)*1024} sc1", 'vm', 'e'))
        else:
            extra = []
            for h in range(2):
                extra.append(Op(f"s_add_u32 m0, s{qXL}, {h*4096}"))
                if h: extra.append(Op(f"s_add_u32 s{qXo}, s{qXo}, 4096"))
                for n in range(4): extra.append(Op(f"buffer_load_dwordx4 v{vA}, s[{sWS}:{sWS+3}], s{qXo} offen offset:{n*1024} sc1 lds", 'vm', 'e'))
            for m in range(4): extra.append(Op(f"global_load_ushort v{28+m}, v{vXL}, s[44:45] offset:{m*32}", 'vm', 'e'))
        BARG = opt.get('barg3', 2)
        def trip(cur, nxt, kind):
            body = []
            ex = list(extra) if kind == 'last' else []
            for t in range(8):
                mf = []
                for j in range(8):
                    order = range(4) if j % 2 == 0 else range(3, -1, -1)
                    for n, i in enumerate(order):
                        if kind == 'F': c = f"v[{64+(j*4+i)*4}:{64+(j*4+i)*4+3}]" if j < 4 else f"a[{160+((j-4)*4+i)*4}:{160+((j-4)*4+i)*4+3}]"
                        else: c = f"v[{acc3(j,i)}:{acc3(j,i)+3}]"
                        cin = "0" if (kind in ('F', 'S0') and t == 0) else c
                        mf.append(Op(f"v_mfma_f32_16x16x32_bf16 {c}, a[{AB+t*16+i*4}:{AB+t*16+i*4+3}], a[{BF+j*4}:{BF+j*4+3}], {cin}",
                                     need_vm=(f"x{t}" if (j == 0 and n == 0) else None), need_lds=(f"f{j}" if n == 0 else None)))
                vmo = []
                if kind == 'F' and t + AD == 8:
                    vmo.append(Op(f"s_mov_b32 s55, 0x40000\nL_wcs:\nv_cmp_ne_u32 vcc, 1, v{vFL}\ns_cbranch_vccnz L_k3_spin\nL_gcs:", need_vm='cs'))
                if kind == 'S0' and t >= 4:
                    if t < 7: vmo += a3(AD + 4 + 2*(t-4)) + a3(AD + 5 + 2*(t-4))
                elif kind == 'S1' and t < 2: pass
                elif t + AD < 8 or nxt is not None: vmo += a3(t + AD, switch=(kind == 'F'))
                if kind == 'S0' and t == 7:
                    for k in range(16):
                        if k % 4 == 0 and k: vmo.append(Op("s_add_u32 s66, s66, 4096"))
                        vmo.append(Op(f"buffer_store_dwordx4 v[{64+4*k}:{67+4*k}], v{vA}, s[{sWS}:{sWS+3}], s66 offen offset:{(k&3)*1024} sc1", 'vm', 'ps'))
                sg = (t + 5) >> 1
                if sg < 4: vmo += dma3(sg, (t + 1) % 2, cur)
                elif nxt is not None: vmo += dma3(sg % 4, (t + 1) % 2, nxt)
                if kind == 'F' and t + AD == 6: vmo.append(Op(mload(qCnt2), 'vm', 'cs'))
                if ffn and kind == 'loop' and t == 4: vmo.append(Op(cload(vFL, 67), 'vm', 'fl'))
                if kind == 'last':
                    nv = sum(1 for o in vmo if o.kind == 'vm')
                    while ex and nv < 8 and t >= 3:
                        o = ex.pop(0); vmo.append(o); nv += o.kind == 'vm'
                    if ffn and t == 7: vmo.append(Op(cload(vFL, qFL), 'vm', 'fl'))
                fin = nxt is None and t == 7
                if t % 2 == 0: st, hk, first = t >> 1, 1, 0
                else: st, hk, first = ((t >> 1) + 1) % 4, 0, BARG*4 - 1
                rd = []
                if not fin:
                    for j in range(8):
                        for o in frag_reads(j, st, hk, nxt if t == 7 else cur): rd.append((max(j*4 + 3, first), o))
                sp = 30.0 / max(1, len(vmo))
                vm = [(int(k*sp), o) for k, o in enumerate(vmo)]
                px = []
                if kind == 'S0':
                    if t in (0, 4):
                        r_ = t >> 2
                        px = [(6 + 3*k, Op(f"ds_write_b128 v{vXD}, a[{160+32*r_+4*k}:{160+32*r_+4*k+3}] offset:{k*1024}", 'lds', 'pw')) for k in range(8)]
                    if t in (1, 2, 5, 6):
                        r_ = t >> 2; k0 = 4*((t - 1) & 1); base = first + 1
                        px = [(base + k, Op(f"ds_read_b128 v[{44+4*k}:{47+4*k}], v27 offset:{(k0+k)*1024}", 'lds', f"pr{k}")) for k in range(4)]
                        for k in range(4):
                            y = 64 + (8*r_ + k0 + k)*4
                            e = base + 9 + 3*k + (k if t % 2 == 0 else 0)
                            px.append((e, Op(f"v_pk_add_f32 {pk(y)}, {pk(y)}, {pk(44+4*k)}\nv_pk_add_f32 {pk(y+2)}, {pk(y+2)}, {pk(46+4*k)}", need_lds=f"pr{k}")))
                slots = spread(32, [rd, vm], per_gap=1)
                slots2 = spread(32, [px], per_gap=1)
                for m in range(32):
                    body.append(mf[m])
                    if t % 2 == 1 and m == first and not fin:
                        body.append(Op("s_waitcnt lgkmcnt(0)", 'lgkm0', need_vm=f"d{st}"))
                        body.append(Op("s_barrier"))
                        if kind == 'S1' and t == 5:
                            body.append(Op(f"s_cmp_eq_u32 s{sWV}, 0\ns_cbranch_scc1 L_k3_sig\nL_k3_sigret:"))
                    body.extend(slots[m]); body.extend(slots2[m])
            assert not ex, len(ex)
            return body
        loop = trip(ffn, ffn, 'loop'); fin = trip(ffn, None, 'last')
        pstamp(A, opt, 2, 2)
        if not ffn:
            tF = trip(True, False, 'F'); tS = trip(False, False, 'S0')
            put(resolve_seq(trip(True, True, 'x'), tF, lgkm_slack=4))
            pstamp(A, opt, 0, 2)
            put(resolve_seq(tF, tS, lgkm_slack=4))
            pstamp(A, opt, 0, 3)
            tS1 = trip(False, False, 'S1')
            put(resolve_seq(tS, tS1, lgkm_slack=4))
            put(resolve_seq(tS1, loop, lgkm_slack=4))
        else:
            A(f".p2align 6\nL_k3_{nm}_loop:")
            put(resolve_loop(loop, lgkm_slack=4))
            A(f"s_add_u32 s{sTrip}, s{sTrip}, 1\ns_cmp_lt_u32 s{sTrip}, 5\ns_cbranch_scc1 L_k3_{nm}_loop")
        if ffn:
            nafter = 0
            for o in reversed(loop):
                if o.tag == 'fl': break
                nafter += o.kind == 'vm'
            wait_word(vFL, 67, 1, "fp", nafter)
        pstamp(A, opt, 0, 4)
        if opt.get('cpf', 1):
            A(f"s_getpc_b64 s[58:59]\nL_pc3{nm}:\ns_add_u32 s58, s58, L_k3_epi{nm}-L_pc3{nm}\ns_addc_u32 s59, s59, 0\nv_lshlrev_b32 v{t0}, 5, v0\nv_min_u32 v{t0}, L_text_end-L_k3_epi{nm}-4, v{t0}\nglobal_load_dword a238, v{t0}, s[58:59]")
        put(resolve_seq(loop, fin, lgkm_slack=4))
        A(f"L_k3_epi{nm}:")
        pstamp(A, opt, 2, 3)
        A(f"s_lshl_b32 s3, s{qKH}, 16\ns_lshl_b32 s4, s{qMH}, 14\ns_add_u32 s3, s3, s4\nv_add_u32 v2, s3, v{vA}\nv_xor_b32 v3, 0x10000, v2")
        XR = 32
        E = acc3(4, 0)
        def sloads():
            for k in range(16):
                if k % 4 == 0 and k: A(f"s_add_u32 s{qS}, s{qS}, 4096")
                A(f"buffer_load_dwordx4 v[{SR+k*4}:{SR+k*4+3}], v{vA}, s[{sWS}:{sWS+3}], s{qS} offen offset:{(k&3)*1024} sc1")
        A("s_nop 4")
        for k in range(16):
            r = E + k*4
            A(f"ds_write_b128 v2, v[{r}:{r+3}] offset:{k*1024}")
        A("s_waitcnt vmcnt(0)")
        for k in range(16):
            m, i = k >> 2, k & 3
            off = (i*512 + m*32) if ffn else ((m >> 1)*4096 + i*1024 + (m & 1)*512)
            A(f"ds_read_b64_tr_b16 v[{XR+2*k}:{XR+2*k+1}], v{vXR} offset:{off}")
        if ffn:
            for k in range(32): A(f"v_pk_add_f32 {pk(ACC+2*k)}, {pk(ACC+2*k)}, {pk(SR+2*k)}")
            A(f"v_readfirstlane_b32 s54, v{vFL}\ns_cmp_eq_u32 s54, 0\ns_cbranch_scc1 L_k3_late")
            sloads()
            A("L_k3_late:")
        A("s_waitcnt lgkmcnt(0)\ns_barrier")
        pstamp(A, opt, 2, 4)
        for k in range(16): A(f"ds_read_b128 v[{E+k*4}:{E+k*4+3}], v3 offset:{k*1024}")
        if not ffn: pstamp(A, opt, 2, 5)
        if ffn:
            srd(A, qO, 46, 47, 2048*1024*4)
            A(f"s_mov_b32 s4, {hx(f2u(-LOG2E))}\ns_mov_b32 s5, s4\ns_lshl_b32 s{qXo}, s{qXo}, 1")
            for r in range(16): A(f"s_add_u32 s{27+r}, s{qXo}, {r*4096}")
            KS = opt.get('ks', 6)
            def gate(k):
                y = ACC + k*4; e = E + k*4; xr = XR + 2*k
                o = [f"s_waitcnt lgkmcnt({15-k})"]
                o += [f"v_pk_add_f32 {pk(y+h)}, {pk(y+h)}, {pk(e+h)}" for h in (0, 2)]
                o += [f"v_pk_mul_f32 {pk(e+h)}, {pk(y+h)}, s[4:5]" for h in (0, 2)]
                o += [f"v_exp_f32 v{e+h}, v{e+h}" for h in range(4)] + ["s_nop 0"]
                o += [f"v_pk_add_f32 {pk(e+h)}, {pk(e+h)}, 1.0 op_sel_hi:[1,0]" for h in (0, 2)]
                o += [f"v_rcp_f32 v{e+h}, v{e+h}" for h in range(4)] + ["s_nop 0"]
                o += [f"v_pk_mul_f32 {pk(y+h)}, {pk(y+h)}, {pk(e+h)}" for h in (0, 2)]
                o += [f"v_lshlrev_b32 v{e}, 16, v{xr}", f"v_and_b32 v{e+1}, 0xffff0000, v{xr}", f"v_lshlrev_b32 v{e+2}, 16, v{xr+1}", f"v_and_b32 v{e+3}, 0xffff0000, v{xr+1}"]
                return o
            def outp(k):
                m, i = k >> 2, k & 3
                y = ACC + k*4; e = E + k*4; s_ = SR + k*4
                o = [f"s_waitcnt vmcnt({min(63, 15-k+4*k)})\n" + "\n".join(f"v_pk_fma_f32 {pk(e+h)}, {pk(y+h)}, {pk(s_+h)}, {pk(e+h)}" for h in (0, 2))]
                o += [f"buffer_store_dword v{e+r}, v{vXL}, s[{qO}:{qO+3}], s{27+4*i+r} offen offset:{m*64}{OSC}" for r in range(4)]
                return o
            A(cload(vFL, qFL))
            for k in range(KS - 3):
                for x in gate(k): A(x)
            pstamp(A, opt, 2, 5)
            A("s_cmp_lg_u32 s54, 0\ns_cbranch_scc1 L_k3_have")
            wait_word(vFL, qFL, 1, "fs", 0)
            sloads()
            A("L_k3_have:")
            for k in range(KS - 3, KS):
                for x in gate(k): A(x)
            gs = [(k, x) for k in range(KS, 16) for x in gate(k)]
            os_ = [(k, x) for k in range(16) for x in outp(k)]
            oi = 0
            for n_, (k, x) in enumerate(gs):
                A(x)
                if n_ % 3 == 2 and oi < len(os_) and os_[oi][0] < k: A(os_[oi][1]); oi += 1
            for k, x in os_[oi:]: A(x)
            pstamp(A, opt, 2, 6)
            if opt.get('prof'): A("s_waitcnt vmcnt(0)")
            pstamp(A, opt, 2, 7)
            A("s_endpgm")
        else:
            A(f"s_cmp_eq_u32 s{qKH}, 0\ns_cselect_b32 s4, 2.0, -2.0\ns_mov_b32 s5, s4")
            for k in range(16):
                m, i = k >> 2, k & 3
                y = ACC + k*4; e = E + k*4; xr = XR + 2*k
                if i == 0: A(f"v_lshlrev_b32 v10, 16, v{28+m}")
                A(f"v_lshlrev_b32 v4, 16, v{xr}\nv_and_b32 v5, 0xffff0000, v{xr}\nv_lshlrev_b32 v6, 16, v{xr+1}\nv_and_b32 v7, 0xffff0000, v{xr+1}")
                A("v_pk_mul_f32 v[4:5], v[4:5], v[10:11] op_sel_hi:[1,0]\nv_pk_mul_f32 v[6:7], v[6:7], v[10:11] op_sel_hi:[1,0]")
                A("v_cvt_pk_bf16_f32 v12, v4, v5\nv_cvt_pk_bf16_f32 v13, v6, v7")
                A("v_lshlrev_b32 v4, 16, v12\nv_and_b32 v5, 0xffff0000, v12\nv_lshlrev_b32 v6, 16, v13\nv_and_b32 v7, 0xffff0000, v13")
                A(f"s_waitcnt lgkmcnt({15-k})")
                for h in (0, 2): A(f"v_pk_add_f32 {pk(y+h)}, {pk(y+h)}, {pk(e+h)} neg_lo:[0,1] neg_hi:[0,1]")
                for h in (0, 2): A(f"v_pk_fma_f32 {pk(y+h)}, {pk(y+h)}, s[4:5], {pk(4+h)}")
                if k % 4 == 0 and k: A(f"s_add_u32 s{qS}, s{qS}, 4096")
                A(f"buffer_store_dwordx4 v[{y}:{y+3}], v{vA}, s[{sWS}:{sWS+3}], s{qS} offen offset:{(k&3)*1024} sc1")
            pstamp(A, opt, 2, 6)
            A("s_waitcnt vmcnt(0)\ns_barrier")
            signal(A, sWV, sWS, f"s_mov_b32 s3, s{qFL}", 2, "fl")
            pstamp(A, opt, 2, 7)
            A("s_endpgm")
            A("L_k3_sig:")
            signal(A, sWV, sWS, "s_mov_b32 s3, s67", t0, "pf")
            A("s_branch L_k3_sigret")
            A("L_k3_spin:\ns_sleep 1\n" + mload(qCnt2) + "\ns_waitcnt vmcnt(0)\ns_sub_u32 s55, s55, 1\ns_cmp_lg_u32 s55, 0\ns_cbranch_scc1 L_wcs\ns_branch L_gcs")
    role(True)
    role(False)
    A("L_end:\ns_endpgm")
    return kernel_desc("main_kernel", 512, 256, 102)
```

```python
import sys, struct
def f2u(x): return struct.unpack("<I", struct.pack("<f", x))[0]
def hx(x): return f"0x{x & 0xffffffff:08x}"
import math

import os
WSB = int(os.environ.get('WSB', '0'), 0)
XN_OFF = WSB + 0
H_OFF  = WSB + 0x400000
HS_OFF = WSB + 0x1200000
S_OFF  = WSB + 0x1A00000
EX_OFF = WSB + 0x2200000
FL_OFF = WSB + 0x2240000
PT_OFF = WSB + 0x2258000
PW_OFF = WSB + 0x2260000
WS_END = WSB + 0x2280000
WS_SIZE = 0x10000000
KA = dict(x=0, lre=8, lim=16, bre=24, bim=32, cre=40, cim=48, ldt=56, dsk=64, bx=72, wg=80, wu=88, wd=96, out=104, dbg=112, ws=120)

class Asm:
    def __init__(self): self.l = []
    def __call__(self, s):
        for x in s.split("\n"):
            x = x.strip()
            if x: self.l.append(("" if x.endswith(":") else "    ") + x)
    def text(self): return "\n".join(self.l) + "\n"

def kernel_head(A, name):
    A.l.append(f".globl {name}\n.p2align 8\n.type {name},@function\n{name}:")
def kernel_desc(name, vgpr, accum, sgpr=102):
    return f""".p2align 6
.amdhsa_kernel {name}
  .amdhsa_next_free_vgpr {vgpr}
  .amdhsa_next_free_sgpr {sgpr}
  .amdhsa_accum_offset {accum}
  .amdhsa_group_segment_fixed_size 0
  .amdhsa_kernarg_size 128
  .amdhsa_user_sgpr_count 2
  .amdhsa_user_sgpr_kernarg_segment_ptr 1
  .amdhsa_system_sgpr_workgroup_id_x 1
  .amdhsa_float_denorm_mode_32 3
.end_amdhsa_kernel
"""
def srd(A, d, lo, hi, size, add=None):
    if add is None:
        A(f"s_mov_b32 s{d}, s{lo}\ns_mov_b32 s{d+1}, s{hi}")
    else:
        A(f"s_add_u32 s{d}, s{lo}, {add}\ns_addc_u32 s{d+1}, s{hi}, 0")
    A(f"s_mov_b32 s{d+2}, {size}\ns_mov_b32 s{d+3}, 0x00020000")

PROF_OFF = 0x3000000
def stamp(A, opt, n):
    if opt.get('prof'):
        A(f"s_memtime s[{70+4*n}:{71+4*n}]\ns_memrealtime s[{72+4*n}:{73+4*n}]\ns_waitcnt lgkmcnt(0)")
def signal(A, swv, sws, addr, vt, uid):
    A(f"s_cmp_lg_u32 s{swv}, 0\ns_cbranch_scc1 L_sig{uid}")
    A(addr)
    A(f"s_mov_b64 exec, 1\nbuffer_store_dwordx2 a[248:249], off, s[{sws}:{sws+3}], s3 sc1\ns_mov_b64 exec, -1")
    A(f"L_sig{uid}:")
def stamp_out(A, opt, nst, kidx, swv, lo, hi, nowait=False):
    if opt.get('prof'):
        if not nowait: A("s_waitcnt vmcnt(0)")
        stamp(A, opt, nst - 1)
        srd(A, 64, lo, hi, WS_SIZE)
        A(f"s_lshl_b32 s3, s2, 2\ns_add_u32 s3, s3, s{swv}\ns_lshl_b32 s3, s3, 6\ns_add_u32 s3, s3, {PROF_OFF + kidx*0x10000}")
        A("v_mov_b32 v1, 0")
        for n in range(nst):
            A(f"v_mov_b32 v2, s{70+4*n}\nv_mov_b32 v3, s{72+4*n}\nbuffer_store_dwordx2 v[2:3], v1, s[64:67], s3 offen offset:{n*8}\ns_nop 1")
def code_prefetch(A, lab0, lab1, sp, vt, vd, share, uid, back=False):
    if back: A(f"s_getpc_b64 s[{sp}:{sp+1}]\nL_pc{uid}:\ns_sub_u32 s{sp}, s{sp}, L_pc{uid}-{lab0}\ns_subb_u32 s{sp+1}, s{sp+1}, 0")
    else: A(f"s_getpc_b64 s[{sp}:{sp+1}]\nL_pc{uid}:\ns_add_u32 s{sp}, s{sp}, {lab0}-L_pc{uid}\ns_addc_u32 s{sp+1}, s{sp+1}, 0")
    A(f"v_and_b32 v{vt}, 63, v0\nv_min_u32 v{vt}, {share-1}, v{vt}\ns_lshr_b32 s3, s2, 3\ns_mul_i32 s3, s3, {share}\nv_add_lshl_u32 v{vt}, v{vt}, s3, 7")
    A(f"v_min_u32 v{vt}, {lab1}-{lab0}-4, v{vt}\nglobal_load_dword {vd if isinstance(vd, str) else 'v%d' % vd}, v{vt}, s[{sp}:{sp+1}]")

LOG2E = 1.4426950408889634
def gen_k1(A, opt):
    kernel_head(A, "ln_kernel")
    A("s_cmp_ge_u32 s2, 256\ns_cbranch_scc1 L_k1_end")
    for n in range(7): stamp(A, opt, n)
    A(f"s_load_dwordx2 s[4:5], s[0:1], {KA['x']}\ns_load_dwordx2 s[6:7], s[0:1], {KA['ws']}")
    PFK = opt.get('pfk', 1)
    A(f"s_load_dwordx4 s[24:27], s[0:1], {KA['wg']}\ns_load_dwordx4 s[28:31], s[0:1], {KA['bre']}")
    A(f"s_load_dwordx4 s[32:35], s[0:1], {KA['lre']}\ns_load_dwordx2 s[36:37], s[0:1], {KA['ldt']}")
    A("v_and_b32 v1, 7, v0\nv_lshrrev_b32 v2, 3, v0")
    A("s_lshr_b32 s16, s2, 3")
    A("s_bfe_u32 s17, s2, 0x10002")
    A("s_and_b32 s18, s2, 3")
    A("s_lshl_b32 s19, s16, 6\ns_lshl_b32 s20, s17, 5\ns_add_u32 s19, s19, s20\ns_lshl_b32 s20, s18, 2\ns_add_u32 s19, s19, s20")
    A("v_lshrrev_b32 v3, 2, v1\nv_lshlrev_b32 v3, 4, v3\nv_and_b32 v4, 3, v1\nv_add3_u32 v3, v3, v4, s19")
    A("v_lshlrev_b32 v3, 11, v3\nv_lshl_add_u32 v3, v2, 4, v3")
    A("v_lshrrev_b32 v51, 6, v0\nv_and_b32 v56, 3, v0\ns_lshl_b32 s21, s2, 2\nv_add_u32 v56, s21, v56")
    A("v_readfirstlane_b32 s40, v51\nv_lshlrev_b32 v57, 1, v56")
    A("s_waitcnt lgkmcnt(0)")
    srd(A, 8, 4, 5, 2048*1024*2)
    srd(A, 12, 6, 7, WS_END)
    A("buffer_load_dwordx4 v[8:11], v3, s[8:11], 0 offen\nbuffer_load_dwordx4 v[12:15], v3, s[8:11], 0 offen offset:1024")
    A("global_load_ushort v58, v57, s[32:33]\nglobal_load_ushort v59, v57, s[34:35]\nglobal_load_ushort v60, v57, s[36:37]")
    NPF = 3
    if opt.get('cpf', 1):
        code_prefetch(A, "main_kernel", "L_text_end", 42, 50, 52, opt.get("cpfn", 23), 1); NPF += 1
    if PFK:
        fl = " nt" if opt.get('pfnt') else ""
        R = 4*PFK
        A(f"v_bfe_u32 v50, v0, 3, 5\nv_min_u32 v50, {R-1}, v50\nv_min_u32 v51, 6, v1\ns_mul_i32 s38, s16, {R}\nv_add_u32 v50, s38, v50\ns_movk_i32 s39, 7168\nv_mul_lo_u32 v50, v50, s39")
        A("s_and_b32 s38, s2, 7\ns_mul_i32 s38, s38, 896\nv_lshl_add_u32 v50, v51, 7, v50\nv_add_u32 v50, s38, v50")
        A("s_cmp_lt_u32 s40, 4\ns_cselect_b32 s24, s24, s26\ns_cselect_b32 s25, s25, s27\ns_cselect_b32 s28, s28, s30\ns_cselect_b32 s29, s29, s31")
        A(f"global_load_dword v53, v50, s[24:25]{fl}")
        A(f"s_and_b32 s38, s2, 7\ns_lshl_b32 s38, s38, 18\ns_lshl_b32 s39, s16, 13\ns_add_u32 s38, s38, s39\nv_and_b32 v50, 15, v0\nv_min_u32 v50, {2*PFK-1}, v50\nv_bfe_u32 v51, v0, 4, 2\nv_lshlrev_b32 v51, 11, v51\nv_lshl_add_u32 v50, v50, 7, v51\nv_add_u32 v50, s38, v50")
        A(f"global_load_dword v54, v50, s[28:29]{fl}")
        NPF += 2
    if opt.get('pf3k1'):
        A(f"s_load_dwordx4 s[44:47], s[0:1], {KA['cre']}\ns_load_dwordx2 s[22:23], s[0:1], {KA['wd']}\ns_waitcnt lgkmcnt(0)")
        A("s_cmp_lt_u32 s40, 4\ns_cselect_b32 s44, s44, s46\ns_cselect_b32 s45, s45, s47")
        A("s_lshl_b32 s38, s2, 13\nv_and_b32 v50, 63, v0\nv_lshlrev_b32 v50, 7, v50\nv_add_u32 v50, s38, v50")
        A(f"global_load_dword v54, v50, s[44:45]")
        A("s_mul_i32 s38, s2, 28672\nv_min_u32 v50, 223, v0\nv_lshlrev_b32 v50, 7, v50\nv_add_u32 v50, s38, v50")
        A(f"global_load_dword v55, v50, s[22:23]")
        NPF += 2
    A("s_lshl_b32 s19, s16, 17\ns_lshl_b32 s20, s18, 10\ns_add_u32 s19, s19, s20\ns_lshl_b32 s20, s17, 7\ns_add_u32 s19, s19, s20")
    if XN_OFF: A(f"s_add_u32 s19, s19, {XN_OFF}")
    A("v_lshrrev_b32 v4, 2, v2\nv_lshlrev_b32 v4, 12, v4\nv_and_b32 v5, 3, v2\nv_lshlrev_b32 v5, 8, v5\nv_add3_u32 v4, v4, v5, s19\nv_lshl_add_u32 v4, v1, 4, v4")
    A("v_lshrrev_b32 v5, 6, v0\nv_lshlrev_b32 v5, 2, v5\nv_lshl_add_u32 v5, v1, 5, v5\nv_lshlrev_b32 v6, 5, v1")
    A(f"s_waitcnt vmcnt({NPF})")
    stamp(A, opt, 1)
    for r in range(8):
        A(f"v_lshlrev_b32 v{16+2*r}, 16, v{8+r}\nv_and_b32 v{17+2*r}, 0xffff0000, v{8+r}")
    def reduce(src, ldsoff):
        A(f"s_nop 1\nv_add_f32_dpp v{src}, v{src}, v{src} row_ror:8 row_mask:0xf bank_mask:0xf")
        A(f"v_mov_b32 v33, v{src}\ns_nop 1\nv_permlane16_swap_b32 v{src}, v33\ns_nop 1\nv_add_f32 v{src}, v{src}, v33")
        A(f"v_mov_b32 v33, v{src}\ns_nop 1\nv_permlane32_swap_b32 v{src}, v33\ns_nop 1\nv_add_f32 v{src}, v{src}, v33")
        A(f"ds_write_b32 v5, v{src} offset:{ldsoff}")
        A("s_waitcnt lgkmcnt(0)\ns_barrier")
        A(f"ds_read_b128 v[36:39], v6 offset:{ldsoff}\nds_read_b128 v[40:43], v6 offset:{ldsoff+16}\ns_waitcnt lgkmcnt(0)")
        A("v_pk_add_f32 v[36:37], v[36:37], v[38:39]\nv_pk_add_f32 v[40:41], v[40:41], v[42:43]\nv_pk_add_f32 v[36:37], v[36:37], v[40:41]\nv_add_f32 v32, v36, v37")
    A("v_pk_add_f32 v[34:35], v[16:17], v[18:19]\nv_pk_add_f32 v[36:37], v[20:21], v[22:23]\nv_pk_add_f32 v[38:39], v[24:25], v[26:27]\nv_pk_add_f32 v[40:41], v[28:29], v[30:31]")
    A("v_pk_add_f32 v[34:35], v[34:35], v[36:37]\nv_pk_add_f32 v[38:39], v[38:39], v[40:41]\nv_pk_add_f32 v[34:35], v[34:35], v[38:39]\nv_add_f32 v34, v34, v35")
    reduce(34, 0)
    A(f"v_mul_f32 v44, {hx(f2u(-1.0/1024))}, v32")
    for r in range(8):
        t = 36 + (r & 1)*2
        A(f"v_pk_add_f32 v[{t}:{t+1}], v[{16+2*r}:{17+2*r}], v[44:45] op_sel_hi:[1,0]")
        d = 34 if (r & 1) == 0 else 40
        if r < 2: A(f"v_pk_mul_f32 v[{d}:{d+1}], v[{t}:{t+1}], v[{t}:{t+1}]")
        else: A(f"v_pk_fma_f32 v[{d}:{d+1}], v[{t}:{t+1}], v[{t}:{t+1}], v[{d}:{d+1}]")
    A("v_pk_add_f32 v[34:35], v[34:35], v[40:41]\nv_add_f32 v34, v34, v35")
    reduce(34, 256)
    A(f"v_mul_f32 v45, {hx(f2u(1.0/1024))}, v32")
    A("v_cvt_pk_bf16_f32 v46, v44, v45")
    A("v_lshlrev_b32 v44, 16, v46\nv_and_b32 v46, 0xffff0000, v46")
    A(f"v_add_f32 v46, {hx(f2u(1e-5))}, v46\nv_cvt_pk_bf16_f32 v46, v46, v46\nv_lshlrev_b32 v46, 16, v46")
    A("v_sqrt_f32 v46, v46\ns_nop 0\nv_cvt_pk_bf16_f32 v46, v46, v46\nv_lshlrev_b32 v46, 16, v46\nv_rcp_f32 v46, v46")
    for r in range(8): A(f"v_pk_add_f32 v[{16+2*r}:{17+2*r}], v[{16+2*r}:{17+2*r}], v[44:45] op_sel_hi:[1,0]")
    for r in range(8): A(f"v_cvt_pk_bf16_f32 v{8+r}, v{16+2*r}, v{17+2*r}")
    for r in range(8): A(f"v_lshlrev_b32 v{16+2*r}, 16, v{8+r}\nv_and_b32 v{17+2*r}, 0xffff0000, v{8+r}")
    for r in range(8): A(f"v_pk_mul_f32 v[{16+2*r}:{17+2*r}], v[{16+2*r}:{17+2*r}], v[46:47] op_sel_hi:[1,0]")
    for r in range(8): A(f"v_cvt_pk_bf16_f32 v{8+r}, v{16+2*r}, v{17+2*r}")
    A("s_mov_b32 s20, 0x10000")
    SC = " sc1" if opt.get('sc1', 1) else ""
    A(f"buffer_store_dwordx4 v[8:11], v4, s[12:15], 0 offen{SC}\nbuffer_store_dwordx4 v[12:15], v4, s[12:15], s20 offen{SC}")
    A("s_cmp_gt_u32 s40, 1\ns_cbranch_scc1 L_k1_fin")
    A("s_cmp_eq_u32 s40, 0\ns_cbranch_scc1 L_k1_par")
    A("s_cmp_lt_u32 s2, 112\ns_cselect_b32 s20, 1, 0\nv_mov_b32 v40, 0\nv_mov_b32 v41, s20\nv_mov_b32 v42, 0\nv_mov_b32 v43, s20\nv_and_b32 v6, 63, v0\nv_lshlrev_b32 v6, 4, v6")
    A(f"s_lshl_b32 s20, s2, 10\ns_add_u32 s20, s20, {EX_OFF}\nbuffer_store_dwordx4 v[40:43], v6, s[12:15], s20 offen{SC}")
    A(f"s_mul_i32 s20, s2, 384\ns_add_u32 s20, s20, {FL_OFF}\nv_mov_b32 v41, 0\nv_and_b32 v6, 63, v0\nv_min_u32 v6, 47, v6\nv_lshlrev_b32 v6, 3, v6\nbuffer_store_dwordx2 v[40:41], v6, s[12:15], s20 offen{SC}")
    A("s_branch L_k1_fin")
    A("L_k1_par:")
    c_hi = struct.unpack("<f", struct.pack("<f", 1/(2*math.pi)))[0]; c_lo = 1/(2*math.pi) - c_hi
    A(f"s_mov_b32 s3, {hx(f2u(LOG2E))}\ns_mov_b32 s4, {hx(f2u(c_hi))}\ns_mov_b32 s5, {hx(f2u(c_lo))}")
    A(f"s_waitcnt vmcnt({NPF-3+2})")
    def cmul(dr, di, ar, ai, br, bi, tmp):
        A(f"v_mul_f32 v{tmp}, v{ai}, v{bi}\nv_mul_f32 v{tmp+1}, v{ai}, v{br}")
        A(f"v_fma_f32 v{tmp}, v{ar}, v{br}, -v{tmp}\nv_fma_f32 v{di}, v{ar}, v{bi}, v{tmp+1}\nv_mov_b32 v{dr}, v{tmp}")
    lr, li, ld = 58, 59, 60
    la, lb, cr, ci = 16, 17, 18, 19
    dt, zr, zi, hi, lo, mag = range(24, 30)
    A(f"v_lshlrev_b32 v{lr}, 16, v{lr}\nv_lshlrev_b32 v{li}, 16, v{li}\nv_lshlrev_b32 v{ld}, 16, v{ld}")
    A(f"v_mul_f32 v{dt}, s3, v{ld}\nv_exp_f32 v{dt}, v{dt}\ns_nop 0\nv_cvt_pk_bf16_f32 v{dt}, v{dt}, v{dt}\nv_lshlrev_b32 v{dt}, 16, v{dt}")
    A(f"v_mul_f32 v{zr}, v{dt}, v{lr}\nv_mul_f32 v{zi}, v{dt}, v{li}")
    A(f"v_mul_f32 v{mag}, s3, v{zr}\nv_exp_f32 v{mag}, v{mag}")
    A(f"v_mul_f32 v{hi}, s4, v{zi}\nv_fma_f32 v{lo}, v{zi}, s4, -v{hi}\nv_fma_f32 v{lo}, v{zi}, s5, v{lo}")
    A(f"v_rndne_f32 v{la}, v{hi}\nv_sub_f32 v{hi}, v{hi}, v{la}\nv_add_f32 v{hi}, v{hi}, v{lo}")
    A(f"v_cos_f32 v{la}, v{hi}\nv_sin_f32 v{lb}, v{hi}\ns_nop 0\nv_mul_f32 v{la}, v{la}, v{mag}\nv_mul_f32 v{lb}, v{lb}, v{mag}")
    am1, den = dt, zr
    A(f"v_add_f32 v{am1}, -1.0, v{la}\nv_mul_f32 v{den}, v{lr}, v{lr}\nv_fmac_f32 v{den}, v{li}, v{li}\nv_rcp_f32 v{den}, v{den}")
    A(f"v_mul_f32 v{cr}, v{am1}, v{lr}\nv_fmac_f32 v{cr}, v{lb}, v{li}\nv_mul_f32 v{ci}, v{lb}, v{lr}\nv_fma_f32 v{ci}, -v{am1}, v{li}, v{ci}")
    A(f"v_mul_f32 v{cr}, v{cr}, v{den}\nv_mul_f32 v{ci}, v{ci}, v{den}")
    tmp = 30; pr, pi, sr, si = 32, 33, 34, 35
    cmul(20, 21, la, lb, la, lb, tmp)
    for _ in range(3): cmul(20, 21, 20, 21, 20, 21, tmp)
    A(f"v_mov_b32 v22, v20\nv_mov_b32 v23, v21\nv_mov_b32 v{pr}, 1.0\nv_mov_b32 v{pi}, 0")
    for k in range(4):
        A(f"v_and_b32 v{sr}, {4<<k}, v0\nv_cmp_ne_u32 vcc, 0, v{sr}\nv_mov_b32 v{si}, 1.0\ns_nop 0")
        A(f"v_cndmask_b32 v{sr}, v{si}, v22, vcc\nv_cndmask_b32 v{si}, 0, v23, vcc")
        cmul(pr, pi, pr, pi, sr, si, tmp)
        cmul(22, 23, 22, 23, 22, 23, tmp)
    A(f"v_lshlrev_b32 v36, 5, v56\ns_mov_b32 s20, {PT_OFF}\nv_lshrrev_b32 v37, 2, v0\nv_lshlrev_b32 v37, 13, v37\nv_lshl_add_u32 v37, v56, 3, v37\ns_mov_b32 s21, {PW_OFF}")
    A(f"buffer_store_dwordx4 v[16:19], v36, s[12:15], s20 offen{SC}\nbuffer_store_dwordx4 v[20:23], v36, s[12:15], s20 offen offset:16{SC}\nbuffer_store_dwordx2 v[32:33], v37, s[12:15], s21 offen{SC}")
    A("L_k1_fin:")
    if opt.get('prof'):
        for n in range(2, 7): stamp(A, opt, n)
        A("s_and_b32 s40, s40, 3")
        stamp_out(A, opt, 8, 0, 40, 6, 7)
    A("L_k1_end:\ns_endpgm")
    return kernel_desc("ln_kernel", 64, 64, 102 if opt.get("prof") else 48)

class Op:
    def __init__(self, text, kind=None, tag=None, need_vm=None, need_lds=None):
        self.text, self.kind, self.tag, self.need_vm, self.need_lds = text, kind, tag, need_vm, need_lds

def resolve_loop(ops, lgkm_slack=6):
    n = len(ops)
    out = []
    def count_after(i, tag, kind):
        c = 0
        for d in range(1, n + 1):
            o = ops[(i - d) % n]
            if o.kind == kind:
                if o.tag == tag: return c
                c += 1
        raise Exception(f"tag {tag} not found")
    bound = {'vm': 10**6, 'lds': 10**6}
    res = None
    for p in range(2):
        res = []
        for i, o in enumerate(ops):
            w = []
            if o.need_vm is not None:
                if isinstance(o.need_vm, tuple):
                    c = count_after(i, o.need_vm[0], 'vm') + o.need_vm[1] * sum(1 for z in ops if z.kind == 'vm')
                else:
                    c = count_after(i, o.need_vm, 'vm')
                if bound['vm'] > c:
                    assert c <= 63
                    w.append(f"vmcnt({c})"); bound['vm'] = c
            if o.need_lds is not None:
                c = count_after(i, o.need_lds, 'lds')
                if bound['lds'] > c:
                    c = min(c, lgkm_slack)
                    w.append(f"lgkmcnt({c})"); bound['lds'] = c
            if w: res.append("s_waitcnt " + " ".join(w))
            res.append(o.text)
            if o.kind == 'vm': bound['vm'] += 1
            if o.kind == 'lds': bound['lds'] += 1
            if o.kind == 'lgkm0': bound['lds'] = 0
        if p == 0: first = list(res)
    return first

def resolve_seq(prev, ops, lgkm_slack=6):
    allops = prev + ops
    base = len(prev)
    def count_after(i, tag, kind):
        c = 0
        for d in range(i - 1, -1, -1):
            o = allops[d]
            if o.kind == kind:
                if o.tag == tag: return c
                c += 1
        raise Exception(f"tag {tag} not found")
    bound = {'vm': 10**6, 'lds': 10**6}
    res = []
    for i, o in enumerate(ops):
        w = []
        if o.need_vm is not None:
            c = count_after(base + i, o.need_vm, 'vm')
            if bound['vm'] > c:
                assert c <= 63
                w.append(f"vmcnt({c})"); bound['vm'] = c
        if o.need_lds is not None:
            c = count_after(base + i, o.need_lds, 'lds')
            if bound['lds'] > c:
                c = min(c, lgkm_slack)
                w.append(f"lgkmcnt({c})"); bound['lds'] = c
        if w: res.append("s_waitcnt " + " ".join(w))
        res.append(o.text)
        if o.kind == 'vm': bound['vm'] += 1
        if o.kind == 'lds': bound['lds'] += 1
        if o.kind == 'lgkm0': bound['lds'] = 0
    return res

def interleave(mfmas, fillers, per_gap=2):
    out = []; fi = 0
    for m, mf in enumerate(mfmas):
        out.append(mf)
        k = 0
        while fi < len(fillers) and fillers[fi][0] <= m and (k < per_gap or m == len(mfmas) - 1):
            out.append(fillers[fi][1]); fi += 1; k += 1
    assert fi == len(fillers)
    return out

def spread(nm, streams, per_gap=1):
    slots = [[] for _ in range(nm)]
    for st in streams:
        last = 0
        for e, op in st:
            m = max(e, last)
            while m < nm - 1 and len(slots[m]) >= per_gap: m += 1
            slots[m].append(op); last = m
    return slots

STAGE2 = 37888
def mix(trans, plain, ratio=2):
    out = []; trans = list(trans); plain = list(plain)
    while trans or plain:
        if trans: out.append(trans.pop(0))
        for _ in range(ratio if trans else len(plain)):
            if plain: out.append(plain.pop(0))
    return out

import subprocess, re
def align_pass(txt, mode):
    open("_al.s", "w").write(re.sub(r"\.rept \d+", ".rept 1", txt))
    r = subprocess.run(["llvm-mc", "-triple", "amdgcn-amd-amdhsa", "-mcpu=gfx950", "-show-encoding", "_al.s"], capture_output=True, text=True)
    assert r.returncode == 0, r.stderr
    enc = [(l.split(';')[0].strip(), l.count(',', l.index('encoding:')) + 1) for l in r.stdout.splitlines() if 'encoding:' in l]
    lines = txt.split("\n"); out = []; k = 0; off = 0; last4 = None
    for l in lines:
        st = l.strip()
        isins = l.startswith("    ") and not st.startswith(".") and not st.startswith(";")
        if st.startswith(".p2align"): off = 0; last4 = None
        if st.startswith(".rept") or st.startswith(".endr"):
            if off % 8 == 4: out.append("    s_nop 0"); off += 4
            last4 = None
        if not isins:
            out.append(l); continue
        name, size = enc[k]; k += 1
        if size == 8 and off % 8 == 4:
            if last4 is not None:
                idx = last4; parts = out[idx].split(); out[idx] = "    " + parts[0] + "_e64 " + " ".join(parts[1:]); off += 4
            elif mode == 2:
                out.append("    s_nop 0"); off += 4
        out.append(l); off += size
        if size == 4:
            op = name.split()[0]
            if op.endswith("_e32") and not op.startswith(("v_permlane", "v_readfirstlane", "v_cmp", "v_cndmask", "v_accvgpr")): last4 = len(out) - 1
        else: last4 = None
    assert k == len(enc), (k, len(enc))
    return "\n".join(out)

def main(path, opt={}):
    A = Asm()
    head = ["; generated by gen.py",
            "; @launch " + ("kernel=recurrent_scan__ssm_conv_s5__glu_gated_geglu__prompt_kernel " if opt.get('list') or opt.get('prof') else "") + "grid=(256,1,1) block=(256,1,1) lds=163840"]
    import importlib
    gen_main = importlib.import_module(os.environ.get('GENF', 'genf')).gen_main
    descs = [gen_main(A, opt)]
    A("L_text_end:")
    txt = "\n".join(head) + '\n.amdgcn_target "amdgcn-amd-amdhsa--gfx950"\n.text\n' + A.text() + '.section .rodata,"a"\n' + "".join(descs)
    if opt.get('align', 1): txt = align_pass(txt, opt.get('align', 1))
    open(path, "w").write(txt)

if __name__ == "__main__":
    opt = {}
    for a in sys.argv[2:]:
        k, v = a.split("="); opt[k] = int(v)
    main(sys.argv[1], opt)
```

```python
from gen import *

def pstamp(A, opt, k, n, early=False):
    if not opt.get('prof'): return
    A("s_memtime s[96:97]\ns_memrealtime s[98:99]\ns_waitcnt lgkmcnt(0)")
    if early: A("s_mov_b32 s94, s96\ns_mov_b32 s95, s98"); return
    A(f"v_accvgpr_write_b32 a254, s96\nv_accvgpr_write_b32 a255, s98\ns_add_u32 s101, s100, {k*0x10000}\nbuffer_store_dwordx2 a[254:255], off, s[20:23], s101 offset:{n*8}")

def gen_main(A, opt):
    kernel_head(A, "recurrent_scan__ssm_conv_s5__glu_gated_geglu__prompt_kernel")
    pk = lambda r: f"v[{r}:{r+1}]"
    WSZ = WS_SIZE if opt.get('prof') else WSB + 0x2300000 + 0x800000
    WF = 64; XB = 136; PAR = 200; STASH = 240
    vWD = list(range(1, 10)); vX = 10
    vRW = [11, 12]; vRB = [[13, 14], [15, 16]]
    L = 18; t0, t1, t2, t3 = 19, 20, 21, 22
    vP = [23, 24]
    sW, sB, sX, sWS = 8, 12, 16, 20
    sRB, sU, sWV = 24, 25, 26
    sWoff, sBoff, sXoff = 27, 28, 29
    sM = [30, 31]; sMB = [32, 33]
    sDelta, sTrip, sTB, sCol, sCh = 34, 35, 36, 37, 38
    XD = 3
    WNT = " nt" if opt.get('wnt', 1) else ""
    SC = " sc1"
    PF = opt.get('pft', 9) == 9
    ACC = 128
    acc3 = lambda j, i: ACC + (j*4+i)*4
    BF = 0; AB = 32
    AD = opt.get('ad3', 2)
    OSC = ["", " sc1", " nt"][opt.get('osc', 2)]
    vD = list(range(1, 9)); vA = 9; vR = list(range(10, 18))
    vXL, vXD, vXR, vFL = 23, 24, 25, 26
    SR = 64; XLDS = 131072
    qRB, qCB, qKH, qMH, qRole, qTB = 60, 61, 62, 63, 64, 65
    qB = 68; qPB = [72, 73, 74, 75]; qM, qBb, qBoff, qRho = 76, 77, 78, 79
    qA, qO, qC = 20, 12, 8
    vD2 = list(range(32, 40)); vR2 = list(range(40, 44)); qPC = [16, 17, 18, 19]; qCb, qAb2, qCnt2 = 91, 92, 93
    P_OFF = WSB + 0x2300000
    qPA = [80, 81, 82, 83]; qAb, qAoff, qFL, qS, qXo, qXL, qCnt = 84, 85, 86, 87, 88, 89, 90
    CNT_H = FL_OFF + 256*128; CNT_S = FL_OFF + 512*128; vFO = 44; CNT_X = FL_OFF + 768*128
    def put(lines):
        prev = ""
        for x in lines:
            if ' m0,' in prev and x.endswith('lds'): A("s_nop 0")
            A(x); prev = x
    emit = lambda ops: put([o.text for o in ops])

    A("s_cmp_ge_u32 s2, 256\ns_cbranch_scc1 L_end")
    pstamp(A, opt, 1, 0, early=True)
    A(f"s_load_dwordx2 s[60:61], s[0:1], {KA['x']}")
    A(f"s_load_dwordx4 s[48:51], s[0:1], {KA['dbg']}")
    A(f"s_load_dwordx4 s[40:43], s[0:1], {KA['wg']}")
    A(f"s_load_dwordx4 s[44:47], s[0:1], {KA['bre']}")
    A(f"s_load_dwordx4 s[64:67], s[0:1], {KA['lre']}")
    A(f"s_load_dwordx2 s[62:63], s[0:1], {KA['ldt']}")
    A(f"s_load_dwordx4 s[52:55], s[0:1], {KA['cre']}")
    A(f"s_load_dwordx2 s[56:57], s[0:1], {KA['wd']}")
    vLS, vLW, vLR, vCH = 25, 26, 27, 28
    PB = 4*STAGE2; PWL = PB + 1280; LNL = PB + 11520
    A("v_and_b32 v29, 7, v0\nv_lshrrev_b32 v30, 3, v0")
    A("s_lshr_b32 s68, s2, 3\ns_bfe_u32 s69, s2, 0x10002\ns_and_b32 s70, s2, 3")
    A("s_lshl_b32 s71, s68, 6\ns_lshl_b32 s3, s69, 5\ns_add_u32 s71, s71, s3\ns_lshl_b32 s3, s70, 2\ns_add_u32 s71, s71, s3")
    A(f"v_lshrrev_b32 v{t0}, 2, v29\nv_lshlrev_b32 v{t0}, 4, v{t0}\nv_and_b32 v{t1}, 3, v29\nv_add3_u32 v{t0}, v{t0}, v{t1}, s71\nv_lshlrev_b32 v{t0}, 11, v{t0}\nv_lshl_add_u32 v{t0}, v30, 4, v{t0}")
    A("s_waitcnt lgkmcnt(0)")
    srd(A, sWS, 50, 51, WSZ)
    A("s_cmp_ge_u32 s2, 16\ns_cbranch_scc1 L_noclr")
    A("s_cmp_lt_u32 s2, 7\ns_cselect_b32 s3, 1, 0\nv_mov_b32 v32, 0\nv_mov_b32 v33, s3\nv_mov_b32 v34, 0\nv_mov_b32 v35, s3\nv_lshlrev_b32 v36, 4, v0\nv_mov_b32 v60, 0\nv_mov_b32 v61, 0\nv_mov_b32 v62, 0\nv_mov_b32 v63, 0")
    A(f"s_lshl_b32 s3, s2, 13\ns_add_u32 s3, s3, {FL_OFF}\nbuffer_store_dwordx4 v[60:63], v36, s[{sWS}:{sWS+3}], s3 offen sc1\ns_add_u32 s3, s3, 4096\nbuffer_store_dwordx4 v[60:63], v36, s[{sWS}:{sWS+3}], s3 offen sc1")
    A(f"s_lshl_b32 s3, s2, 14\ns_add_u32 s3, s3, {EX_OFF}")
    for k in range(4): A(f"buffer_store_dwordx4 v[32:35], v36, s[{sWS}:{sWS+3}], s3 offen sc1\ns_add_u32 s3, s3, 4096")
    A("L_noclr:")
    for m in range(4): A(f"global_load_dwordx4 v[{40+4*m}:{43+4*m}], v{t0}, s[60:61] offset:{m*512}")
    A(f"v_lshrrev_b32 v17, 6, v0\nv_and_b32 v{L}, 63, v0")
    A(f"s_and_b32 s3, s2, 7\ns_bfe_u32 s{sU}, s2, 0x20003\ns_lshr_b32 s{sRB}, s2, 5")
    A(f"v_readfirstlane_b32 s{sWV}, v17")
    A(f"s_mul_i32 s{sCol}, s3, 448\ns_lshl_b32 s4, s{sU}, 7\ns_add_u32 s{sCol}, s{sCol}, s4")
    A(f"s_lshl_b32 s{sCh}, s3, 7\ns_lshl_b32 s4, s{sU}, 4\ns_add_u32 s{sCh}, s{sCh}, s4")
    A(f"v_lshlrev_b32 v{vX}, 4, v{L}")
    A(f"s_lshl_b32 s{sTB}, s{sRB}, 2\ns_add_u32 s{sTB}, s{sTB}, s{sWV}\ns_lshl_b32 s{sXoff}, s{sTB}, 17")
    if XN_OFF: A(f"s_add_u32 s{sXoff}, s{sXoff}, {XN_OFF}")
    A(f"s_mov_b32 s{sWoff}, 0\ns_mov_b32 s{sBoff}, 0\ns_mov_b32 s{sDelta}, {2*STAGE2}")
    A(f"s_mov_b32 s{sW+2}, {1024*3584*2}\ns_mov_b32 s{sW+3}, 0x00020000\ns_mov_b32 s{sB+2}, {1024*1024*2}\ns_mov_b32 s{sB+3}, 0x00020000")
    A(f"s_and_b32 s5, s{sWV}, 1\ns_mul_i32 s6, s5, {32*7168}\ns_lshl_b32 s7, s{sCol}, 1\ns_add_u32 s6, s6, s7\ns_movk_i32 s7, 7168")
    A(f"s_cmp_eq_u32 s{sU}, 3\ns_cselect_b32 s3, 79, 15\nv_min_u32 v{vCH}, s3, v0\nv_add_lshl_u32 v{t1}, v{vCH}, s{sCh}, 1\nv_lshlrev_b32 v{vCH}, 3, v{vCH}")
    A(f"s_cmp_lt_u32 s{sWV}, 2\ns_cselect_b32 s{sW}, s40, s42\ns_cselect_b32 s{sW+1}, s41, s43\ns_cselect_b32 s{sB}, s44, s46\ns_cselect_b32 s{sB+1}, s45, s47")
    A(f"s_cselect_b32 s52, s52, s54\ns_cselect_b32 s53, s53, s55")
    A(f"global_load_ushort v56, v{t1}, s[64:65]\nglobal_load_ushort v57, v{t1}, s[66:67]\nglobal_load_ushort v58, v{t1}, s[62:63]")
    NE = 3
    PFR = opt.get('pfr', 4)
    if PFR:
        A(f"v_bfe_u32 v{t2}, v0, 3, 4\nv_min_u32 v{t2}, {PFR-1}, v{t2}\nv_min_u32 v{t3}, 6, v29\ns_mul_i32 s3, s68, {PFR}\nv_add_u32 v{t2}, s3, v{t2}\nv_mul_u32_u24 v{t2}, s7, v{t2}")
        A(f"s_and_b32 s3, s2, 7\ns_mul_i32 s3, s3, 896\nv_lshl_add_u32 v{t2}, v{t3}, 7, v{t2}\nbuffer_load_dword a236, v{t2}, s[{sW}:{sW+3}], s3 offen")
        A(f"s_and_b32 s3, s2, 7\ns_lshl_b32 s3, s3, 18\ns_lshl_b32 s4, s68, 13\ns_add_u32 s3, s3, s4\nv_and_b32 v{t2}, 15, v0\nv_min_u32 v{t2}, {PFR//2-1}, v{t2}\nv_bfe_u32 v{t3}, v0, 4, 2\nv_lshlrev_b32 v{t3}, 11, v{t3}\nv_lshl_add_u32 v{t2}, v{t2}, 7, v{t3}")
        A(f"buffer_load_dword a236, v{t2}, s[{sB}:{sB+3}], s3 offen")
        NE += 2
    if opt.get('cpf', 1):
        code_prefetch(A, "L_noclr", "L_text_end", 58, t2, "a237", opt.get("cpfn", 24), "1", back=True); NE += 1
    A("s_cmp_ge_u32 s2, 16\ns_cbranch_scc1 L_noclr2")
    A(f"s_waitcnt vmcnt({4+NE})\ns_barrier\ns_cmp_lg_u32 s{sWV}, 0\ns_cbranch_scc1 L_noclr2")
    A("s_lshl_b32 s3, s2, 2\nv_mov_b32 v36, s3\nv_mov_b32 v37, 1\ns_mov_b64 exec, 1\nglobal_store_dword v36, v37, s[48:49] sc1\ns_mov_b64 exec, -1")
    A("L_noclr2:")
    A(f"s_lshl_b32 s71, s68, 17\ns_lshl_b32 s3, s70, 10\ns_add_u32 s71, s71, s3\ns_lshl_b32 s3, s69, 7\ns_add_u32 s71, s71, s3")
    if XN_OFF: A(f"s_add_u32 s71, s71, {XN_OFF}")
    A(f"v_lshrrev_b32 v{vLS}, 2, v30\nv_lshlrev_b32 v{vLS}, 12, v{vLS}\nv_and_b32 v{t2}, 3, v30\nv_lshlrev_b32 v{t2}, 8, v{t2}\nv_add3_u32 v{vLS}, v{vLS}, v{t2}, s71\nv_lshl_add_u32 v{vLS}, v29, 4, v{vLS}")
    A(f"v_lshlrev_b32 v{vLR}, 4, v29\nv_add_u32 v{vLR}, {LNL}, v{vLR}\nv_lshl_add_u32 v{vLW}, v17, 2, v{vLR}")
    A(f"s_cmp_eq_u32 s{sU}, 3\ns_cbranch_scc1 L_k2_B")

    def dma3(st, part, ffn=True):
        D, B, PB, Bb, BSH = (vD, qB, qPB, qBb, 17) if ffn else (vD2, qC, qPC, qCb, 7)
        o = []
        if part == 0: o.append(Op(f"s_add_u32 s{qBoff}, s{Bb}, s{PB[st]}"))
        o.append(Op(f"s_add_u32 m0, s{qM}, {st*16384 + part*4096}"))
        for n in range(4*part, 4*part+4):
            o.append(Op(f"buffer_load_dwordx4 v{D[n]}, s[{B}:{B+3}], s{qBoff} offen offset:{(n&3)*1024} lds", 'vm', f"d{st}"))
        if part == 1 and st == 3: o.append(Op(f"s_add_u32 s{Bb}, s{Bb}, {4 << BSH}"))
        return o
    def a3(ts, switch=False):
        ts %= 8
        o = [Op(f"s_add_u32 s{qAoff}, s{qAb}, s{qPA[ts >> 1]}") if ts % 2 == 0 else Op(f"s_add_u32 s{qAoff}, s{qAoff}, 4096")]
        for i in range(4):
            r = AB + ts*16 + i*4
            o.append(Op(f"buffer_load_dwordx4 a[{r}:{r+3}], v{vA}, s[{qA}:{qA+3}], s{qAoff} offen offset:{i*1024} sc1", 'vm', f"x{ts}"))
        if ts == 7: o.append(Op(f"s_mov_b32 s{qAb}, s{qAb2}") if switch else Op(f"s_add_u32 s{qAb}, s{qAb}, 32768"))
        return o
    def early3(nm, can_ffn):
        A(f"s_bfe_u32 s{qRole}, s2, 0x10004\ns_xor_b32 s{qRole}, s{qRole}, 1")
        A(f"s_bfe_u32 s4, s2, 0x20006\ns_bfe_u32 s6, s2, 0x10005\ns_lshl_b32 s6, s6, 1\ns_bfe_u32 s3, s2, 0x10003\ns_add_u32 s6, s6, s3")
        A(f"s_bfe_u32 s3, s2, 0x20001\ns_lshl_b32 s3, s3, 2\ns_add_u32 s{qRB}, s3, s4\ns_and_b32 s3, s2, 1\ns_lshl_b32 s3, s3, 2\ns_add_u32 s{qCB}, s3, s6")
        A(f"s_add_u32 s{qRho}, s4, s6\ns_and_b32 s{qRho}, s{qRho}, 3")
        A(f"s_lshr_b32 s{qKH}, s{sWV}, 1\ns_and_b32 s{qMH}, s{sWV}, 1\ns_lshl_b32 s{qTB}, s{qRB}, 1\ns_add_u32 s{qTB}, s{qTB}, s{qMH}")
        A(f"s_lshl_b32 s{qM}, s{qKH}, 16\ns_lshl_b32 s3, s{qMH}, 13\ns_add_u32 s{qM}, s{qM}, s3\ns_mov_b32 s{qB+3}, 0x00020000")
        for n in range(4): A(f"s_xor_b32 s{qPB[n]}, s{qRho}, {n}\ns_lshl_b32 s{qPB[n]}, s{qPB[n]}, 17")
        A(f"s_lshl_b32 s3, s{qMH}, 16\ns_lshl_b32 s4, s{qCB}, 8\ns_add_u32 s3, s3, s4")
        A(f"v_lshrrev_b32 v{t0}, 4, v{L}\nv_bfe_u32 v{t1}, v{L}, 1, 3\nv_xor_b32 v{t1}, v{t1}, v{t0}\nv_and_b32 v{t2}, 1, v{L}")
        A(f"v_lshlrev_b32 v{t2}, 4, v{t2}\nv_lshl_add_u32 v{t2}, v{t0}, 11, v{t2}\nv_add_u32 v{t2}, s3, v{t2}")
        A(f"v_lshl_add_u32 v{t0}, v{t1}, 5, v{t2}\nv_xor_b32 v{t1}, 4, v{t1}\nv_lshl_add_u32 v{t1}, v{t1}, 5, v{t2}")
        for n in range(8):
            A(f"v_add_u32 v{t2}, {n*8192 - (n&3)*1024}, v{t1 if (n>>1)&1 else t0}\nv_accvgpr_write_b32 a{STASH+n}, v{t2}")
        A(f"s_mul_i32 s{qBb}, s{qKH}, {1792*2048}\ns_lshl_b32 s3, s{qRole}, 19\ns_add_u32 s{qBb}, s{qBb}, s3")
        A(f"s_mov_b32 s{qB}, s56\ns_mov_b32 s{qB+1}, s57\ns_mov_b32 s{qB+2}, {3584*1024*2}")
    def setup3(ffn):
        A(f"s_load_dwordx2 s[44:45], s[0:1], {KA['x'] if ffn else KA['dsk']}\ns_load_dwordx2 s[46:47], s[0:1], {KA['out']}")
        for n in range(8): A(f"v_accvgpr_read_b32 v{vD[n]}, a{STASH+n}")
        A(f"v_and_b32 v{L}, 63, v0\nv_lshlrev_b32 v{vA}, 4, v{L}")
        for n in range(4): A(f"s_xor_b32 s{qPA[n]}, s{qRho}, {n}\ns_lshl_b32 s{qPA[n]}, s{qPA[n]}, 13")
        A(f"s_lshl_b32 s3, s{qRB}, 3\ns_add_u32 s3, s3, s{qCB}\ns_lshl_b32 s{qFL}, s3, 7\ns_add_u32 s{qFL}, s{qFL}, {FL_OFF}")
        A(f"s_lshl_b32 s{qS}, s3, 16\ns_lshl_b32 s3, s{sWV}, 14\ns_add_u32 s{qS}, s{qS}, s3\ns_add_u32 s{qS}, s{qS}, {S_OFF}")
        A(f"s_lshr_b32 s{qCnt}, s{qRB}, 1\ns_lshl_b32 s{qCnt}, s{qCnt}, 12\ns_add_u32 s{qCnt2}, s{qCnt}, {CNT_S}\ns_add_u32 s{qCnt}, s{qCnt}, {CNT_H}")
        A(f"s_lshl_b32 s{qXL}, s{sWV}, 13\ns_add_u32 s{qXL}, s{qXL}, {XLDS}")
        A(f"s_mul_i32 s{qAb}, s{qTB}, 112\ns_mul_i32 s3, s{qKH}, 56\ns_add_u32 s{qAb}, s{qAb}, s3\ns_lshl_b32 s{qAb}, s{qAb}, 12\ns_add_u32 s{qAb}, s{qAb}, {H_OFF + (32768 if ffn else 0)}")
        A(f"v_bfe_u32 v{t0}, v{L}, 2, 2\nv_lshrrev_b32 v{t1}, 4, v{L}\nv_lshl_add_u32 v{t2}, v{t1}, 3, v{t0}\nv_lshlrev_b32 v{t2}, 8, v{t2}")
        A(f"v_and_b32 v{t3}, 3, v{L}\nv_lshl_add_u32 v{t2}, v{t3}, 3, v{t2}\ns_lshl_b32 s3, s{qKH}, 16\nv_add_u32 v{t2}, s3, v{t2}")
        A(f"v_bfe_u32 v{t0}, v{L}, 2, 3\ns_lshl_b32 s3, s{qKH}, 2\nv_xor_b32 v{t0}, s3, v{t0}")
        for j in range(8): A(f"v_xor_b32 v{t1}, {j}, v{t0}\nv_lshl_add_u32 v{vR[j]}, v{t1}, 5, v{t2}")
        if ffn:
            A(f"v_lshrrev_b32 v{t0}, 3, v{L}\nv_and_b32 v{t1}, 7, v{L}\nv_lshlrev_b32 v{t0}, 11, v{t0}\nv_lshl_add_u32 v{vXD}, v{t1}, 4, v{t0}")
            A(f"s_lshl_b32 s{qXo}, s{qTB}, 17\ns_lshl_b32 s3, s{qCB}, 8\ns_add_u32 s{qXo}, s{qXo}, s3\ns_lshl_b32 s3, s{qKH}, 7\ns_add_u32 s{qXo}, s{qXo}, s3")
            A(f"v_lshrrev_b32 v{t0}, 4, v{L}\nv_bfe_u32 v{t1}, v{L}, 2, 2\nv_lshl_add_u32 v{t0}, v{t0}, 4, v{t1}\nv_lshlrev_b32 v{t0}, 7, v{t0}")
            A(f"v_and_b32 v{t1}, 3, v{L}\nv_lshl_add_u32 v{t0}, v{t1}, 3, v{t0}\nv_add_u32 v{vXR}, s{qXL}, v{t0}")
            A(f"v_lshrrev_b32 v{t0}, 4, v{L}\nv_lshlrev_b32 v{t0}, 16, v{t0}\nv_and_b32 v{t1}, 15, v{L}\nv_lshl_add_u32 v{vXL}, v{t1}, 2, v{t0}")
            for r in range(128, 256): A(f"v_mov_b32 v{r}, 0")
        else:
            for n in range(4): A(f"s_lshr_b32 s{qPC[n]}, s{qPA[n]}, 6")
            A(f"s_lshl_b32 s3, s{qCB}, 18\ns_lshl_b32 s4, s{qMH}, 17\ns_add_u32 s3, s3, s4")
            A(f"v_lshrrev_b32 v{t0}, 4, v{L}\nv_and_b32 v{t1}, 7, v{L}\nv_xor_b32 v{t1}, v{t1}, v{t0}\nv_lshrrev_b32 v{t2}, 3, v{L}")
            A(f"v_lshlrev_b32 v{t2}, 11, v{t2}\nv_add_u32 v{t2}, s3, v{t2}")
            A(f"v_lshl_add_u32 v{t0}, v{t1}, 4, v{t2}\nv_xor_b32 v{t1}, 4, v{t1}\nv_lshl_add_u32 v{t1}, v{t1}, 4, v{t2}")
            for n in range(8): A(f"v_add_u32 v{vD2[n]}, {n*16384 - (n&3)*1024}, v{t1 if n&1 else t0}")
            A(f"s_mov_b32 s{qCb}, 0")
            srd(A, qC, 52, 53, 1024*1024*2)
            A(f"s_lshl_b32 s{qAb2}, s{qTB}, 1\ns_add_u32 s{qAb2}, s{qAb2}, s{qKH}\ns_lshl_b32 s{qAb2}, s{qAb2}, 17\ns_add_u32 s{qAb2}, s{qAb2}, {HS_OFF}")
            A(f"v_and_b32 v{t0}, 15, v{L}\nv_lshrrev_b32 v{t1}, 1, v{t0}\nv_lshrrev_b32 v{t2}, 4, v{L}\nv_xor_b32 v{t1}, v{t1}, v{t2}\nv_lshlrev_b32 v{t1}, 4, v{t1}")
            A(f"v_lshl_add_u32 v{t0}, v{t0}, 7, v{t1}\ns_mul_i32 s3, s{qKH}, {65536+8192}\nv_add_u32 v{vR2[0]}, s3, v{t0}\nv_xor_b32 v{vR2[1]}, 64, v{vR2[0]}")
            A(f"v_xor_b32 v{vR2[2]}, 8192, v{vR2[0]}\nv_xor_b32 v{vR2[3]}, 8192, v{vR2[1]}")
            A(f"s_lshl_b32 s{qXo}, s{qTB}, 5\ns_lshl_b32 s3, s{qCB}, 2\ns_add_u32 s{qXo}, s{qXo}, s3\ns_lshl_b32 s3, s{qKH}, 1\ns_add_u32 s{qXo}, s{qXo}, s3\ns_lshl_b32 s{qXo}, s{qXo}, 12")
            if XN_OFF: A(f"s_add_u32 s{qXo}, s{qXo}, {XN_OFF}")
            A(f"v_bfe_u32 v{t0}, v{L}, 1, 1\nv_lshlrev_b32 v{t0}, 8, v{t0}\nv_lshrrev_b32 v{t1}, 2, v{L}\nv_lshl_add_u32 v{t0}, v{t1}, 4, v{t0}")
            A(f"v_and_b32 v{t1}, 1, v{L}\nv_lshl_add_u32 v{t0}, v{t1}, 3, v{t0}\nv_add_u32 v{vXR}, s{qXL}, v{t0}")
            A(f"s_lshl_b32 s3, s{qCB}, 8\ns_lshl_b32 s4, s{qKH}, 7\ns_add_u32 s3, s3, s4\nv_and_b32 v{t0}, 15, v{L}\nv_lshl_add_u32 v{vXL}, v{t0}, 1, s3")
            A(f"v_add_u32 v{vXD}, s{qXL}, v{vA}\nv_xor_b32 v27, 0x4000, v{vXD}")
        A(f"s_add_u32 s66, s{qS}, {P_OFF - S_OFF}\ns_add_u32 s67, s{qFL}, {128*128}")
        A("s_waitcnt lgkmcnt(0)")
        if ffn: srd(A, qO, 44, 45, 2048*1024*2)
    cload = lambda v, s_: f"buffer_load_dword v{v}, off, s[{sWS}:{sWS+3}], s{s_} sc1"
    def wait_word(v, s_, target, uid, first_wait):
        A(f"s_mov_b32 s55, 0x40000\ns_waitcnt vmcnt({first_wait})")
        A(f"L_w{uid}:\nv_readfirstlane_b32 s3, v{v}\ns_cmp_ge_u32 s3, {target}\ns_cbranch_scc1 L_g{uid}\ns_sleep 1")
        A(cload(v, s_) + "\ns_waitcnt vmcnt(0)")
        A(f"s_sub_u32 s55, s55, 1\ns_cmp_lg_u32 s55, 0\ns_cbranch_scc1 L_w{uid}\nL_g{uid}:")
    sigS_addr = f"s_lshl_b32 s3, s2, 7\ns_add_u32 s3, s3, {CNT_S}"
    mload = lambda s_: f"buffer_load_dword v{vFL}, v{vFO}, s[{sWS}:{sWS+3}], s{s_} offen sc1"
    def wait_all(s_, uid):
        A(f"s_mov_b32 s55, 0x40000\ns_waitcnt vmcnt(0)")
        A(f"L_w{uid}:\nv_cmp_ne_u32 vcc, 1, v{vFL}\ns_cbranch_vccz L_g{uid}\ns_sleep 1")
        A(mload(s_) + "\ns_waitcnt vmcnt(0)")
        A(f"s_sub_u32 s55, s55, 1\ns_cmp_lg_u32 s55, 0\ns_cbranch_scc1 L_w{uid}\nL_g{uid}:")
    proa = []
    for t_ in range(-AD, 0): proa += a3(t_ + AD)

    def body(NP, NS, nm):
        NT = 2*NP + 2*NS
        NWI = 8 if NP == 8 else 4
        WB = 8448 if NP == 8 else 4224
        BOFF = 4*WB
        NCH = 16*NS
        def acc(j, i): return ('v', 32 + (j*4+i)*4) if j < 14 else ('a', ((j-14)*4+i)*4)
        def rd(dst, j, i, r):
            f, b = acc(j, i)
            return f"v_mov_b32 v{dst}, v{b+r}" if f == 'v' else f"v_accvgpr_read_b32 v{dst}, a{b+r}"
        jre = lambda q: 2*NP + q
        jim = lambda q: 2*NP + NS + q
        if NP == 8:
            A(f"v_bfe_u32 v{t0}, v{L}, 4, 1\nv_bfe_u32 v{t1}, v{L}, 5, 1\nv_lshlrev_b32 v{t0}, 2, v{t0}\nv_lshl_or_b32 v{t0}, v{t1}, 4, v{t0}\nv_and_b32 v{t1}, 15, v{L}")
        else:
            A(f"v_bfe_u32 v{t0}, v{L}, 3, 1\nv_bfe_u32 v{t1}, v{L}, 4, 1\nv_lshlrev_b32 v{t0}, 3, v{t0}\nv_lshl_or_b32 v{t0}, v{t1}, 2, v{t0}\nv_bfe_u32 v{t1}, v{L}, 5, 1\nv_lshl_or_b32 v{t0}, v{t1}, 4, v{t0}\nv_and_b32 v{t1}, 7, v{L}")
        A(f"v_mul_u32_u24 v{t0}, s7, v{t0}\nv_lshl_add_u32 v{t0}, v{t1}, 4, v{t0}\nv_add_u32 v{vWD[0]}, s6, v{t0}")
        for n in range(1, NWI): A(f"v_add_u32 v{vWD[n]}, {((n&3) + 8*(n>>2))*7168 - (n&3)*1056}, v{vWD[0]}")
        vBD = vWD[NWI:NWI+NS]
        A(f"s_mul_i32 s3, s5, {8*NS}\ns_add_u32 s3, s3, s{sCh}\ns_lshl_b32 s3, s3, 11\ns_lshl_b32 s4, s5, 2")
        A(f"v_lshrrev_b32 v{t0}, 4, v{L}\nv_and_b32 v{t1}, 7, v{L}\nv_xor_b32 v{t1}, v{t1}, v{t0}\nv_xor_b32 v{t1}, s4, v{t1}\nv_lshrrev_b32 v{t2}, 3, v{L}\nv_lshlrev_b32 v{t2}, 11, v{t2}\nv_add_u32 v{t2}, s3, v{t2}")
        A(f"v_lshl_add_u32 v{vBD[0]}, v{t1}, 4, v{t2}")
        if NS > 1:
            A(f"v_xor_b32 v{t1}, 64, v{vBD[0]}")
            for n in range(1, NS): A(f"v_add_u32 v{vBD[n]}, {n*16384 - (n&3)*1024}, v{t1 if n&1 else vBD[0]}")
        A(f"s_mul_i32 s{sM[0]}, s{sWV}, {WB}\ns_add_u32 s{sM[1]}, s{sM[0]}, {STAGE2}")
        A(f"s_mul_i32 s{sMB[0]}, s{sWV}, {NS*1024}\ns_add_u32 s{sMB[0]}, s{sMB[0]}, {BOFF}\ns_add_u32 s{sMB[1]}, s{sMB[0]}, {STAGE2}")
        srd(A, sX, 50, 51, XN_OFF + 2048*1024*2)
        def dma_ops(par, part):
            tag = f"d{par}"
            wl = lambda n: Op(f"buffer_load_dwordx4 v{vWD[n]}, s[{sW}:{sW+3}], s{sWoff} offen offset:{(n&3)*1056}{WNT} lds", 'vm', tag)
            bl = lambda n: Op(f"buffer_load_dwordx4 v{vBD[n]}, s[{sB}:{sB+3}], s{sBoff} offen offset:{(n&3)*1024}{WNT} lds", 'vm', tag + "e")
            o = []
            if part == 0:
                o.append(Op(f"s_mov_b32 m0, s{sM[par]}")); o += [wl(n) for n in range(4)]
            else:
                if NWI == 8:
                    o.append(Op(f"s_add_u32 m0, s{sM[par]}, {4*1056}")); o += [wl(n) for n in range(4, 8)]
                o.append(Op(f"s_mov_b32 m0, s{sMB[par]}"))
                o.append(Op(f"s_add_u32 s{sWoff}, s{sWoff}, {64*7168}"))
                o += [bl(n) for n in range(min(NS, 4))]
                if NS == 5:
                    o.append(Op(f"s_add_u32 m0, s{sMB[par]}, 4096")); o.append(bl(4))
                o.append(Op(f"s_add_u32 s{sBoff}, s{sBoff}, 128"))
                o.append(Op(f"s_add_u32 s{sM[par]}, s{sM[par]}, s{sDelta}"))
                o.append(Op(f"s_add_u32 s{sMB[par]}, s{sMB[par]}, s{sDelta}"))
            return o
        def x_ops(buf):
            o = []
            for i in range(4):
                r = XB + buf*16 + i*4
                o.append(Op(f"buffer_load_dwordx4 a[{r}:{r+3}], v{vX}, s[{sX}:{sX+3}], s{sXoff} offen offset:{i*1024} sc1", 'vm', f"x{buf}"))
            o.append(Op(f"s_add_u32 s{sXoff}, s{sXoff}, 4096"))
            return o
        if opt.get('prof'):
            A(f"s_lshl_b32 s100, s2, 2\ns_add_u32 s100, s100, s{sWV}\ns_lshl_b32 s100, s100, 6\ns_add_u32 s100, s100, {PROF_OFF}")
        A(f"s_waitcnt vmcnt({NE})")
        pstamp(A, opt, 0, 6)
        X = 64
        for r in range(16): A(f"v_lshlrev_b32 v{X+2*r}, 16, v{40+r}\nv_and_b32 v{X+2*r+1}, 0xffff0000, v{40+r}")
        def reduce(off, side):
            A("v_add_f32 v32, v32, v33\ns_nop 1\nv_add_f32_dpp v32, v32, v32 row_ror:8 row_mask:0xf bank_mask:0xf")
            A("v_mov_b32 v33, v32\ns_nop 1\nv_permlane16_swap_b32 v32, v33\ns_nop 1\nv_add_f32 v32, v32, v33")
            A("v_mov_b32 v33, v32\ns_nop 1\nv_permlane32_swap_b32 v32, v33\ns_nop 1\nv_add_f32 v32, v32, v33")
            A(f"ds_write_b32 v{vLW}, v32 offset:{off}")
            emit(side)
            A(f"s_waitcnt lgkmcnt(0)\ns_barrier\nds_read_b128 v[32:35], v{vLR} offset:{off}\ns_waitcnt lgkmcnt(0)")
            A("v_pk_add_f32 v[32:33], v[32:33], v[34:35]\nv_add_f32 v32, v32, v33")
        A(f"v_pk_add_f32 v[32:33], {pk(X)}, {pk(X+2)}\nv_pk_add_f32 v[34:35], {pk(X+4)}, {pk(X+6)}")
        for r in range(4, 16): A(f"v_pk_add_f32 {pk(32+2*(r&1))}, {pk(32+2*(r&1))}, {pk(X+2*r)}")
        A("v_pk_add_f32 v[32:33], v[32:33], v[34:35]")
        reduce(0, [])
        A(f"v_mul_f32 v38, {hx(f2u(-1.0/1024))}, v32")
        for r in range(16):
            t = 96 + 2*(r & 3); d = 32 + 2*(r & 1)
            A(f"v_pk_add_f32 {pk(t)}, {pk(X+2*r)}, v[38:39] op_sel_hi:[1,0]")
            A(f"v_pk_mul_f32 {pk(d)}, {pk(t)}, {pk(t)}" if r < 2 else f"v_pk_fma_f32 {pk(d)}, {pk(t)}, {pk(t)}, {pk(d)}")
        A("v_pk_add_f32 v[32:33], v[32:33], v[34:35]")
        reduce(128, [])
        A(f"v_mul_f32 v39, {hx(f2u(1.0/1024))}, v32\nv_cvt_pk_bf16_f32 v36, v38, v39\nv_lshlrev_b32 v38, 16, v36\nv_and_b32 v36, 0xffff0000, v36")
        A(f"v_add_f32 v36, {hx(f2u(1e-5))}, v36\nv_cvt_pk_bf16_f32 v36, v36, v36\nv_lshlrev_b32 v36, 16, v36")
        A("v_sqrt_f32 v36, v36\ns_nop 0\nv_cvt_pk_bf16_f32 v36, v36, v36\nv_lshlrev_b32 v36, 16, v36\nv_rcp_f32 v36, v36")
        for m in range(4):
            rs = range(4*m, 4*m+4)
            for r in rs: A(f"v_pk_add_f32 {pk(X+2*r)}, {pk(X+2*r)}, v[38:39] op_sel_hi:[1,0]")
            for r in rs: A(f"v_cvt_pk_bf16_f32 v{40+r}, v{X+2*r}, v{X+2*r+1}")
            for r in rs: A(f"v_lshlrev_b32 v{X+2*r}, 16, v{40+r}\nv_and_b32 v{X+2*r+1}, 0xffff0000, v{40+r}")
            for r in rs: A(f"v_pk_mul_f32 {pk(X+2*r)}, {pk(X+2*r)}, v[36:37] op_sel_hi:[1,0]")
            for r in rs: A(f"v_cvt_pk_bf16_f32 v{40+r}, v{X+2*r}, v{X+2*r+1}")
            A(f"s_mov_b32 s3, {m*32768}\nbuffer_store_dwordx4 v[{40+4*m}:{43+4*m}], v{vLS}, s[{sWS}:{sWS+3}], s3 offen sc1")
        A(f"v_and_b32 v{vLS}, 15, v0\nv_lshlrev_b32 v{vLS}, 2, v{vLS}\nglobal_load_dword v59, v{vLS}, s[48:49] sc1")
        c_hi = struct.unpack("<f", struct.pack("<f", 1/(2*math.pi)))[0]; c_lo = 1/(2*math.pi) - c_hi
        A(f"s_mov_b32 s3, {hx(f2u(LOG2E))}\ns_mov_b32 s4, {hx(f2u(c_hi))}\ns_mov_b32 s6, {hx(f2u(c_lo))}")
        emit(dma_ops(0, 0) + dma_ops(0, 1))
        A("s_waitcnt vmcnt(14)")
        lr, li, ld = 56, 57, 58
        la, lb, cr, ci = 64, 65, 66, 67
        dt, zr, zi, hi, lo, mag = range(68, 74)
        A(f"v_lshlrev_b32 v{lr}, 16, v{lr}\nv_lshlrev_b32 v{li}, 16, v{li}\nv_lshlrev_b32 v{ld}, 16, v{ld}")
        A(f"v_mul_f32 v{dt}, s3, v{ld}\nv_exp_f32 v{dt}, v{dt}\ns_nop 0\nv_cvt_pk_bf16_f32 v{dt}, v{dt}, v{dt}\nv_lshlrev_b32 v{dt}, 16, v{dt}")
        A(f"v_mul_f32 v{zr}, v{dt}, v{lr}\nv_mul_f32 v{zi}, v{dt}, v{li}")
        A(f"v_mul_f32 v{mag}, s3, v{zr}\nv_exp_f32 v{mag}, v{mag}")
        A(f"v_mul_f32 v{hi}, s4, v{zi}\nv_fma_f32 v{lo}, v{zi}, s4, -v{hi}\nv_fma_f32 v{lo}, v{zi}, s6, v{lo}")
        A(f"v_rndne_f32 v{la}, v{hi}\nv_sub_f32 v{hi}, v{hi}, v{la}\nv_add_f32 v{hi}, v{hi}, v{lo}")
        A(f"v_cos_f32 v{la}, v{hi}\nv_sin_f32 v{lb}, v{hi}\ns_nop 0\nv_mul_f32 v{la}, v{la}, v{mag}\nv_mul_f32 v{lb}, v{lb}, v{mag}")
        am1, den = dt, zr
        A(f"v_add_f32 v{am1}, -1.0, v{la}\nv_mul_f32 v{den}, v{lr}, v{lr}\nv_fmac_f32 v{den}, v{li}, v{li}\nv_rcp_f32 v{den}, v{den}")
        A(f"v_mul_f32 v{cr}, v{am1}, v{lr}\nv_fmac_f32 v{cr}, v{lb}, v{li}\nv_mul_f32 v{ci}, v{lb}, v{lr}\nv_fma_f32 v{ci}, -v{am1}, v{li}, v{ci}")
        A(f"v_mul_f32 v{cr}, v{cr}, v{den}\nv_mul_f32 v{ci}, v{ci}, v{den}")
        def cmul(d, a, b):
            A(f"v_pk_mul_f32 {pk(d)}, {pk(a)}, {pk(b)} op_sel_hi:[1,0]")
            A(f"v_pk_fma_f32 {pk(d)}, {pk(a)}, {pk(b)}, {pk(d)} op_sel:[1,1,0] op_sel_hi:[0,1,1] neg_lo:[0,1,0]")
        A(f"v_lshlrev_b32 v74, 1, v{vCH}\nv_add_u32 v74, {PB}, v74\nv_add_u32 v75, {PWL}, v{vCH}\nds_write_b128 v74, v[64:67]")
        cmul(76, 64, 64); cmul(78, 76, 76); cmul(76, 78, 78); cmul(78, 76, 76)
        A(f"v_mov_b32 v80, 1.0\nv_mov_b32 v81, 0\nds_write_b64 v75, v[80:81]\nds_write_b64 v75, v[78:79] offset:640")
        for k in range(2, 17):
            d = 80 + 2*(k % 4); p_ = 78 if k == 2 else 80 + 2*((k-1) % 4)
            cmul(d, p_, 78)
            if k < 16: A(f"ds_write_b64 v75, {pk(d)} offset:{k*640}")
        A(f"v_accvgpr_write_b32 a{PAR+30}, v78\nv_accvgpr_write_b32 a{PAR+31}, v79\nv_accvgpr_write_b32 a{PAR+32}, v80\nv_accvgpr_write_b32 a{PAR+33}, v81")
        A(f"s_mov_b32 s55, 0x40000\ns_waitcnt vmcnt(9)")
        A(f"L_wc{nm}:\nv_cmp_ne_u32 vcc, 1, v59\ns_cbranch_vccz L_gc{nm}\ns_sleep 1\nglobal_load_dword v59, v{vLS}, s[48:49] sc1\ns_waitcnt vmcnt(0)")
        A(f"s_sub_u32 s55, s55, 1\ns_cmp_lg_u32 s55, 0\ns_cbranch_scc1 L_wc{nm}\nL_gc{nm}:")
        A("s_waitcnt lgkmcnt(0)\ns_barrier")
        signal(A, sWV, sWS, f"s_lshl_b32 s3, s2, 7\ns_add_u32 s3, s3, {CNT_X}", 59, f"x{nm}")
        pstamp(A, opt, 0, 7)
        emit(dma_ops(1, 0) + dma_ops(1, 1) + dma_ops(0, 0))
        A(f"v_and_b32 v{t0}, 15, v{L}\nv_lshlrev_b32 v{t1}, 4, v{t0}\nv_add_u32 v{t1}, {PB}, v{t1}\nv_lshrrev_b32 v{t2}, 4, v0\nv_mul_u32_u24 v{t2}, 640, v{t2}\nv_lshl_add_u32 v{t2}, v{t0}, 3, v{t2}\nv_add_u32 v{t2}, {PWL}, v{t2}")
        for q in range(NS):
            pa = PAR + q*6
            A(f"ds_read_b128 a[{pa}:{pa+3}], v{t1} offset:{q*256}\nds_read_b64 a[{pa+4}:{pa+5}], v{t2} offset:{q*128}")
        for r in range(32, 256): A(f"v_mov_b32 v{r}, 0")
        A(f"v_and_b32 v{vLW}, 31, v0\nv_lshlrev_b32 v{vLW}, 7, v{vLW}\ns_lshl_b32 s58, s{sRB}, 12\ns_add_u32 s58, s58, {CNT_X}")
        xpoll = f"buffer_load_dword v{vLR}, v{vLW}, s[{sWS}:{sWS+3}], s58 offen sc1"
        A(xpoll)
        for r in range(64): A(f"v_accvgpr_write_b32 a{r}, 0")
        if NP == 8: A(f"v_bfe_u32 v{t0}, v{L}, 2, 3\nv_mul_u32_u24 v{t0}, 1056, v{t0}")
        else: A(f"v_bfe_u32 v{t0}, v{L}, 2, 2\nv_mul_u32_u24 v{t0}, 1056, v{t0}\nv_bfe_u32 v{t1}, v{L}, 4, 1\nv_lshl_add_u32 v{t0}, v{t1}, 7, v{t0}")
        A(f"v_bfe_u32 v{t1}, v{L}, 5, 1\nv_lshl_add_u32 v{t0}, v{t1}, 9, v{t0}\nv_and_b32 v{t1}, 3, v{L}\nv_lshl_add_u32 v{vRW[0]}, v{t1}, 3, v{t0}\nv_add_u32 v{vRW[1]}, {STAGE2}, v{vRW[0]}")
        A(f"v_and_b32 v{t0}, 15, v{L}\nv_lshrrev_b32 v{t1}, 1, v{t0}\nv_lshrrev_b32 v{t2}, 4, v{L}\nv_xor_b32 v{t1}, v{t1}, v{t2}\nv_lshlrev_b32 v{t1}, 4, v{t1}")
        A(f"v_lshl_add_u32 v{t0}, v{t0}, 7, v{t1}\nv_xor_b32 v{t1}, 64, v{t0}\nv_add_u32 v{vRB[0][0]}, {BOFF}, v{t0}\nv_add_u32 v{vRB[0][1]}, {BOFF}, v{t1}")
        A(f"v_add_u32 v{vRB[1][0]}, {STAGE2}, v{vRB[0][0]}\nv_add_u32 v{vRB[1][1]}, {STAGE2}, v{vRB[0][1]}")
        if PF:
            A(f"s_lshl_b32 s3, s2, 2\ns_add_u32 s3, s3, s{sWV}\ns_lshl_b32 s4, s3, 3\nv_and_b32 v{t0}, 7, v{L}\nv_add_lshl_u32 v{vP[0]}, v{t0}, s4, 7")
            A(f"s_lshl_b32 s3, s2, 1\ns_add_u32 s3, s3, s5\ns_lshl_b32 s3, s3, 2\nv_and_b32 v{t0}, 3, v{L}\nv_add_lshl_u32 v{vP[1]}, v{t0}, s3, 7")
        def frag_reads(j, par, kh, tag):
            d = WF + j*4
            if j < 2*NP:
                p, gu = j >> 1, j & 1
                return [Op(f"ds_read_b64_tr_b16 a[{d+2*h}:{d+2*h+1}], v{vRW[par]} offset:{gu*2*WB + kh*WB + h*256 + p*32}", 'lds', tag) for h in range(2)]
            return [Op(f"ds_read_b128 a[{d}:{d+3}], v{vRB[par][kh]} offset:{(j-2*NP)*2048}", 'lds', tag)]
        pfC = [Op(f"global_load_dword a236, v{vP[1]}, s[52:53]", 'vm', 'pf'), Op(f"v_add_u32 v{vP[1]}, {2048*128}, v{vP[1]}")]
        pfW = [Op(f"global_load_dword a236, v{vP[0]}, s[56:57]", 'vm', 'pf'), Op(f"v_add_u32 v{vP[0]}, {8192*128}, v{vP[0]}")]
        if opt.get('prof'):
            A(f"v_accvgpr_write_b32 a254, s94\nv_accvgpr_write_b32 a255, s95\ns_add_u32 s101, s100, 0x10000\nbuffer_store_dwordx2 a[254:255], off, s[20:23], s101")
            A("s_getreg_b32 s96, hwreg(HW_REG_XCC_ID)\ns_getreg_b32 s98, hwreg(HW_REG_HW_ID)\nv_accvgpr_write_b32 a254, s96\nv_accvgpr_write_b32 a255, s98\nbuffer_store_dwordx2 a[254:255], off, s[20:23], s100 offset:40")
        A("s_waitcnt vmcnt(14)\ns_barrier")
        for j in range(NT): emit(frag_reads(j, 0, 0, None))
        A(f"s_mov_b32 s55, 0x40000\ns_waitcnt vmcnt(0)")
        A(f"L_wx{nm}:\nv_cmp_ne_u32 vcc, 1, v{vLR}\ns_cbranch_vccz L_gx{nm}\ns_sleep 1\n{xpoll}\ns_waitcnt vmcnt(0)")
        A(f"s_sub_u32 s55, s55, 1\ns_cmp_lg_u32 s55, 0\ns_cbranch_scc1 L_wx{nm}\nL_gx{nm}:")
        pstamp(A, opt, 1, 1)
        emit(x_ops(0) + x_ops(1) + x_ops(2))
        if PF: emit(pfC)
        early3(nm, NP == 8)
        A(f"s_mov_b32 s{sDelta}, {hx(-2*STAGE2)}\ns_mov_b32 s{sTrip}, 0\ns_waitcnt vmcnt({1 if PF else 0}) lgkmcnt(0)")
        BARG = opt.get('barg', 3)
        def mfma(j, i, wreg, xreg, **kw):
            f, b = acc(j, i); c = f"{f}[{b}:{b+3}]"
            w = f"a[{wreg}:{wreg+3}]"; x = f"a[{xreg}:{xreg+3}]"
            return Op(f"v_mfma_f32_16x16x32_bf16 {c}, {w}, {x}, {c}" if j < 2*NP else f"v_mfma_f32_16x16x32_bf16 {c}, {x}, {w}, {c}", **kw)
        def trip(n):
            out = []
            for t in range(4):
                gs = 4*n + t
                mf = []
                for j in range(NT):
                    order = range(4) if j % 2 == 0 else range(3, -1, -1)
                    for k, i in enumerate(order):
                        mf.append(mfma(j, i, WF+j*4, XB+t*16+i*4, need_vm=(f"x{t}" if (j == 0 and k == 0) else None), need_lds=(f"f{j}" if k == 0 else None)))
                if t % 2 == 0: par, kh, firstm = t >> 1, 1, 0
                else: par, kh, firstm = ((t >> 1) + 1) % 2, 0, BARG*4 - 1
                fin = gs == 31
                rds = []
                if not fin:
                    for j in range(NT):
                        for o in frag_reads(j, par, kh, f"f{j}"): rds.append((max(j*4 + 3, firstm), o))
                vmo = []
                if gs + XD < 32: vmo += x_ops((t + XD) % 4)
                if (gs + 5) >> 1 < 16: vmo += dma_ops(((t + 5) >> 1) % 2, (t + 1) % 2)
                if PF and n < 7 and t == 1: vmo += pfW
                if PF and n < 7 and t == 3: vmo += pfC
                if gs == 29: vmo += [Op(f"v_accvgpr_read_b32 v{vD[k]}, a{STASH+k}") for k in range(8)]
                if gs == 30: vmo += [Op(o.text, o.kind, 'k3') for o in dma3(0, 0) + dma3(0, 1) + dma3(1, 0)]
                if gs == 31: vmo += [Op(o.text, o.kind, 'k3') for o in dma3(1, 1) + dma3(2, 0)]
                sp = 68.0 / max(1, len(vmo))
                vm = [(1 + int(k*sp), o) for k, o in enumerate(vmo)]
                misc = []
                if n != 7:
                    if t == 2: misc += [(40, Op(f"v_subrev_u32 v{r}, s{sDelta}, v{r}")) for r in (vRW[0], vRB[0][0], vRB[0][1])]
                    if t == 3: misc += [(2, Op(f"v_subrev_u32 v{r}, s{sDelta}, v{r}")) for r in (vRW[1], vRB[1][0], vRB[1][1])]
                    if t == 3: misc += [(60, Op(f"s_sub_u32 s{sDelta}, 0, s{sDelta}"))]
                slots = spread(72, [rds, vm, misc], per_gap=1)
                for m in range(72):
                    out.append(mf[m])
                    if t % 2 == 1 and m == firstm and not fin:
                        out.append(Op("s_waitcnt lgkmcnt(0)", 'lgkm0', need_vm=f"d{par}e"))
                        out.append(Op("s_barrier"))
                    out.extend(slots[m])
            return out
        b0, b6, b7 = trip(0), trip(6), trip(7)
        pstamp(A, opt, 1, 2)
        A(f".p2align 6\nL_k2_loop{nm}:"); put(resolve_loop(b0))
        A(f"s_add_u32 s{sTrip}, s{sTrip}, 1\ns_cmp_lt_u32 s{sTrip}, 6\ns_cbranch_scc1 L_k2_loop{nm}")
        put(resolve_seq(b0, b6))
        if opt.get('cpf', 1):
            code_prefetch(A, "L_k3_code", "L_text_end", 58, t0, "a237", opt.get("cpfn3", 11), "2" + nm)
            A(f"s_getpc_b64 s[58:59]\nL_pce{nm}:\ns_add_u32 s58, s58, L_k2_epi{nm}-L_pce{nm}\ns_addc_u32 s59, s59, 0\nv_lshlrev_b32 v{t0}, 6, v0\nglobal_load_dword a238, v{t0}, s[58:59]")
        put(resolve_seq(b6, b7))
        A(f"L_k2_epi{nm}:")
        pstamp(A, opt, 1, 3)
        LAM = [2 + 2*q for q in range(NS)]
        for q in range(NS): A(f"v_accvgpr_read_b32 v{LAM[q]}, a{PAR+q*6}\nv_accvgpr_read_b32 v{LAM[q]+1}, a{PAR+q*6+1}")
        def cfma(d, h, c):
            return [f"v_pk_fma_f32 {pk(d)}, {pk(h)}, {pk(c)}, {pk(d)} op_sel_hi:[1,0,1]",
                    f"v_pk_fma_f32 {pk(d)}, {pk(h)}, {pk(c)}, {pk(d)} op_sel:[1,1,0] op_sel_hi:[0,1,1] neg_lo:[0,1,0]"]
        A("s_nop 7")
        T = lambda q, n: 12 + 4*q + 2*(n & 1)
        for n in range(16):
            i, r = n >> 2, n & 3
            for q in range(NS): A(rd(T(q, n), jre(q), i, r) + "\n" + rd(T(q, n)+1, jim(q), i, r))
            if n > 0:
                for h in range(2):
                    for q in range(NS): A(cfma(T(q, n), T(q, n-1), LAM[q])[h])
        EL, PL, HL, EP = 45056, 45056 + 10240, 36864, 640
        vE = 1
        A(f"v_lshrrev_b32 v12, 4, v0\nv_mul_u32_u24 v12, {EP}, v12\nv_and_b32 v{vE}, 15, v0\nv_lshl_add_u32 v{vE}, v{vE}, 3, v12")
        for q in range(NS): A(f"ds_write_b64 v{vE}, {pk(T(q, 15))} offset:{EL + q*128}")
        A("s_waitcnt lgkmcnt(0)\ns_barrier")
        NXW = (NCH + 63) // 64
        NL2 = opt.get('l2pf', 0)
        if NL2:
            A(f"v_bfe_u32 v12, v0, 3, 2\nv_bfe_u32 v13, v0, 5, 1\nv_lshl_add_u32 v12, v13, 8, v12\nv_lshlrev_b32 v12, 11, v12\nv_and_b32 v13, 7, v0\nv_lshl_add_u32 v12, v13, 7, v12")
            A(f"s_mul_i32 s3, s{qKH}, 1792\ns_lshr_b32 s4, s2, 3\ns_lshl_b32 s4, s4, 3\ns_add_u32 s3, s3, s4\ns_lshl_b32 s4, s{qMH}, 2\ns_add_u32 s3, s3, s4\ns_add_u32 s3, s3, 512\ns_lshl_b32 s3, s3, 11\ns_and_b32 s4, s2, 1\ns_lshl_b32 s4, s4, 10\ns_add_u32 s3, s3, s4")
            A(f"buffer_load_dword a236, v12, s[{qB}:{qB+3}], s3 offen")
            if NL2 > 2: A(f"s_add_u32 s3, s3, {512*2048}\nbuffer_load_dword a236, v12, s[{qB}:{qB+3}], s3 offen")
            A(f"v_bfe_u32 v12, v0, 3, 3\nv_lshlrev_b32 v12, 11, v12\nv_lshl_add_u32 v12, v13, 7, v12")
            A(f"s_and_b32 s3, s2, 1\ns_lshl_b32 s3, s3, 9\ns_lshr_b32 s4, s2, 3\ns_lshl_b32 s4, s4, 4\ns_add_u32 s3, s3, s4\ns_lshl_b32 s4, s{qMH}, 3\ns_add_u32 s3, s3, s4\ns_lshl_b32 s3, s3, 11\nv_add_u32 v12, s3, v12")
            A(f"global_load_dword a237, v12, s[52:53]")
            if NL2 > 2: A(f"global_load_dword a237, v12, s[52:53] offset:1024")
        vC = 12
        A(f"v_min_u32 v{vC}, {NCH-1}, v0\nv_lshlrev_b32 v{vC}, 3, v{vC}")
        A(f"s_lshl_b32 s39, s{sRB}, 14\ns_lshl_b32 s3, s{sCh}, 4\ns_add_u32 s39, s39, s3\ns_add_u32 s39, s39, {EX_OFF}")
        A(f"s_cmp_ge_u32 s{sWV}, {NXW}\ns_cbranch_scc1 L_k2_nox1{nm}")
        for s_ in range(16): A(f"ds_read_b64 a[{WF+2*s_}:{WF+2*s_+1}], v{vC} offset:{EL + s_*EP}")
        A(f"v_accvgpr_read_b32 v14, a{PAR+30}\nv_accvgpr_read_b32 v15, a{PAR+31}")
        A(f"v_mov_b32 v16, 0\nv_mov_b32 v17, 0\nds_write_b64 v{vC}, v[16:17] offset:{PL}\ns_waitcnt lgkmcnt(0)")
        R = [16, 18, 20, 22]
        for s_ in range(16):
            p_ = R[s_ % 4]; c_ = R[(s_+1) % 4]
            A(f"v_accvgpr_read_b32 v{c_}, a{WF+2*s_}\nv_accvgpr_read_b32 v{c_+1}, a{WF+2*s_+1}")
            for x in cfma(c_, p_, 14): A(x)
            if s_ < 15: A(f"ds_write_b64 v{vC}, {pk(c_)} offset:{PL+(s_+1)*EP}")
        A(f"v_mov_b32 v24, v16\nv_mov_b32 v25, 1\nv_mov_b32 v26, v17\nv_mov_b32 v27, 1\nv_lshlrev_b32 v13, 1, v{vC}\ns_add_u32 s3, s39, {7*16384}")
        A(f"buffer_store_dwordx4 v[24:27], v13, s[{sWS}:{sWS+3}], s3 offen sc1")
        A(f"L_k2_nox1{nm}:")
        pstamp(A, opt, 1, 4)
        C1 = -2.0*math.sqrt(2/math.pi)*LOG2E; C2 = C1*0.044715
        A(f"s_mov_b32 s4, {hx(f2u(C1))}\ns_mov_b32 s6, {hx(f2u(C2))}\ns_mov_b32 s7, s6")
        vH = 30
        A(f"v_bfe_u32 v16, v0, 4, 1\nv_bfe_u32 v17, v0, 5, 1\nv_and_b32 v18, 15, v0\nv_lshlrev_b32 v{vH}, 10, v16\nv_lshl_add_u32 v{vH}, v17, 8, v{vH}\nv_lshl_add_u32 v{vH}, v18, 4, v{vH}")
        A(f"v_mov_b32 v16, s4\nv_lshlrev_b32 v13, 1, v12\nv_mov_b32 v31, v{vE}")
        vE = 31
        A(f"s_mul_i32 s40, s{sTB}, {112*4096}\ns_add_u32 s40, s40, {H_OFF}\ns_lshl_b32 s41, s{sCol}, 7\ns_add_u32 s40, s40, s41")
        for k in range(1, NP // 2): A(f"s_add_u32 s{40+k}, s40, {k*4096}")
        TMP = [18, 20, 22, 28]
        NB = 2*NP
        ER = 32
        eloads = []
        for d in range(7):
            eloads.append(f"s_add_u32 s3, s39, {d*16384}")
            eloads.append(f"buffer_load_dwordx4 v[{ER+4*d}:{ER+4*d+3}], v13, s[{sWS}:{sWS+3}], s3 offen sc1")
        ESLOT = NB - opt.get('eslot', 4)
        nst_after = 0
        for b in range(NB):
            p, i0 = b >> 1, (b & 1)*2
            if 2*p < 14:
                G = acc(2*p, i0)[1]; U = acc(2*p+1, i0)[1]
            else:
                G = acc(4, i0)[1]; U = acc(5, i0)[1]
                for h in range(8): A(rd(G+h, 2*p, i0 + (h >> 2), h & 3) + "\n" + rd(U+h, 2*p+1, i0 + (h >> 2), h & 3))
            if b == ESLOT:
                A(f"s_cmp_ge_u32 s{sWV}, {NXW}\ns_cbranch_scc1 L_k2_noel{nm}")
                for x in eloads: A(x)
                A(f"L_k2_noel{nm}:")
            for h in range(4): A(f"v_pk_mul_f32 {pk(TMP[h])}, {pk(G+2*h)}, {pk(G+2*h)}")
            for h in range(4): A(f"v_pk_mul_f32 {pk(U+2*h)}, {pk(U+2*h)}, {pk(G+2*h)}")
            for h in range(4): A(f"v_pk_fma_f32 {pk(TMP[h])}, {pk(TMP[h])}, s[6:7], v[16:17] op_sel_hi:[1,1,0]")
            for h in range(4): A(f"v_pk_mul_f32 {pk(G+2*h)}, {pk(G+2*h)}, {pk(TMP[h])}")
            for h in range(8): A(f"v_exp_f32 v{G+h}, v{G+h}")
            for h in range(4): A(f"v_pk_add_f32 {pk(G+2*h)}, {pk(G+2*h)}, 1.0 op_sel_hi:[1,0]")
            for h in range(8): A(f"v_rcp_f32 v{G+h}, v{G+h}")
            for h in range(4): A(f"v_pk_mul_f32 {pk(U+2*h)}, {pk(U+2*h)}, {pk(G+2*h)}")
            for h in (0, 2, 1, 3): A(f"v_cvt_pk_bf16_f32 v{G+h}, v{U+2*h}, v{U+2*h+1}")
            A(f"v_permlane16_swap_b32 v{G}, v{G+2}\ns_nop 0\nv_permlane16_swap_b32 v{G+1}, v{G+3}")
            A(f"buffer_store_dwordx4 v[{G}:{G+3}], v{vH}, s[{sWS}:{sWS+3}], s{40+(p>>1)} offen offset:{(p&1)*512 + i0*1024}{SC}")
            if b >= ESLOT: nst_after += 1
        pstamp(A, opt, 1, 5)
        A(f"s_cmp_ge_u32 s{sWV}, {NXW}\ns_cbranch_scc1 L_k2_nox2{nm}")
        A(f"s_mov_b32 s55, 0x40000\ns_waitcnt vmcnt({nst_after})")
        A(f"L_k2_poll{nm}:\nv_mov_b32 v18, 1")
        for d in range(7): A(f"v_min3_u32 v18, v18, v{ER+4*d+1}, v{ER+4*d+3}")
        A(f"v_cmp_ne_u32 vcc, 1, v18\ns_cbranch_vccz L_k2_got{nm}\ns_sleep 1")
        for x in eloads: A(x)
        A(f"s_waitcnt vmcnt(0)\ns_sub_u32 s55, s55, 1\ns_cmp_lg_u32 s55, 0\ns_cbranch_scc1 L_k2_poll{nm}\nL_k2_got{nm}:")
        A(f"v_accvgpr_read_b32 v18, a{PAR+32}\nv_accvgpr_read_b32 v19, a{PAR+33}")
        for d in range(7): A(f"v_mov_b32 v{ER+4*d+1}, v{ER+4*d+2}")
        for d in range(1, 7):
            for x in cfma(ER+4*d, ER+4*(d-1), 18): A(x)
        A(f"ds_write_b64 v{vC}, {pk(ER+24)} offset:{HL}\ns_waitcnt lgkmcnt(0)")
        A(f"L_k2_nox2{nm}:")

        def finish(ffn, u):
            if ffn: setup3(True)
            A("s_waitcnt vmcnt(0)\ns_barrier")
            signal(A, sWV, sWS, f"s_lshl_b32 s3, s2, 7\ns_add_u32 s3, s3, {CNT_H}", 28, f"h{u}")
            pstamp(A, opt, 1, 6)
            CY, HH, PW_, CF, LM = 32, 44, 56, 68, 80
            vW, vRd = 28, 29
            A("v_and_b32 v90, 15, v0\nv_lshlrev_b32 v90, 3, v90")
            for q in range(NS):
                A(f"ds_read_b64 {pk(CY+2*q)}, v{vE} offset:{PL+q*128}\nds_read_b64 {pk(HH+2*q)}, v90 offset:{HL+q*128}")
            for q in range(NS):
                for h in range(2): A(f"v_accvgpr_read_b32 v{PW_+2*q+h}, a{PAR+q*6+4+h}\nv_accvgpr_read_b32 v{CF+2*q+h}, a{PAR+q*6+2+h}\nv_accvgpr_read_b32 v{LM+2*q+h}, a{PAR+q*6+h}")
            TB0 = 110592; TQ = 32*144
            A(f"s_mul_i32 s3, s{sWV}, {2*TQ}\ns_add_u32 s3, s3, {TB0}")
            A(f"v_and_b32 v{vW}, 15, v0\nv_mul_u32_u24 v{vW}, 144, v{vW}\nv_bfe_u32 v91, v0, 4, 2\nv_lshl_add_u32 v{vW}, v91, 5, v{vW}\nv_add_u32 v{vW}, s3, v{vW}")
            A(f"v_bfe_u32 v{vRd}, v0, 5, 1\nv_bfe_u32 v91, v0, 2, 2\nv_lshl_add_u32 v{vRd}, v{vRd}, 3, v91\nv_mul_u32_u24 v{vRd}, 144, v{vRd}\nv_and_b32 v91, 3, v0\nv_lshl_add_u32 v{vRd}, v91, 5, v{vRd}\nv_bfe_u32 v91, v0, 4, 1\nv_lshl_add_u32 v{vRd}, v91, 3, v{vRd}\nv_add_u32 v{vRd}, s3, v{vRd}")
            A(f"s_lshl_b32 s40, s{sTB}, 18\ns_add_u32 s40, s40, {HS_OFF}\ns_lshr_b32 s41, s{sCh}, 4")
            A("s_waitcnt lgkmcnt(0)")
            for h in range(2):
                for q in range(NS): A(cfma(CY+2*q, HH+2*q, PW_+2*q)[h])
            if NS == 1: ST, O0, OB, LD0, LB = 44, 96, 0, 112, 0
            else: ST, O0, OB, LD0, LB = 44, 96, 32, 112, 32
            def calc(q):
                OR_, OI_ = O0 + (q & 1)*OB, O0 + 8 + (q & 1)*OB
                o = []
                for n in range(16):
                    i, r = n >> 2, n & 3
                    c_ = ST + 2*(n & 1); p_ = CY + 2*q if n == 0 else ST + 2*((n-1) & 1); o_ = ST + 4 + 2*(n & 1)
                    o += [rd(c_, jre(q), i, r), rd(c_+1, jim(q), i, r)] + cfma(c_, p_, LM+2*q)
                    o += [f"v_pk_mul_f32 {pk(o_)}, {pk(c_)}, {pk(CF+2*q)} op_sel_hi:[1,0]", cfma(o_, c_, CF+2*q)[1]]
                    if n & 1: o += [f"v_cvt_pk_bf16_f32 v{OR_+(n>>1)}, v{ST+4}, v{ST+6}", f"v_cvt_pk_bf16_f32 v{OI_+(n>>1)}, v{ST+5}, v{ST+7}"]
                return o
            def wr(q):
                o = []
                for part in range(2):
                    b = O0 + 8*part + (q & 1)*OB; off = (q & 1)*TQ + part*16*144
                    o += [f"ds_write_b128 v{vW}, v[{b}:{b+3}] offset:{off}", f"ds_write_b128 v{vW}, v[{b+4}:{b+7}] offset:{off+16}"]
                for part in range(2):
                    for k in range(2):
                        d = LD0 + (q & 1)*LB + (part*2+k)*4
                        o += [f"ds_read_b64_tr_b16 v[{d+2*h}:{d+2*h+1}], v{vRd} offset:{(q & 1)*TQ + (part*16 + 4*h)*144 + k*16}" for h in range(2)]
                return o
            def st(q):
                o = [f"s_add_u32 s42, s41, {q}\ns_lshr_b32 s43, s42, 1\ns_lshl_b32 s43, s43, 12\ns_and_b32 s42, s42, 1\ns_lshl_b32 s42, s42, 9\ns_add_u32 s43, s43, s42\ns_add_u32 s43, s43, s40\ns_add_u32 s42, s43, {32*4096}\ns_waitcnt lgkmcnt(0)"]
                for part in range(2):
                    for k in range(2):
                        d = LD0 + (q & 1)*LB + (part*2+k)*4
                        o.append(f"buffer_store_dwordx4 v[{d}:{d+3}], v{vH}, s[{sWS}:{sWS+3}], s{43-part} offen offset:{k*2048}{SC}")
                return o
            for q in range(NS + 1):
                c = calc(q) if q < NS else []
                side = (wr(q-1) + st(q-1)) if q > 0 else []
                step = max(1, len(c) // max(1, len(side)))
                k = 0
                for n_, x in enumerate(c):
                    A(x)
                    if side and n_ % step == step - 1 and k < len(side): A(side[k]); k += 1
                for x in side[k:]: A(x)
            pstamp(A, opt, 1, 7)
            pstamp(A, opt, 2, 0)
            if ffn:
                A("s_branch L_k3_ffn")
            else:
                A("s_branch L_k3_ssm")
        if NP == 8:
            A(f"s_cmp_eq_u32 s{qRole}, 0\ns_cbranch_scc1 L_finAs")
            finish(True, "Af")
            A("L_finAs:")
            finish(False, "As")
        else:
            finish(False, "B")
    body(8, 1, "A")
    A("L_k2_B:")
    body(4, 5, "B")

    A("L_k3_code:")
    def role(ffn):
        nm = "ffn" if ffn else "ssm"
        A(f"L_k3_{nm}:")
        def frag_reads(j, st, hk, f):
            d = BF + j*4
            if f: return [Op(f"ds_read_b64_tr_b16 a[{d+2*h}:{d+2*h+1}], v{vR[j]} offset:{st*16384 + hk*8192 + h*1024}", 'lds', f"f{j}") for h in range(2)]
            return [Op(f"ds_read_b128 a[{d}:{d+3}], v{vR2[(j>>2)*2 + hk]} offset:{st*16384 + (j&3)*2048}", 'lds', f"f{j}")]
        if not ffn: setup3(False)
        A(f"v_and_b32 v{vFO}, 31, v0\nv_lshlrev_b32 v{vFO}, 7, v{vFO}")
        A(mload(qCnt))
        for j in range(8): emit(frag_reads(j, 0, 0, True))
        wait_all(qCnt, "ch" + nm)
        emit(proa)
        pstamp(A, opt, 2, 1)
        A(f"s_mov_b32 s{sTrip}, 0\ns_barrier\ns_waitcnt vmcnt(0) lgkmcnt(0)")
        signal(A, sWV, sWS, sigS_addr, t0, "s" + nm)
        if ffn:
            extra = []
            for n in range(8):
                extra += [Op(f"s_add_u32 m0, s{qXL}, {n*1024}"), Op(f"s_add_u32 s3, s{qXo}, {n*16384}"),
                          Op(f"buffer_load_dwordx4 v{vXD}, s[{qO}:{qO+3}], s3 offen lds", 'vm', 'e')]
            for k in range(16):
                if k % 4 == 0 and k: extra.append(Op("s_add_u32 s66, s66, 4096"))
                extra.append(Op(f"buffer_load_dwordx4 v[{SR+k*4}:{SR+k*4+3}], v{vA}, s[{sWS}:{sWS+3}], s66 offen offset:{(k&3)*1024} sc1", 'vm', 'e'))
        else:
            extra = []
            for h in range(2):
                extra.append(Op(f"s_add_u32 m0, s{qXL}, {h*4096}"))
                if h: extra.append(Op(f"s_add_u32 s{qXo}, s{qXo}, 4096"))
                for n in range(4): extra.append(Op(f"buffer_load_dwordx4 v{vA}, s[{sWS}:{sWS+3}], s{qXo} offen offset:{n*1024} sc1 lds", 'vm', 'e'))
            for m in range(4): extra.append(Op(f"global_load_ushort v{28+m}, v{vXL}, s[44:45] offset:{m*32}", 'vm', 'e'))
        BARG = opt.get('barg3', 2)
        def trip(cur, nxt, kind):
            body = []
            ex = list(extra) if kind == 'last' else []
            for t in range(8):
                mf = []
                for j in range(8):
                    order = range(4) if j % 2 == 0 else range(3, -1, -1)
                    for n, i in enumerate(order):
                        if kind == 'F': c = f"v[{64+(j*4+i)*4}:{64+(j*4+i)*4+3}]" if j < 4 else f"a[{160+((j-4)*4+i)*4}:{160+((j-4)*4+i)*4+3}]"
                        else: c = f"v[{acc3(j,i)}:{acc3(j,i)+3}]"
                        cin = "0" if (kind in ('F', 'S0') and t == 0) else c
                        mf.append(Op(f"v_mfma_f32_16x16x32_bf16 {c}, a[{AB+t*16+i*4}:{AB+t*16+i*4+3}], a[{BF+j*4}:{BF+j*4+3}], {cin}",
                                     need_vm=(f"x{t}" if (j == 0 and n == 0) else None), need_lds=(f"f{j}" if n == 0 else None)))
                vmo = []
                if kind == 'F' and t + AD == 8:
                    vmo.append(Op(f"s_mov_b32 s55, 0x40000\nL_wcs:\nv_cmp_ne_u32 vcc, 1, v{vFL}\ns_cbranch_vccnz L_k3_spin\nL_gcs:", need_vm='cs'))
                if kind == 'S0' and t >= 4:
                    if t < 7: vmo += a3(AD + 4 + 2*(t-4)) + a3(AD + 5 + 2*(t-4))
                elif kind == 'S1' and t < 2: pass
                elif t + AD < 8 or nxt is not None: vmo += a3(t + AD, switch=(kind == 'F'))
                if kind == 'S0' and t == 7:
                    for k in range(16):
                        if k % 4 == 0 and k: vmo.append(Op("s_add_u32 s66, s66, 4096"))
                        vmo.append(Op(f"buffer_store_dwordx4 v[{64+4*k}:{67+4*k}], v{vA}, s[{sWS}:{sWS+3}], s66 offen offset:{(k&3)*1024} sc1", 'vm', 'ps'))
                sg = (t + 5) >> 1
                if sg < 4: vmo += dma3(sg, (t + 1) % 2, cur)
                elif nxt is not None: vmo += dma3(sg % 4, (t + 1) % 2, nxt)
                if kind == 'F' and t + AD == 6: vmo.append(Op(mload(qCnt2), 'vm', 'cs'))
                if ffn and kind == 'loop' and t == 4: vmo.append(Op(cload(vFL, 67), 'vm', 'fl'))
                if kind == 'last':
                    nv = sum(1 for o in vmo if o.kind == 'vm')
                    while ex and nv < 8 and t >= 3:
                        o = ex.pop(0); vmo.append(o); nv += o.kind == 'vm'
                    if ffn and t == 7: vmo.append(Op(cload(vFL, qFL), 'vm', 'fl'))
                fin = nxt is None and t == 7
                if t % 2 == 0: st, hk, first = t >> 1, 1, 0
                else: st, hk, first = ((t >> 1) + 1) % 4, 0, BARG*4 - 1
                rd = []
                if not fin:
                    for j in range(8):
                        for o in frag_reads(j, st, hk, nxt if t == 7 else cur): rd.append((max(j*4 + 3, first), o))
                sp = 30.0 / max(1, len(vmo))
                vm = [(int(k*sp), o) for k, o in enumerate(vmo)]
                px = []
                if kind == 'S0':
                    if t in (0, 4):
                        r_ = t >> 2
                        px = [(6 + 3*k, Op(f"ds_write_b128 v{vXD}, a[{160+32*r_+4*k}:{160+32*r_+4*k+3}] offset:{k*1024}", 'lds', 'pw')) for k in range(8)]
                    if t in (1, 2, 5, 6):
                        r_ = t >> 2; k0 = 4*((t - 1) & 1); base = first + 1
                        px = [(base + k, Op(f"ds_read_b128 v[{44+4*k}:{47+4*k}], v27 offset:{(k0+k)*1024}", 'lds', f"pr{k}")) for k in range(4)]
                        for k in range(4):
                            y = 64 + (8*r_ + k0 + k)*4
                            e = base + 9 + 3*k + (k if t % 2 == 0 else 0)
                            px.append((e, Op(f"v_pk_add_f32 {pk(y)}, {pk(y)}, {pk(44+4*k)}\nv_pk_add_f32 {pk(y+2)}, {pk(y+2)}, {pk(46+4*k)}", need_lds=f"pr{k}")))
                slots = spread(32, [rd, vm], per_gap=1)
                slots2 = spread(32, [px], per_gap=1)
                for m in range(32):
                    body.append(mf[m])
                    if t % 2 == 1 and m == first and not fin:
                        body.append(Op("s_waitcnt lgkmcnt(0)", 'lgkm0', need_vm=f"d{st}"))
                        body.append(Op("s_barrier"))
                        if kind == 'S1' and t == 5:
                            body.append(Op(f"s_cmp_eq_u32 s{sWV}, 0\ns_cbranch_scc1 L_k3_sig\nL_k3_sigret:"))
                    body.extend(slots[m]); body.extend(slots2[m])
            assert not ex, len(ex)
            return body
        loop = trip(ffn, ffn, 'loop'); fin = trip(ffn, None, 'last')
        pstamp(A, opt, 2, 2)
        if not ffn:
            tF = trip(True, False, 'F'); tS = trip(False, False, 'S0')
            put(resolve_seq(trip(True, True, 'x'), tF, lgkm_slack=4))
            pstamp(A, opt, 0, 2)
            put(resolve_seq(tF, tS, lgkm_slack=4))
            pstamp(A, opt, 0, 3)
            tS1 = trip(False, False, 'S1')
            put(resolve_seq(tS, tS1, lgkm_slack=4))
            put(resolve_seq(tS1, loop, lgkm_slack=4))
        else:
            A(f".p2align 6\nL_k3_{nm}_loop:")
            put(resolve_loop(loop, lgkm_slack=4))
            A(f"s_add_u32 s{sTrip}, s{sTrip}, 1\ns_cmp_lt_u32 s{sTrip}, 5\ns_cbranch_scc1 L_k3_{nm}_loop")
        if ffn:
            nafter = 0
            for o in reversed(loop):
                if o.tag == 'fl': break
                nafter += o.kind == 'vm'
            wait_word(vFL, 67, 1, "fp", nafter)
        pstamp(A, opt, 0, 4)
        if opt.get('cpf', 1):
            A(f"s_getpc_b64 s[58:59]\nL_pc3{nm}:\ns_add_u32 s58, s58, L_k3_epi{nm}-L_pc3{nm}\ns_addc_u32 s59, s59, 0\nv_lshlrev_b32 v{t0}, 5, v0\nv_min_u32 v{t0}, L_text_end-L_k3_epi{nm}-4, v{t0}\nglobal_load_dword a238, v{t0}, s[58:59]")
        put(resolve_seq(loop, fin, lgkm_slack=4))
        A(f"L_k3_epi{nm}:")
        pstamp(A, opt, 2, 3)
        A(f"s_lshl_b32 s3, s{qKH}, 16\ns_lshl_b32 s4, s{qMH}, 14\ns_add_u32 s3, s3, s4\nv_add_u32 v2, s3, v{vA}\nv_xor_b32 v3, 0x10000, v2")
        XR = 32
        E = acc3(4, 0)
        def sloads():
            for k in range(16):
                if k % 4 == 0 and k: A(f"s_add_u32 s{qS}, s{qS}, 4096")
                A(f"buffer_load_dwordx4 v[{SR+k*4}:{SR+k*4+3}], v{vA}, s[{sWS}:{sWS+3}], s{qS} offen offset:{(k&3)*1024} sc1")
        A("s_nop 4")
        for k in range(16):
            r = E + k*4
            A(f"ds_write_b128 v2, v[{r}:{r+3}] offset:{k*1024}")
        A("s_waitcnt vmcnt(0)")
        for k in range(16):
            m, i = k >> 2, k & 3
            off = (i*512 + m*32) if ffn else ((m >> 1)*4096 + i*1024 + (m & 1)*512)
            A(f"ds_read_b64_tr_b16 v[{XR+2*k}:{XR+2*k+1}], v{vXR} offset:{off}")
        if ffn:
            for k in range(32): A(f"v_pk_add_f32 {pk(ACC+2*k)}, {pk(ACC+2*k)}, {pk(SR+2*k)}")
            A(f"v_readfirstlane_b32 s54, v{vFL}\ns_cmp_eq_u32 s54, 0\ns_cbranch_scc1 L_k3_late")
            sloads()
            A("L_k3_late:")
        A("s_waitcnt lgkmcnt(0)\ns_barrier")
        pstamp(A, opt, 2, 4)
        for k in range(16): A(f"ds_read_b128 v[{E+k*4}:{E+k*4+3}], v3 offset:{k*1024}")
        if not ffn: pstamp(A, opt, 2, 5)
        if ffn:
            srd(A, qO, 46, 47, 2048*1024*4)
            A(f"s_mov_b32 s4, {hx(f2u(-LOG2E))}\ns_mov_b32 s5, s4\ns_lshl_b32 s{qXo}, s{qXo}, 1")
            for r in range(16): A(f"s_add_u32 s{27+r}, s{qXo}, {r*4096}")
            KS = opt.get('ks', 6)
            def gate(k):
                y = ACC + k*4; e = E + k*4; xr = XR + 2*k
                o = [f"s_waitcnt lgkmcnt({15-k})"]
                o += [f"v_pk_add_f32 {pk(y+h)}, {pk(y+h)}, {pk(e+h)}" for h in (0, 2)]
                o += [f"v_pk_mul_f32 {pk(e+h)}, {pk(y+h)}, s[4:5]" for h in (0, 2)]
                o += [f"v_exp_f32 v{e+h}, v{e+h}" for h in range(4)] + ["s_nop 0"]
                o += [f"v_pk_add_f32 {pk(e+h)}, {pk(e+h)}, 1.0 op_sel_hi:[1,0]" for h in (0, 2)]
                o += [f"v_rcp_f32 v{e+h}, v{e+h}" for h in range(4)] + ["s_nop 0"]
                o += [f"v_pk_mul_f32 {pk(y+h)}, {pk(y+h)}, {pk(e+h)}" for h in (0, 2)]
                o += [f"v_lshlrev_b32 v{e}, 16, v{xr}", f"v_and_b32 v{e+1}, 0xffff0000, v{xr}", f"v_lshlrev_b32 v{e+2}, 16, v{xr+1}", f"v_and_b32 v{e+3}, 0xffff0000, v{xr+1}"]
                return o
            def outp(k):
                m, i = k >> 2, k & 3
                y = ACC + k*4; e = E + k*4; s_ = SR + k*4
                o = [f"s_waitcnt vmcnt({min(63, 15-k+4*k)})\n" + "\n".join(f"v_pk_fma_f32 {pk(e+h)}, {pk(y+h)}, {pk(s_+h)}, {pk(e+h)}" for h in (0, 2))]
                o += [f"buffer_store_dword v{e+r}, v{vXL}, s[{qO}:{qO+3}], s{27+4*i+r} offen offset:{m*64}{OSC}" for r in range(4)]
                return o
            A(cload(vFL, qFL))
            for k in range(KS - 3):
                for x in gate(k): A(x)
            pstamp(A, opt, 2, 5)
            A("s_cmp_lg_u32 s54, 0\ns_cbranch_scc1 L_k3_have")
            wait_word(vFL, qFL, 1, "fs", 0)
            sloads()
            A("L_k3_have:")
            for k in range(KS - 3, KS):
                for x in gate(k): A(x)
            gs = [(k, x) for k in range(KS, 16) for x in gate(k)]
            os_ = [(k, x) for k in range(16) for x in outp(k)]
            oi = 0
            for n_, (k, x) in enumerate(gs):
                A(x)
                if n_ % 3 == 2 and oi < len(os_) and os_[oi][0] < k: A(os_[oi][1]); oi += 1
            for k, x in os_[oi:]: A(x)
            pstamp(A, opt, 2, 6)
            if opt.get('prof'): A("s_waitcnt vmcnt(0)")
            pstamp(A, opt, 2, 7)
            A("s_endpgm")
        else:
            A(f"s_cmp_eq_u32 s{qKH}, 0\ns_cselect_b32 s4, 2.0, -2.0\ns_mov_b32 s5, s4")
            for k in range(16):
                m, i = k >> 2, k & 3
                y = ACC + k*4; e = E + k*4; xr = XR + 2*k
                if i == 0: A(f"v_lshlrev_b32 v10, 16, v{28+m}")
                A(f"v_lshlrev_b32 v4, 16, v{xr}\nv_and_b32 v5, 0xffff0000, v{xr}\nv_lshlrev_b32 v6, 16, v{xr+1}\nv_and_b32 v7, 0xffff0000, v{xr+1}")
                A("v_pk_mul_f32 v[4:5], v[4:5], v[10:11] op_sel_hi:[1,0]\nv_pk_mul_f32 v[6:7], v[6:7], v[10:11] op_sel_hi:[1,0]")
                A("v_cvt_pk_bf16_f32 v12, v4, v5\nv_cvt_pk_bf16_f32 v13, v6, v7")
                A("v_lshlrev_b32 v4, 16, v12\nv_and_b32 v5, 0xffff0000, v12\nv_lshlrev_b32 v6, 16, v13\nv_and_b32 v7, 0xffff0000, v13")
                A(f"s_waitcnt lgkmcnt({15-k})")
                for h in (0, 2): A(f"v_pk_add_f32 {pk(y+h)}, {pk(y+h)}, {pk(e+h)} neg_lo:[0,1] neg_hi:[0,1]")
                for h in (0, 2): A(f"v_pk_fma_f32 {pk(y+h)}, {pk(y+h)}, s[4:5], {pk(4+h)}")
                if k % 4 == 0 and k: A(f"s_add_u32 s{qS}, s{qS}, 4096")
                A(f"buffer_store_dwordx4 v[{y}:{y+3}], v{vA}, s[{sWS}:{sWS+3}], s{qS} offen offset:{(k&3)*1024} sc1")
            pstamp(A, opt, 2, 6)
            A("s_waitcnt vmcnt(0)\ns_barrier")
            signal(A, sWV, sWS, f"s_mov_b32 s3, s{qFL}", 2, "fl")
            pstamp(A, opt, 2, 7)
            A("s_endpgm")
            A("L_k3_sig:")
            signal(A, sWV, sWS, "s_mov_b32 s3, s67", t0, "pf")
            A("s_branch L_k3_sigret")
            A("L_k3_spin:\ns_sleep 1\n" + mload(qCnt2) + "\ns_waitcnt vmcnt(0)\ns_sub_u32 s55, s55, 1\ns_cmp_lg_u32 s55, 0\ns_cbranch_scc1 L_wcs\ns_branch L_gcs")
    role(True)
    role(False)
    A("L_end:\ns_endpgm")
    return kernel_desc("recurrent_scan__ssm_conv_s5__glu_gated_geglu__prompt_kernel", 512, 256, 102)
```

```python
from gen import *

def pstamp(A, opt, k, n, early=False):
    if not opt.get('prof'): return
    A("s_memtime s[96:97]\ns_memrealtime s[98:99]\ns_waitcnt lgkmcnt(0)")
    if early: A("s_mov_b32 s94, s96\ns_mov_b32 s95, s98"); return
    A(f"v_accvgpr_write_b32 a254, s96\nv_accvgpr_write_b32 a255, s98\ns_add_u32 s101, s100, {k*0x10000}\nbuffer_store_dwordx2 a[254:255], off, s[20:23], s101 offset:{n*8}")

def gen_main(A, opt):
    kernel_head(A, "recurrent_scan__ssm_conv_s5__glu_gated_geglu__prompt_kernel")
    pk = lambda r: f"v[{r}:{r+1}]"
    WSZ = WS_SIZE if opt.get('prof') else WSB + 0x2300000 + 0x800000
    WF = 64; XB = 136; PAR = 200; STASH = 240
    vWD = list(range(1, 10)); vX = 10
    vRW = [11, 12]; vRB = [[13, 14], [15, 16]]
    L = 18; t0, t1, t2, t3 = 19, 20, 21, 22
    vP = [23, 24]
    sW, sB, sX, sWS = 8, 12, 16, 20
    sRB, sU, sWV = 24, 25, 26
    sWoff, sBoff, sXoff = 27, 28, 29
    sM = [30, 31]; sMB = [32, 33]
    sDelta, sTrip, sTB, sCol, sCh = 34, 35, 36, 37, 38
    XD = 3
    WNT = " nt" if opt.get('wnt', 1) else ""
    SC = " sc1"
    PF = opt.get('pft', 9) == 9
    ACC = 128
    acc3 = lambda j, i: ACC + (j*4+i)*4
    BF = 0; AB = 32
    AD = opt.get('ad3', 2)
    OSC = ["", " sc1", " nt"][opt.get('osc', 2)]
    vD = list(range(1, 9)); vA = 9; vR = list(range(10, 18))
    vXL, vXD, vXR, vFL = 23, 24, 25, 26
    SR = 64; XLDS = 131072
    qRB, qCB, qKH, qMH, qRole, qTB = 60, 61, 62, 63, 64, 65
    qB = 68; qPB = [72, 73, 74, 75]; qM, qBb, qBoff, qRho = 76, 77, 78, 79
    qA, qO, qC = 20, 12, 8
    vD2 = list(range(32, 40)); vR2 = list(range(40, 44)); qPC = [16, 17, 18, 19]; qCb, qAb2, qCnt2 = 91, 92, 93
    P_OFF = WSB + 0x2300000
    qPA = [80, 81, 82, 83]; qAb, qAoff, qFL, qS, qXo, qXL, qCnt = 84, 85, 86, 87, 88, 89, 90
    CNT_H = FL_OFF + 256*128; CNT_S = FL_OFF + 512*128; vFO = 44; CNT_X = FL_OFF + 768*128
    def put(lines):
        prev = ""
        for x in lines:
            if ' m0,' in prev and x.endswith('lds'): A("s_nop 0")
            A(x); prev = x
    emit = lambda ops: put([o.text for o in ops])

    A("s_cmp_ge_u32 s2, 256\ns_cbranch_scc1 L_end")
    pstamp(A, opt, 1, 0, early=True)
    A(f"s_load_dwordx2 s[60:61], s[0:1], {KA['x']}")
    A(f"s_load_dwordx4 s[48:51], s[0:1], {KA['dbg']}")
    A(f"s_load_dwordx4 s[40:43], s[0:1], {KA['wg']}")
    A(f"s_load_dwordx4 s[44:47], s[0:1], {KA['bre']}")
    A(f"s_load_dwordx4 s[64:67], s[0:1], {KA['lre']}")
    A(f"s_load_dwordx2 s[62:63], s[0:1], {KA['ldt']}")
    A(f"s_load_dwordx4 s[52:55], s[0:1], {KA['cre']}")
    A(f"s_load_dwordx2 s[56:57], s[0:1], {KA['wd']}")
    vLS, vLW, vLR, vCH = 25, 26, 27, 28
    PB = 4*STAGE2; PWL = PB + 1280; LNL = PB + 11520
    A("v_and_b32 v29, 7, v0\nv_lshrrev_b32 v30, 3, v0")
    A("s_lshr_b32 s68, s2, 3\ns_bfe_u32 s69, s2, 0x10002\ns_and_b32 s70, s2, 3")
    A("s_lshl_b32 s71, s68, 6\ns_lshl_b32 s3, s69, 5\ns_add_u32 s71, s71, s3\ns_lshl_b32 s3, s70, 2\ns_add_u32 s71, s71, s3")
    A(f"v_lshrrev_b32 v{t0}, 2, v29\nv_lshlrev_b32 v{t0}, 4, v{t0}\nv_and_b32 v{t1}, 3, v29\nv_add3_u32 v{t0}, v{t0}, v{t1}, s71\nv_lshlrev_b32 v{t0}, 11, v{t0}\nv_lshl_add_u32 v{t0}, v30, 4, v{t0}")
    A("s_waitcnt lgkmcnt(0)")
    srd(A, sWS, 50, 51, WSZ)
    A("s_cmp_ge_u32 s2, 16\ns_cbranch_scc1 L_noclr")
    A("s_cmp_lt_u32 s2, 7\ns_cselect_b32 s3, 1, 0\nv_mov_b32 v32, 0\nv_mov_b32 v33, s3\nv_mov_b32 v34, 0\nv_mov_b32 v35, s3\nv_lshlrev_b32 v36, 4, v0\nv_mov_b32 v60, 0\nv_mov_b32 v61, 0\nv_mov_b32 v62, 0\nv_mov_b32 v63, 0")
    A(f"s_lshl_b32 s3, s2, 13\ns_add_u32 s3, s3, {FL_OFF}\nbuffer_store_dwordx4 v[60:63], v36, s[{sWS}:{sWS+3}], s3 offen sc1\ns_add_u32 s3, s3, 4096\nbuffer_store_dwordx4 v[60:63], v36, s[{sWS}:{sWS+3}], s3 offen sc1")
    A(f"s_lshl_b32 s3, s2, 14\ns_add_u32 s3, s3, {EX_OFF}")
    for k in range(4): A(f"buffer_store_dwordx4 v[32:35], v36, s[{sWS}:{sWS+3}], s3 offen sc1\ns_add_u32 s3, s3, 4096")
    A("L_noclr:")
    for m in range(4): A(f"global_load_dwordx4 v[{40+4*m}:{43+4*m}], v{t0}, s[60:61] offset:{m*512}")
    A(f"v_lshrrev_b32 v17, 6, v0\nv_and_b32 v{L}, 63, v0")
    A(f"s_and_b32 s3, s2, 7\ns_bfe_u32 s{sU}, s2, 0x20003\ns_lshr_b32 s{sRB}, s2, 5")
    A(f"v_readfirstlane_b32 s{sWV}, v17")
    A(f"s_lshr_b32 s4, s3, 1\ns_lshl_b32 s6, s4, 2\ns_add_u32 s6, s6, s{sU}")
    A(f"s_lshl_b32 s4, s4, 1\ns_and_b32 s7, s{sU}, 1\ns_add_u32 s4, s4, s7\ns_add_u32 s7, s4, 16")
    A(f"s_bitcmp{0 if opt.get('flip', 1) else 1}_b32 s2, 0\ns_cselect_b32 s6, s7, s6\ns_cselect_b32 s{sU}, s{sU}, 0\ns_or_b32 s{sU}, s{sU}, 1")
    A(f"s_lshl_b32 s{sCol}, s6, 7\ns_lshl_b32 s{sCh}, s6, 4\ns_lshl_b32 s6, s4, 6\ns_add_u32 s6, s6, 3072\ns_mul_i32 s7, s4, 80\ns_add_u32 s7, s7, 384")
    A(f"s_cmp_eq_u32 s{sU}, 3\ns_cselect_b32 s{sCol}, s6, s{sCol}\ns_cselect_b32 s{sCh}, s7, s{sCh}")
    A(f"v_lshlrev_b32 v{vX}, 4, v{L}")
    A(f"s_lshl_b32 s{sTB}, s{sRB}, 2\ns_add_u32 s{sTB}, s{sTB}, s{sWV}\ns_lshl_b32 s{sXoff}, s{sTB}, 17")
    if XN_OFF: A(f"s_add_u32 s{sXoff}, s{sXoff}, {XN_OFF}")
    A(f"s_mov_b32 s{sWoff}, 0\ns_mov_b32 s{sBoff}, 0\ns_mov_b32 s{sDelta}, {2*STAGE2}")
    A(f"s_mov_b32 s{sW+2}, {1024*3584*2}\ns_mov_b32 s{sW+3}, 0x00020000\ns_mov_b32 s{sB+2}, {1024*1024*2}\ns_mov_b32 s{sB+3}, 0x00020000")
    A(f"s_and_b32 s5, s{sWV}, 1\ns_mul_i32 s6, s5, {32*7168}\ns_lshl_b32 s7, s{sCol}, 1\ns_add_u32 s6, s6, s7\ns_movk_i32 s7, 7168")
    A(f"s_cmp_eq_u32 s{sU}, 3\ns_cselect_b32 s3, 79, 15\nv_min_u32 v{vCH}, s3, v0\nv_add_lshl_u32 v{t1}, v{vCH}, s{sCh}, 1\nv_lshlrev_b32 v{vCH}, 3, v{vCH}")
    A(f"s_cmp_lt_u32 s{sWV}, 2\ns_cselect_b32 s{sW}, s40, s42\ns_cselect_b32 s{sW+1}, s41, s43\ns_cselect_b32 s{sB}, s44, s46\ns_cselect_b32 s{sB+1}, s45, s47")
    A(f"s_cselect_b32 s52, s52, s54\ns_cselect_b32 s53, s53, s55")
    A(f"global_load_ushort v56, v{t1}, s[64:65]\nglobal_load_ushort v57, v{t1}, s[66:67]\nglobal_load_ushort v58, v{t1}, s[62:63]")
    NE = 3
    PFR = opt.get('pfr', 4)
    if PFR:
        RW = 4*PFR
        A(f"s_cmp_eq_u32 s{sU}, 3\ns_cselect_b32 s3, 0, 1\ns_cselect_b32 s4, 10, 2")
        A(f"v_lshrrev_b32 v{t2}, 1, v{L}\nv_min_u32 v{t2}, {RW-1}, v{t2}\nv_mul_u32_u24 v{t2}, s7, v{t2}\nv_and_b32 v{t3}, s3, v{L}\nv_lshl_add_u32 v{t2}, v{t3}, 7, v{t2}")
        A(f"s_mul_i32 s3, s{sRB}, {RW*7168}\ns_lshl_b32 s71, s{sCol}, 1\ns_add_u32 s3, s3, s71\nbuffer_load_dword a236, v{t2}, s[{sW}:{sW+3}], s3 offen")
        A(f"s_mul_i32 s3, s{sRB}, s4\ns_add_u32 s3, s3, s{sCh}\ns_lshl_b32 s3, s3, 11\ns_sub_u32 s4, s4, 1")
        A(f"v_lshrrev_b32 v{t2}, 2, v{L}\nv_min_u32 v{t2}, s4, v{t2}\nv_lshlrev_b32 v{t2}, 11, v{t2}\nv_and_b32 v{t3}, 3, v{L}\nv_min_u32 v{t3}, {PFR//2-1}, v{t3}\nv_lshl_add_u32 v{t2}, v{t3}, 7, v{t2}")
        A(f"buffer_load_dword a236, v{t2}, s[{sB}:{sB+3}], s3 offen")
        NE += 2
    if opt.get('cpf', 1):
        code_prefetch(A, "L_noclr", "L_text_end", 58, t2, "a237", opt.get("cpfn", 24), "1", back=True); NE += 1
    A("s_cmp_ge_u32 s2, 16\ns_cbranch_scc1 L_noclr2")
    A(f"s_waitcnt vmcnt({4+NE})\ns_barrier\ns_cmp_lg_u32 s{sWV}, 0\ns_cbranch_scc1 L_noclr2")
    A("s_lshl_b32 s3, s2, 2\nv_mov_b32 v36, s3\nv_mov_b32 v37, 1\ns_mov_b64 exec, 1\nglobal_store_dword v36, v37, s[48:49] sc1\ns_mov_b64 exec, -1")
    A("L_noclr2:")
    A(f"s_lshl_b32 s71, s68, 17\ns_lshl_b32 s3, s70, 10\ns_add_u32 s71, s71, s3\ns_lshl_b32 s3, s69, 7\ns_add_u32 s71, s71, s3")
    if XN_OFF: A(f"s_add_u32 s71, s71, {XN_OFF}")
    A(f"v_lshrrev_b32 v{vLS}, 2, v30\nv_lshlrev_b32 v{vLS}, 12, v{vLS}\nv_and_b32 v{t2}, 3, v30\nv_lshlrev_b32 v{t2}, 8, v{t2}\nv_add3_u32 v{vLS}, v{vLS}, v{t2}, s71\nv_lshl_add_u32 v{vLS}, v29, 4, v{vLS}")
    A(f"v_lshlrev_b32 v{vLR}, 4, v29\nv_add_u32 v{vLR}, {LNL}, v{vLR}\nv_lshl_add_u32 v{vLW}, v17, 2, v{vLR}")
    A(f"s_cmp_eq_u32 s{sU}, 3\ns_cbranch_scc1 L_k2_B")

    def dma3(st, part, ffn=True):
        D, B, PB, Bb, BSH = (vD, qB, qPB, qBb, 17) if ffn else (vD2, qC, qPC, qCb, 7)
        o = []
        if part == 0: o.append(Op(f"s_add_u32 s{qBoff}, s{Bb}, s{PB[st]}"))
        o.append(Op(f"s_add_u32 m0, s{qM}, {st*16384 + part*4096}"))
        for n in range(4*part, 4*part+4):
            o.append(Op(f"buffer_load_dwordx4 v{D[n]}, s[{B}:{B+3}], s{qBoff} offen offset:{(n&3)*1024} lds", 'vm', f"d{st}"))
        if part == 1 and st == 3: o.append(Op(f"s_add_u32 s{Bb}, s{Bb}, {4 << BSH}"))
        return o
    def a3(ts, switch=False):
        ts %= 8
        o = [Op(f"s_add_u32 s{qAoff}, s{qAb}, s{qPA[ts >> 1]}") if ts % 2 == 0 else Op(f"s_add_u32 s{qAoff}, s{qAoff}, 4096")]
        for i in range(4):
            r = AB + ts*16 + i*4
            o.append(Op(f"buffer_load_dwordx4 a[{r}:{r+3}], v{vA}, s[{qA}:{qA+3}], s{qAoff} offen offset:{i*1024} sc1", 'vm', f"x{ts}"))
        if ts == 7: o.append(Op(f"s_mov_b32 s{qAb}, s{qAb2}") if switch else Op(f"s_add_u32 s{qAb}, s{qAb}, 32768"))
        return o
    def early3(nm, can_ffn):
        A(f"s_and_b32 s{qRole}, s2, 1\ns_xor_b32 s{qRole}, s{qRole}, {0 if opt.get('flip', 1) else 1}")
        A(f"s_lshr_b32 s4, s2, 5\ns_bfe_u32 s6, s2, 0x20003")
        A(f"s_bfe_u32 s3, s2, 0x10002\ns_lshl_b32 s3, s3, 3\ns_add_u32 s{qRB}, s3, s4\ns_bfe_u32 s3, s2, 0x10001\ns_lshl_b32 s3, s3, 2\ns_add_u32 s{qCB}, s3, s6")
        A(f"s_add_u32 s{qRho}, s4, s6\ns_and_b32 s{qRho}, s{qRho}, 3")
        A(f"s_lshr_b32 s{qKH}, s{sWV}, 1\ns_and_b32 s{qMH}, s{sWV}, 1\ns_lshl_b32 s{qTB}, s{qRB}, 1\ns_add_u32 s{qTB}, s{qTB}, s{qMH}")
        A(f"s_lshl_b32 s{qM}, s{qKH}, 16\ns_lshl_b32 s3, s{qMH}, 13\ns_add_u32 s{qM}, s{qM}, s3\ns_mov_b32 s{qB+3}, 0x00020000")
        for n in range(4): A(f"s_xor_b32 s{qPB[n]}, s{qRho}, {n}\ns_lshl_b32 s{qPB[n]}, s{qPB[n]}, 17")
        A(f"s_lshl_b32 s3, s{qMH}, 16\ns_lshl_b32 s4, s{qCB}, 8\ns_add_u32 s3, s3, s4")
        A(f"v_lshrrev_b32 v{t0}, 4, v{L}\nv_bfe_u32 v{t1}, v{L}, 1, 3\nv_xor_b32 v{t1}, v{t1}, v{t0}\nv_and_b32 v{t2}, 1, v{L}")
        A(f"v_lshlrev_b32 v{t2}, 4, v{t2}\nv_lshl_add_u32 v{t2}, v{t0}, 11, v{t2}\nv_add_u32 v{t2}, s3, v{t2}")
        A(f"v_lshl_add_u32 v{t0}, v{t1}, 5, v{t2}\nv_xor_b32 v{t1}, 4, v{t1}\nv_lshl_add_u32 v{t1}, v{t1}, 5, v{t2}")
        for n in range(8):
            A(f"v_add_u32 v{t2}, {n*8192 - (n&3)*1024}, v{t1 if (n>>1)&1 else t0}\nv_accvgpr_write_b32 a{STASH+n}, v{t2}")
        A(f"s_mul_i32 s{qBb}, s{qKH}, {1792*2048}\ns_lshl_b32 s3, s{qRole}, 19\ns_add_u32 s{qBb}, s{qBb}, s3")
        A(f"s_mov_b32 s{qB}, s56\ns_mov_b32 s{qB+1}, s57\ns_mov_b32 s{qB+2}, {3584*1024*2}")
    def setup3(ffn):
        A(f"s_load_dwordx2 s[44:45], s[0:1], {KA['x'] if ffn else KA['dsk']}\ns_load_dwordx2 s[46:47], s[0:1], {KA['out']}")
        for n in range(8): A(f"v_accvgpr_read_b32 v{vD[n]}, a{STASH+n}")
        A(f"v_and_b32 v{L}, 63, v0\nv_lshlrev_b32 v{vA}, 4, v{L}")
        for n in range(4): A(f"s_xor_b32 s{qPA[n]}, s{qRho}, {n}\ns_lshl_b32 s{qPA[n]}, s{qPA[n]}, 13")
        A(f"s_lshl_b32 s3, s{qRB}, 3\ns_add_u32 s3, s3, s{qCB}\ns_lshl_b32 s{qFL}, s3, 7\ns_add_u32 s{qFL}, s{qFL}, {FL_OFF}")
        A(f"s_lshl_b32 s{qS}, s3, 16\ns_lshl_b32 s3, s{sWV}, 14\ns_add_u32 s{qS}, s{qS}, s3\ns_add_u32 s{qS}, s{qS}, {S_OFF}")
        A(f"s_lshr_b32 s{qCnt}, s{qRB}, 1\ns_lshl_b32 s{qCnt}, s{qCnt}, 12\ns_add_u32 s{qCnt2}, s{qCnt}, {CNT_S}\ns_add_u32 s{qCnt}, s{qCnt}, {CNT_H}")
        A(f"s_lshl_b32 s{qXL}, s{sWV}, 13\ns_add_u32 s{qXL}, s{qXL}, {XLDS}")
        A(f"s_mul_i32 s{qAb}, s{qTB}, 112\ns_mul_i32 s3, s{qKH}, 56\ns_add_u32 s{qAb}, s{qAb}, s3\ns_lshl_b32 s{qAb}, s{qAb}, 12\ns_add_u32 s{qAb}, s{qAb}, {H_OFF + (32768 if ffn else 0)}")
        A(f"v_bfe_u32 v{t0}, v{L}, 2, 2\nv_lshrrev_b32 v{t1}, 4, v{L}\nv_lshl_add_u32 v{t2}, v{t1}, 3, v{t0}\nv_lshlrev_b32 v{t2}, 8, v{t2}")
        A(f"v_and_b32 v{t3}, 3, v{L}\nv_lshl_add_u32 v{t2}, v{t3}, 3, v{t2}\ns_lshl_b32 s3, s{qKH}, 16\nv_add_u32 v{t2}, s3, v{t2}")
        A(f"v_bfe_u32 v{t0}, v{L}, 2, 3\ns_lshl_b32 s3, s{qKH}, 2\nv_xor_b32 v{t0}, s3, v{t0}")
        for j in range(8): A(f"v_xor_b32 v{t1}, {j}, v{t0}\nv_lshl_add_u32 v{vR[j]}, v{t1}, 5, v{t2}")
        if ffn:
            A(f"v_lshrrev_b32 v{t0}, 3, v{L}\nv_and_b32 v{t1}, 7, v{L}\nv_lshlrev_b32 v{t0}, 11, v{t0}\nv_lshl_add_u32 v{vXD}, v{t1}, 4, v{t0}")
            A(f"s_lshl_b32 s{qXo}, s{qTB}, 17\ns_lshl_b32 s3, s{qCB}, 8\ns_add_u32 s{qXo}, s{qXo}, s3\ns_lshl_b32 s3, s{qKH}, 7\ns_add_u32 s{qXo}, s{qXo}, s3")
            A(f"v_lshrrev_b32 v{t0}, 4, v{L}\nv_bfe_u32 v{t1}, v{L}, 2, 2\nv_lshl_add_u32 v{t0}, v{t0}, 4, v{t1}\nv_lshlrev_b32 v{t0}, 7, v{t0}")
            A(f"v_and_b32 v{t1}, 3, v{L}\nv_lshl_add_u32 v{t0}, v{t1}, 3, v{t0}\nv_add_u32 v{vXR}, s{qXL}, v{t0}")
            A(f"v_lshrrev_b32 v{t0}, 4, v{L}\nv_lshlrev_b32 v{t0}, 16, v{t0}\nv_and_b32 v{t1}, 15, v{L}\nv_lshl_add_u32 v{vXL}, v{t1}, 2, v{t0}")
            for r in range(128, 256): A(f"v_mov_b32 v{r}, 0")
        else:
            for n in range(4): A(f"s_lshr_b32 s{qPC[n]}, s{qPA[n]}, 6")
            A(f"s_lshl_b32 s3, s{qCB}, 18\ns_lshl_b32 s4, s{qMH}, 17\ns_add_u32 s3, s3, s4")
            A(f"v_lshrrev_b32 v{t0}, 4, v{L}\nv_and_b32 v{t1}, 7, v{L}\nv_xor_b32 v{t1}, v{t1}, v{t0}\nv_lshrrev_b32 v{t2}, 3, v{L}")
            A(f"v_lshlrev_b32 v{t2}, 11, v{t2}\nv_add_u32 v{t2}, s3, v{t2}")
            A(f"v_lshl_add_u32 v{t0}, v{t1}, 4, v{t2}\nv_xor_b32 v{t1}, 4, v{t1}\nv_lshl_add_u32 v{t1}, v{t1}, 4, v{t2}")
            for n in range(8): A(f"v_add_u32 v{vD2[n]}, {n*16384 - (n&3)*1024}, v{t1 if n&1 else t0}")
            A(f"s_mov_b32 s{qCb}, 0")
            srd(A, qC, 52, 53, 1024*1024*2)
            A(f"s_lshl_b32 s{qAb2}, s{qTB}, 1\ns_add_u32 s{qAb2}, s{qAb2}, s{qKH}\ns_lshl_b32 s{qAb2}, s{qAb2}, 17\ns_add_u32 s{qAb2}, s{qAb2}, {HS_OFF}")
            A(f"v_and_b32 v{t0}, 15, v{L}\nv_lshrrev_b32 v{t1}, 1, v{t0}\nv_lshrrev_b32 v{t2}, 4, v{L}\nv_xor_b32 v{t1}, v{t1}, v{t2}\nv_lshlrev_b32 v{t1}, 4, v{t1}")
            A(f"v_lshl_add_u32 v{t0}, v{t0}, 7, v{t1}\ns_mul_i32 s3, s{qKH}, {65536+8192}\nv_add_u32 v{vR2[0]}, s3, v{t0}\nv_xor_b32 v{vR2[1]}, 64, v{vR2[0]}")
            A(f"v_xor_b32 v{vR2[2]}, 8192, v{vR2[0]}\nv_xor_b32 v{vR2[3]}, 8192, v{vR2[1]}")
            A(f"s_lshl_b32 s{qXo}, s{qTB}, 5\ns_lshl_b32 s3, s{qCB}, 2\ns_add_u32 s{qXo}, s{qXo}, s3\ns_lshl_b32 s3, s{qKH}, 1\ns_add_u32 s{qXo}, s{qXo}, s3\ns_lshl_b32 s{qXo}, s{qXo}, 12")
            if XN_OFF: A(f"s_add_u32 s{qXo}, s{qXo}, {XN_OFF}")
            A(f"v_bfe_u32 v{t0}, v{L}, 1, 1\nv_lshlrev_b32 v{t0}, 8, v{t0}\nv_lshrrev_b32 v{t1}, 2, v{L}\nv_lshl_add_u32 v{t0}, v{t1}, 4, v{t0}")
            A(f"v_and_b32 v{t1}, 1, v{L}\nv_lshl_add_u32 v{t0}, v{t1}, 3, v{t0}\nv_add_u32 v{vXR}, s{qXL}, v{t0}")
            A(f"s_lshl_b32 s3, s{qCB}, 8\ns_lshl_b32 s4, s{qKH}, 7\ns_add_u32 s3, s3, s4\nv_and_b32 v{t0}, 15, v{L}\nv_lshl_add_u32 v{vXL}, v{t0}, 1, s3")
            A(f"v_add_u32 v{vXD}, s{qXL}, v{vA}\nv_xor_b32 v27, 0x4000, v{vXD}")
        A(f"s_add_u32 s66, s{qS}, {P_OFF - S_OFF}\ns_add_u32 s67, s{qFL}, {128*128}")
        A("s_waitcnt lgkmcnt(0)")
        if ffn: srd(A, qO, 44, 45, 2048*1024*2)
    cload = lambda v, s_: f"buffer_load_dword v{v}, off, s[{sWS}:{sWS+3}], s{s_} sc1"
    def wait_word(v, s_, target, uid, first_wait):
        A(f"s_mov_b32 s55, 0x40000\ns_waitcnt vmcnt({first_wait})")
        A(f"L_w{uid}:\nv_readfirstlane_b32 s3, v{v}\ns_cmp_ge_u32 s3, {target}\ns_cbranch_scc1 L_g{uid}\ns_sleep 1")
        A(cload(v, s_) + "\ns_waitcnt vmcnt(0)")
        A(f"s_sub_u32 s55, s55, 1\ns_cmp_lg_u32 s55, 0\ns_cbranch_scc1 L_w{uid}\nL_g{uid}:")
    sigS_addr = f"s_lshl_b32 s3, s2, 7\ns_add_u32 s3, s3, {CNT_S}"
    mload = lambda s_: f"buffer_load_dword v{vFL}, v{vFO}, s[{sWS}:{sWS+3}], s{s_} offen sc1"
    def wait_all(s_, uid):
        A(f"s_mov_b32 s55, 0x40000\ns_waitcnt vmcnt(0)")
        A(f"L_w{uid}:\nv_cmp_ne_u32 vcc, 1, v{vFL}\ns_cbranch_vccz L_g{uid}\ns_sleep 1")
        A(mload(s_) + "\ns_waitcnt vmcnt(0)")
        A(f"s_sub_u32 s55, s55, 1\ns_cmp_lg_u32 s55, 0\ns_cbranch_scc1 L_w{uid}\nL_g{uid}:")
    proa = []
    for t_ in range(-AD, 0): proa += a3(t_ + AD)

    def body(NP, NS, nm):
        NT = 2*NP + 2*NS
        NWI = 8 if NP == 8 else 4
        WB = 8448 if NP == 8 else 4224
        BOFF = 4*WB
        NCH = 16*NS
        def acc(j, i): return ('v', 32 + (j*4+i)*4) if j < 14 else ('a', ((j-14)*4+i)*4)
        def rd(dst, j, i, r):
            f, b = acc(j, i)
            return f"v_mov_b32 v{dst}, v{b+r}" if f == 'v' else f"v_accvgpr_read_b32 v{dst}, a{b+r}"
        jre = lambda q: 2*NP + q
        jim = lambda q: 2*NP + NS + q
        if NP == 8:
            A(f"v_bfe_u32 v{t0}, v{L}, 4, 1\nv_bfe_u32 v{t1}, v{L}, 5, 1\nv_lshlrev_b32 v{t0}, 2, v{t0}\nv_lshl_or_b32 v{t0}, v{t1}, 4, v{t0}\nv_and_b32 v{t1}, 15, v{L}")
        else:
            A(f"v_bfe_u32 v{t0}, v{L}, 3, 1\nv_bfe_u32 v{t1}, v{L}, 4, 1\nv_lshlrev_b32 v{t0}, 3, v{t0}\nv_lshl_or_b32 v{t0}, v{t1}, 2, v{t0}\nv_bfe_u32 v{t1}, v{L}, 5, 1\nv_lshl_or_b32 v{t0}, v{t1}, 4, v{t0}\nv_and_b32 v{t1}, 7, v{L}")
        A(f"v_mul_u32_u24 v{t0}, s7, v{t0}\nv_lshl_add_u32 v{t0}, v{t1}, 4, v{t0}\nv_add_u32 v{vWD[0]}, s6, v{t0}")
        for n in range(1, NWI): A(f"v_add_u32 v{vWD[n]}, {((n&3) + 8*(n>>2))*7168 - (n&3)*1056}, v{vWD[0]}")
        vBD = vWD[NWI:NWI+NS]
        A(f"s_mul_i32 s3, s5, {8*NS}\ns_add_u32 s3, s3, s{sCh}\ns_lshl_b32 s3, s3, 11\ns_lshl_b32 s4, s5, 2")
        A(f"v_lshrrev_b32 v{t0}, 4, v{L}\nv_and_b32 v{t1}, 7, v{L}\nv_xor_b32 v{t1}, v{t1}, v{t0}\nv_xor_b32 v{t1}, s4, v{t1}\nv_lshrrev_b32 v{t2}, 3, v{L}\nv_lshlrev_b32 v{t2}, 11, v{t2}\nv_add_u32 v{t2}, s3, v{t2}")
        A(f"v_lshl_add_u32 v{vBD[0]}, v{t1}, 4, v{t2}")
        if NS > 1:
            A(f"v_xor_b32 v{t1}, 64, v{vBD[0]}")
            for n in range(1, NS): A(f"v_add_u32 v{vBD[n]}, {n*16384 - (n&3)*1024}, v{t1 if n&1 else vBD[0]}")
        A(f"s_mul_i32 s{sM[0]}, s{sWV}, {WB}\ns_add_u32 s{sM[1]}, s{sM[0]}, {STAGE2}")
        A(f"s_mul_i32 s{sMB[0]}, s{sWV}, {NS*1024}\ns_add_u32 s{sMB[0]}, s{sMB[0]}, {BOFF}\ns_add_u32 s{sMB[1]}, s{sMB[0]}, {STAGE2}")
        srd(A, sX, 50, 51, XN_OFF + 2048*1024*2)
        def dma_ops(par, part):
            tag = f"d{par}"
            wl = lambda n: Op(f"buffer_load_dwordx4 v{vWD[n]}, s[{sW}:{sW+3}], s{sWoff} offen offset:{(n&3)*1056}{WNT} lds", 'vm', tag)
            bl = lambda n: Op(f"buffer_load_dwordx4 v{vBD[n]}, s[{sB}:{sB+3}], s{sBoff} offen offset:{(n&3)*1024}{WNT} lds", 'vm', tag + "e")
            o = []
            if part == 0:
                o.append(Op(f"s_mov_b32 m0, s{sM[par]}")); o += [wl(n) for n in range(4)]
            else:
                if NWI == 8:
                    o.append(Op(f"s_add_u32 m0, s{sM[par]}, {4*1056}")); o += [wl(n) for n in range(4, 8)]
                o.append(Op(f"s_mov_b32 m0, s{sMB[par]}"))
                o.append(Op(f"s_add_u32 s{sWoff}, s{sWoff}, {64*7168}"))
                o += [bl(n) for n in range(min(NS, 4))]
                if NS == 5:
                    o.append(Op(f"s_add_u32 m0, s{sMB[par]}, 4096")); o.append(bl(4))
                o.append(Op(f"s_add_u32 s{sBoff}, s{sBoff}, 128"))
                o.append(Op(f"s_add_u32 s{sM[par]}, s{sM[par]}, s{sDelta}"))
                o.append(Op(f"s_add_u32 s{sMB[par]}, s{sMB[par]}, s{sDelta}"))
            return o
        def x_ops(buf):
            o = []
            for i in range(4):
                r = XB + buf*16 + i*4
                o.append(Op(f"buffer_load_dwordx4 a[{r}:{r+3}], v{vX}, s[{sX}:{sX+3}], s{sXoff} offen offset:{i*1024} sc1", 'vm', f"x{buf}"))
            o.append(Op(f"s_add_u32 s{sXoff}, s{sXoff}, 4096"))
            return o
        if opt.get('prof'):
            A(f"s_lshl_b32 s100, s2, 2\ns_add_u32 s100, s100, s{sWV}\ns_lshl_b32 s100, s100, 6\ns_add_u32 s100, s100, {PROF_OFF}")
        A(f"s_waitcnt vmcnt({NE})")
        pstamp(A, opt, 0, 6)
        X = 64
        for r in range(16): A(f"v_lshlrev_b32 v{X+2*r}, 16, v{40+r}\nv_and_b32 v{X+2*r+1}, 0xffff0000, v{40+r}")
        def reduce(off, side):
            A("v_add_f32 v32, v32, v33\ns_nop 1\nv_add_f32_dpp v32, v32, v32 row_ror:8 row_mask:0xf bank_mask:0xf")
            A("v_mov_b32 v33, v32\ns_nop 1\nv_permlane16_swap_b32 v32, v33\ns_nop 1\nv_add_f32 v32, v32, v33")
            A("v_mov_b32 v33, v32\ns_nop 1\nv_permlane32_swap_b32 v32, v33\ns_nop 1\nv_add_f32 v32, v32, v33")
            A(f"ds_write_b32 v{vLW}, v32 offset:{off}")
            emit(side)
            A(f"s_waitcnt lgkmcnt(0)\ns_barrier\nds_read_b128 v[32:35], v{vLR} offset:{off}\ns_waitcnt lgkmcnt(0)")
            A("v_pk_add_f32 v[32:33], v[32:33], v[34:35]\nv_add_f32 v32, v32, v33")
        A(f"v_pk_add_f32 v[32:33], {pk(X)}, {pk(X+2)}\nv_pk_add_f32 v[34:35], {pk(X+4)}, {pk(X+6)}")
        for r in range(4, 16): A(f"v_pk_add_f32 {pk(32+2*(r&1))}, {pk(32+2*(r&1))}, {pk(X+2*r)}")
        A("v_pk_add_f32 v[32:33], v[32:33], v[34:35]")
        reduce(0, [])
        A(f"v_mul_f32 v38, {hx(f2u(-1.0/1024))}, v32")
        for r in range(16):
            t = 96 + 2*(r & 3); d = 32 + 2*(r & 1)
            A(f"v_pk_add_f32 {pk(t)}, {pk(X+2*r)}, v[38:39] op_sel_hi:[1,0]")
            A(f"v_pk_mul_f32 {pk(d)}, {pk(t)}, {pk(t)}" if r < 2 else f"v_pk_fma_f32 {pk(d)}, {pk(t)}, {pk(t)}, {pk(d)}")
        A("v_pk_add_f32 v[32:33], v[32:33], v[34:35]")
        reduce(128, [])
        A(f"v_mul_f32 v39, {hx(f2u(1.0/1024))}, v32\nv_cvt_pk_bf16_f32 v36, v38, v39\nv_lshlrev_b32 v38, 16, v36\nv_and_b32 v36, 0xffff0000, v36")
        A(f"v_add_f32 v36, {hx(f2u(1e-5))}, v36\nv_cvt_pk_bf16_f32 v36, v36, v36\nv_lshlrev_b32 v36, 16, v36")
        A("v_sqrt_f32 v36, v36\ns_nop 0\nv_cvt_pk_bf16_f32 v36, v36, v36\nv_lshlrev_b32 v36, 16, v36\nv_rcp_f32 v36, v36")
        for m in range(4):
            rs = range(4*m, 4*m+4)
            for r in rs: A(f"v_pk_add_f32 {pk(X+2*r)}, {pk(X+2*r)}, v[38:39] op_sel_hi:[1,0]")
            for r in rs: A(f"v_cvt_pk_bf16_f32 v{40+r}, v{X+2*r}, v{X+2*r+1}")
            for r in rs: A(f"v_lshlrev_b32 v{X+2*r}, 16, v{40+r}\nv_and_b32 v{X+2*r+1}, 0xffff0000, v{40+r}")
            for r in rs: A(f"v_pk_mul_f32 {pk(X+2*r)}, {pk(X+2*r)}, v[36:37] op_sel_hi:[1,0]")
            for r in rs: A(f"v_cvt_pk_bf16_f32 v{40+r}, v{X+2*r}, v{X+2*r+1}")
            A(f"s_mov_b32 s3, {m*32768}\nbuffer_store_dwordx4 v[{40+4*m}:{43+4*m}], v{vLS}, s[{sWS}:{sWS+3}], s3 offen sc1")
        A(f"v_and_b32 v{vLS}, 15, v0\nv_lshlrev_b32 v{vLS}, 2, v{vLS}\nglobal_load_dword v59, v{vLS}, s[48:49] sc1")
        c_hi = struct.unpack("<f", struct.pack("<f", 1/(2*math.pi)))[0]; c_lo = 1/(2*math.pi) - c_hi
        A(f"s_mov_b32 s3, {hx(f2u(LOG2E))}\ns_mov_b32 s4, {hx(f2u(c_hi))}\ns_mov_b32 s6, {hx(f2u(c_lo))}")
        emit(dma_ops(0, 0) + dma_ops(0, 1))
        A("s_waitcnt vmcnt(14)")
        lr, li, ld = 56, 57, 58
        la, lb, cr, ci = 64, 65, 66, 67
        dt, zr, zi, hi, lo, mag = range(68, 74)
        A(f"v_lshlrev_b32 v{lr}, 16, v{lr}\nv_lshlrev_b32 v{li}, 16, v{li}\nv_lshlrev_b32 v{ld}, 16, v{ld}")
        A(f"v_mul_f32 v{dt}, s3, v{ld}\nv_exp_f32 v{dt}, v{dt}\ns_nop 0\nv_cvt_pk_bf16_f32 v{dt}, v{dt}, v{dt}\nv_lshlrev_b32 v{dt}, 16, v{dt}")
        A(f"v_mul_f32 v{zr}, v{dt}, v{lr}\nv_mul_f32 v{zi}, v{dt}, v{li}")
        A(f"v_mul_f32 v{mag}, s3, v{zr}\nv_exp_f32 v{mag}, v{mag}")
        A(f"v_mul_f32 v{hi}, s4, v{zi}\nv_fma_f32 v{lo}, v{zi}, s4, -v{hi}\nv_fma_f32 v{lo}, v{zi}, s6, v{lo}")
        A(f"v_rndne_f32 v{la}, v{hi}\nv_sub_f32 v{hi}, v{hi}, v{la}\nv_add_f32 v{hi}, v{hi}, v{lo}")
        A(f"v_cos_f32 v{la}, v{hi}\nv_sin_f32 v{lb}, v{hi}\ns_nop 0\nv_mul_f32 v{la}, v{la}, v{mag}\nv_mul_f32 v{lb}, v{lb}, v{mag}")
        am1, den = dt, zr
        A(f"v_add_f32 v{am1}, -1.0, v{la}\nv_mul_f32 v{den}, v{lr}, v{lr}\nv_fmac_f32 v{den}, v{li}, v{li}\nv_rcp_f32 v{den}, v{den}")
        A(f"v_mul_f32 v{cr}, v{am1}, v{lr}\nv_fmac_f32 v{cr}, v{lb}, v{li}\nv_mul_f32 v{ci}, v{lb}, v{lr}\nv_fma_f32 v{ci}, -v{am1}, v{li}, v{ci}")
        A(f"v_mul_f32 v{cr}, v{cr}, v{den}\nv_mul_f32 v{ci}, v{ci}, v{den}")
        def cmul(d, a, b):
            A(f"v_pk_mul_f32 {pk(d)}, {pk(a)}, {pk(b)} op_sel_hi:[1,0]")
            A(f"v_pk_fma_f32 {pk(d)}, {pk(a)}, {pk(b)}, {pk(d)} op_sel:[1,1,0] op_sel_hi:[0,1,1] neg_lo:[0,1,0]")
        A(f"v_lshlrev_b32 v74, 1, v{vCH}\nv_add_u32 v74, {PB}, v74\nv_add_u32 v75, {PWL}, v{vCH}\nds_write_b128 v74, v[64:67]")
        cmul(76, 64, 64); cmul(78, 76, 76); cmul(76, 78, 78); cmul(78, 76, 76)
        A(f"v_mov_b32 v80, 1.0\nv_mov_b32 v81, 0\nds_write_b64 v75, v[80:81]\nds_write_b64 v75, v[78:79] offset:640")
        for k in range(2, 17):
            d = 80 + 2*(k % 4); p_ = 78 if k == 2 else 80 + 2*((k-1) % 4)
            cmul(d, p_, 78)
            if k < 16: A(f"ds_write_b64 v75, {pk(d)} offset:{k*640}")
        A(f"v_accvgpr_write_b32 a{PAR+30}, v78\nv_accvgpr_write_b32 a{PAR+31}, v79\nv_accvgpr_write_b32 a{PAR+32}, v80\nv_accvgpr_write_b32 a{PAR+33}, v81")
        A(f"s_mov_b32 s55, 0x40000\ns_waitcnt vmcnt(9)")
        A(f"L_wc{nm}:\nv_cmp_ne_u32 vcc, 1, v59\ns_cbranch_vccz L_gc{nm}\ns_sleep 1\nglobal_load_dword v59, v{vLS}, s[48:49] sc1\ns_waitcnt vmcnt(0)")
        A(f"s_sub_u32 s55, s55, 1\ns_cmp_lg_u32 s55, 0\ns_cbranch_scc1 L_wc{nm}\nL_gc{nm}:")
        A("s_waitcnt lgkmcnt(0)\ns_barrier")
        signal(A, sWV, sWS, f"s_lshl_b32 s3, s2, 7\ns_add_u32 s3, s3, {CNT_X}", 59, f"x{nm}")
        pstamp(A, opt, 0, 7)
        emit(dma_ops(1, 0) + dma_ops(1, 1) + dma_ops(0, 0))
        A(f"v_and_b32 v{t0}, 15, v{L}\nv_lshlrev_b32 v{t1}, 4, v{t0}\nv_add_u32 v{t1}, {PB}, v{t1}\nv_lshrrev_b32 v{t2}, 4, v0\nv_mul_u32_u24 v{t2}, 640, v{t2}\nv_lshl_add_u32 v{t2}, v{t0}, 3, v{t2}\nv_add_u32 v{t2}, {PWL}, v{t2}")
        for q in range(NS):
            pa = PAR + q*6
            A(f"ds_read_b128 a[{pa}:{pa+3}], v{t1} offset:{q*256}\nds_read_b64 a[{pa+4}:{pa+5}], v{t2} offset:{q*128}")
        for r in range(32, 256): A(f"v_mov_b32 v{r}, 0")
        A(f"v_and_b32 v{vLW}, 31, v0\nv_lshlrev_b32 v{vLW}, 7, v{vLW}\ns_lshl_b32 s58, s{sRB}, 12\ns_add_u32 s58, s58, {CNT_X}")
        xpoll = f"buffer_load_dword v{vLR}, v{vLW}, s[{sWS}:{sWS+3}], s58 offen sc1"
        A(xpoll)
        for r in range(64): A(f"v_accvgpr_write_b32 a{r}, 0")
        if NP == 8: A(f"v_bfe_u32 v{t0}, v{L}, 2, 3\nv_mul_u32_u24 v{t0}, 1056, v{t0}")
        else: A(f"v_bfe_u32 v{t0}, v{L}, 2, 2\nv_mul_u32_u24 v{t0}, 1056, v{t0}\nv_bfe_u32 v{t1}, v{L}, 4, 1\nv_lshl_add_u32 v{t0}, v{t1}, 7, v{t0}")
        A(f"v_bfe_u32 v{t1}, v{L}, 5, 1\nv_lshl_add_u32 v{t0}, v{t1}, 9, v{t0}\nv_and_b32 v{t1}, 3, v{L}\nv_lshl_add_u32 v{vRW[0]}, v{t1}, 3, v{t0}\nv_add_u32 v{vRW[1]}, {STAGE2}, v{vRW[0]}")
        A(f"v_and_b32 v{t0}, 15, v{L}\nv_lshrrev_b32 v{t1}, 1, v{t0}\nv_lshrrev_b32 v{t2}, 4, v{L}\nv_xor_b32 v{t1}, v{t1}, v{t2}\nv_lshlrev_b32 v{t1}, 4, v{t1}")
        A(f"v_lshl_add_u32 v{t0}, v{t0}, 7, v{t1}\nv_xor_b32 v{t1}, 64, v{t0}\nv_add_u32 v{vRB[0][0]}, {BOFF}, v{t0}\nv_add_u32 v{vRB[0][1]}, {BOFF}, v{t1}")
        A(f"v_add_u32 v{vRB[1][0]}, {STAGE2}, v{vRB[0][0]}\nv_add_u32 v{vRB[1][1]}, {STAGE2}, v{vRB[0][1]}")
        if PF:
            A(f"s_lshl_b32 s3, s2, 2\ns_add_u32 s3, s3, s{sWV}\ns_lshl_b32 s4, s3, 3\nv_and_b32 v{t0}, 7, v{L}\nv_add_lshl_u32 v{vP[0]}, v{t0}, s4, 7")
            A(f"s_lshl_b32 s3, s2, 1\ns_add_u32 s3, s3, s5\ns_lshl_b32 s3, s3, 2\nv_and_b32 v{t0}, 3, v{L}\nv_add_lshl_u32 v{vP[1]}, v{t0}, s3, 7")
        def frag_reads(j, par, kh, tag):
            d = WF + j*4
            if j < 2*NP:
                p, gu = j >> 1, j & 1
                return [Op(f"ds_read_b64_tr_b16 a[{d+2*h}:{d+2*h+1}], v{vRW[par]} offset:{gu*2*WB + kh*WB + h*256 + p*32}", 'lds', tag) for h in range(2)]
            return [Op(f"ds_read_b128 a[{d}:{d+3}], v{vRB[par][kh]} offset:{(j-2*NP)*2048}", 'lds', tag)]
        pfC = [Op(f"global_load_dword a236, v{vP[1]}, s[52:53]", 'vm', 'pf'), Op(f"v_add_u32 v{vP[1]}, {2048*128}, v{vP[1]}")]
        pfW = [Op(f"global_load_dword a236, v{vP[0]}, s[56:57]", 'vm', 'pf'), Op(f"v_add_u32 v{vP[0]}, {8192*128}, v{vP[0]}")]
        if opt.get('prof'):
            A(f"v_accvgpr_write_b32 a254, s94\nv_accvgpr_write_b32 a255, s95\ns_add_u32 s101, s100, 0x10000\nbuffer_store_dwordx2 a[254:255], off, s[20:23], s101")
            A("s_getreg_b32 s96, hwreg(HW_REG_XCC_ID)\ns_getreg_b32 s98, hwreg(HW_REG_HW_ID)\nv_accvgpr_write_b32 a254, s96\nv_accvgpr_write_b32 a255, s98\nbuffer_store_dwordx2 a[254:255], off, s[20:23], s100 offset:40")
        A("s_waitcnt vmcnt(14)\ns_barrier")
        for j in range(NT): emit(frag_reads(j, 0, 0, None))
        A(f"s_mov_b32 s55, 0x40000\ns_waitcnt vmcnt(0)")
        A(f"L_wx{nm}:\nv_cmp_ne_u32 vcc, 1, v{vLR}\ns_cbranch_vccz L_gx{nm}\ns_sleep 1\n{xpoll}\ns_waitcnt vmcnt(0)")
        A(f"s_sub_u32 s55, s55, 1\ns_cmp_lg_u32 s55, 0\ns_cbranch_scc1 L_wx{nm}\nL_gx{nm}:")
        pstamp(A, opt, 1, 1)
        emit(x_ops(0) + x_ops(1) + x_ops(2))
        if PF: emit(pfC)
        early3(nm, NP == 8)
        A(f"s_mov_b32 s{sDelta}, {hx(-2*STAGE2)}\ns_mov_b32 s{sTrip}, 0\ns_waitcnt vmcnt({1 if PF else 0}) lgkmcnt(0)")
        BARG = opt.get('barg', 3)
        def mfma(j, i, wreg, xreg, **kw):
            f, b = acc(j, i); c = f"{f}[{b}:{b+3}]"
            w = f"a[{wreg}:{wreg+3}]"; x = f"a[{xreg}:{xreg+3}]"
            return Op(f"v_mfma_f32_16x16x32_bf16 {c}, {w}, {x}, {c}" if j < 2*NP else f"v_mfma_f32_16x16x32_bf16 {c}, {x}, {w}, {c}", **kw)
        def trip(n):
            out = []
            for t in range(4):
                gs = 4*n + t
                mf = []
                for j in range(NT):
                    order = range(4) if j % 2 == 0 else range(3, -1, -1)
                    for k, i in enumerate(order):
                        mf.append(mfma(j, i, WF+j*4, XB+t*16+i*4, need_vm=(f"x{t}" if (j == 0 and k == 0) else None), need_lds=(f"f{j}" if k == 0 else None)))
                if t % 2 == 0: par, kh, firstm = t >> 1, 1, 0
                else: par, kh, firstm = ((t >> 1) + 1) % 2, 0, BARG*4 - 1
                fin = gs == 31
                rds = []
                if not fin:
                    for j in range(NT):
                        for o in frag_reads(j, par, kh, f"f{j}"): rds.append((max(j*4 + 3, firstm), o))
                vmo = []
                if gs + XD < 32: vmo += x_ops((t + XD) % 4)
                if (gs + 5) >> 1 < 16: vmo += dma_ops(((t + 5) >> 1) % 2, (t + 1) % 2)
                if PF and n < 7 and t == 1: vmo += pfW
                if PF and n < 7 and t == 3: vmo += pfC
                if gs == 29: vmo += [Op(f"v_accvgpr_read_b32 v{vD[k]}, a{STASH+k}") for k in range(8)]
                if gs == 30: vmo += [Op(o.text, o.kind, 'k3') for o in dma3(0, 0) + dma3(0, 1) + dma3(1, 0)]
                if gs == 31: vmo += [Op(o.text, o.kind, 'k3') for o in dma3(1, 1) + dma3(2, 0)]
                sp = 68.0 / max(1, len(vmo))
                vm = [(1 + int(k*sp), o) for k, o in enumerate(vmo)]
                misc = []
                if n != 7:
                    if t == 2: misc += [(40, Op(f"v_subrev_u32 v{r}, s{sDelta}, v{r}")) for r in (vRW[0], vRB[0][0], vRB[0][1])]
                    if t == 3: misc += [(2, Op(f"v_subrev_u32 v{r}, s{sDelta}, v{r}")) for r in (vRW[1], vRB[1][0], vRB[1][1])]
                    if t == 3: misc += [(60, Op(f"s_sub_u32 s{sDelta}, 0, s{sDelta}"))]
                slots = spread(72, [rds, vm, misc], per_gap=1)
                for m in range(72):
                    out.append(mf[m])
                    if t % 2 == 1 and m == firstm and not fin:
                        out.append(Op("s_waitcnt lgkmcnt(0)", 'lgkm0', need_vm=f"d{par}e"))
                        out.append(Op("s_barrier"))
                    out.extend(slots[m])
            return out
        b0, b6, b7 = trip(0), trip(6), trip(7)
        pstamp(A, opt, 1, 2)
        A(f".p2align 6\nL_k2_loop{nm}:"); put(resolve_loop(b0))
        A(f"s_add_u32 s{sTrip}, s{sTrip}, 1\ns_cmp_lt_u32 s{sTrip}, 6\ns_cbranch_scc1 L_k2_loop{nm}")
        put(resolve_seq(b0, b6))
        if opt.get('cpf', 1):
            code_prefetch(A, "L_k3_code", "L_text_end", 58, t0, "a237", opt.get("cpfn3", 11), "2" + nm)
            A(f"s_getpc_b64 s[58:59]\nL_pce{nm}:\ns_add_u32 s58, s58, L_k2_epi{nm}-L_pce{nm}\ns_addc_u32 s59, s59, 0\nv_lshlrev_b32 v{t0}, 6, v0\nglobal_load_dword a238, v{t0}, s[58:59]")
        put(resolve_seq(b6, b7))
        A(f"L_k2_epi{nm}:")
        pstamp(A, opt, 1, 3)
        LAM = [2 + 2*q for q in range(NS)]
        for q in range(NS): A(f"v_accvgpr_read_b32 v{LAM[q]}, a{PAR+q*6}\nv_accvgpr_read_b32 v{LAM[q]+1}, a{PAR+q*6+1}")
        def cfma(d, h, c):
            return [f"v_pk_fma_f32 {pk(d)}, {pk(h)}, {pk(c)}, {pk(d)} op_sel_hi:[1,0,1]",
                    f"v_pk_fma_f32 {pk(d)}, {pk(h)}, {pk(c)}, {pk(d)} op_sel:[1,1,0] op_sel_hi:[0,1,1] neg_lo:[0,1,0]"]
        A("s_nop 7")
        T = lambda q, n: 12 + 4*q + 2*(n & 1)
        for n in range(16):
            i, r = n >> 2, n & 3
            for q in range(NS): A(rd(T(q, n), jre(q), i, r) + "\n" + rd(T(q, n)+1, jim(q), i, r))
            if n > 0:
                for h in range(2):
                    for q in range(NS): A(cfma(T(q, n), T(q, n-1), LAM[q])[h])
        EL, PL, HL, EP = 45056, 45056 + 10240, 36864, 640
        vE = 1
        A(f"v_lshrrev_b32 v12, 4, v0\nv_mul_u32_u24 v12, {EP}, v12\nv_and_b32 v{vE}, 15, v0\nv_lshl_add_u32 v{vE}, v{vE}, 3, v12")
        for q in range(NS): A(f"ds_write_b64 v{vE}, {pk(T(q, 15))} offset:{EL + q*128}")
        A("s_waitcnt lgkmcnt(0)\ns_barrier")
        NXW = (NCH + 63) // 64
        NL2 = opt.get('l2pf', 0)
        if NL2:
            A(f"v_bfe_u32 v12, v0, 3, 2\nv_bfe_u32 v13, v0, 5, 1\nv_lshl_add_u32 v12, v13, 8, v12\nv_lshlrev_b32 v12, 11, v12\nv_and_b32 v13, 7, v0\nv_lshl_add_u32 v12, v13, 7, v12")
            A(f"s_mul_i32 s3, s{qKH}, 1792\ns_lshr_b32 s4, s2, 3\ns_lshl_b32 s4, s4, 3\ns_add_u32 s3, s3, s4\ns_lshl_b32 s4, s{qMH}, 2\ns_add_u32 s3, s3, s4\ns_add_u32 s3, s3, 512\ns_lshl_b32 s3, s3, 11\ns_and_b32 s4, s2, 1\ns_lshl_b32 s4, s4, 10\ns_add_u32 s3, s3, s4")
            A(f"buffer_load_dword a236, v12, s[{qB}:{qB+3}], s3 offen")
            if NL2 > 2: A(f"s_add_u32 s3, s3, {512*2048}\nbuffer_load_dword a236, v12, s[{qB}:{qB+3}], s3 offen")
            A(f"v_bfe_u32 v12, v0, 3, 3\nv_lshlrev_b32 v12, 11, v12\nv_lshl_add_u32 v12, v13, 7, v12")
            A(f"s_and_b32 s3, s2, 1\ns_lshl_b32 s3, s3, 9\ns_lshr_b32 s4, s2, 3\ns_lshl_b32 s4, s4, 4\ns_add_u32 s3, s3, s4\ns_lshl_b32 s4, s{qMH}, 3\ns_add_u32 s3, s3, s4\ns_lshl_b32 s3, s3, 11\nv_add_u32 v12, s3, v12")
            A(f"global_load_dword a237, v12, s[52:53]")
            if NL2 > 2: A(f"global_load_dword a237, v12, s[52:53] offset:1024")
        vC = 12
        A(f"v_min_u32 v{vC}, {NCH-1}, v0\nv_lshlrev_b32 v{vC}, 3, v{vC}")
        A(f"s_lshl_b32 s39, s{sRB}, 14\ns_lshl_b32 s3, s{sCh}, 4\ns_add_u32 s39, s39, s3\ns_add_u32 s39, s39, {EX_OFF}")
        A(f"s_cmp_ge_u32 s{sWV}, {NXW}\ns_cbranch_scc1 L_k2_nox1{nm}")
        for s_ in range(16): A(f"ds_read_b64 a[{WF+2*s_}:{WF+2*s_+1}], v{vC} offset:{EL + s_*EP}")
        A(f"v_accvgpr_read_b32 v14, a{PAR+30}\nv_accvgpr_read_b32 v15, a{PAR+31}")
        A(f"v_mov_b32 v16, 0\nv_mov_b32 v17, 0\nds_write_b64 v{vC}, v[16:17] offset:{PL}\ns_waitcnt lgkmcnt(0)")
        R = [16, 18, 20, 22]
        for s_ in range(16):
            p_ = R[s_ % 4]; c_ = R[(s_+1) % 4]
            A(f"v_accvgpr_read_b32 v{c_}, a{WF+2*s_}\nv_accvgpr_read_b32 v{c_+1}, a{WF+2*s_+1}")
            for x in cfma(c_, p_, 14): A(x)
            if s_ < 15: A(f"ds_write_b64 v{vC}, {pk(c_)} offset:{PL+(s_+1)*EP}")
        A(f"v_mov_b32 v24, v16\nv_mov_b32 v25, 1\nv_mov_b32 v26, v17\nv_mov_b32 v27, 1\nv_lshlrev_b32 v13, 1, v{vC}\ns_add_u32 s3, s39, {7*16384}")
        A(f"buffer_store_dwordx4 v[24:27], v13, s[{sWS}:{sWS+3}], s3 offen sc1")
        A(f"L_k2_nox1{nm}:")
        pstamp(A, opt, 1, 4)
        C1 = -2.0*math.sqrt(2/math.pi)*LOG2E; C2 = C1*0.044715
        A(f"s_mov_b32 s4, {hx(f2u(C1))}\ns_mov_b32 s6, {hx(f2u(C2))}\ns_mov_b32 s7, s6")
        vH = 30
        A(f"v_bfe_u32 v16, v0, 4, 1\nv_bfe_u32 v17, v0, 5, 1\nv_and_b32 v18, 15, v0\nv_lshlrev_b32 v{vH}, 10, v16\nv_lshl_add_u32 v{vH}, v17, 8, v{vH}\nv_lshl_add_u32 v{vH}, v18, 4, v{vH}")
        A(f"v_mov_b32 v16, s4\nv_lshlrev_b32 v13, 1, v12\nv_mov_b32 v31, v{vE}")
        vE = 31
        A(f"s_mul_i32 s40, s{sTB}, {112*4096}\ns_add_u32 s40, s40, {H_OFF}\ns_lshl_b32 s41, s{sCol}, 7\ns_add_u32 s40, s40, s41")
        for k in range(1, NP // 2): A(f"s_add_u32 s{40+k}, s40, {k*4096}")
        TMP = [18, 20, 22, 28]
        NB = 2*NP
        ER = 32
        eloads = []
        for d in range(7):
            eloads.append(f"s_add_u32 s3, s39, {d*16384}")
            eloads.append(f"buffer_load_dwordx4 v[{ER+4*d}:{ER+4*d+3}], v13, s[{sWS}:{sWS+3}], s3 offen sc1")
        ESLOT = NB - opt.get('eslot', 4)
        nst_after = 0
        for b in range(NB):
            p, i0 = b >> 1, (b & 1)*2
            if 2*p < 14:
                G = acc(2*p, i0)[1]; U = acc(2*p+1, i0)[1]
            else:
                G = acc(4, i0)[1]; U = acc(5, i0)[1]
                for h in range(8): A(rd(G+h, 2*p, i0 + (h >> 2), h & 3) + "\n" + rd(U+h, 2*p+1, i0 + (h >> 2), h & 3))
            if b == ESLOT:
                A(f"s_cmp_ge_u32 s{sWV}, {NXW}\ns_cbranch_scc1 L_k2_noel{nm}")
                for x in eloads: A(x)
                A(f"L_k2_noel{nm}:")
            for h in range(4): A(f"v_pk_mul_f32 {pk(TMP[h])}, {pk(G+2*h)}, {pk(G+2*h)}")
            for h in range(4): A(f"v_pk_mul_f32 {pk(U+2*h)}, {pk(U+2*h)}, {pk(G+2*h)}")
            for h in range(4): A(f"v_pk_fma_f32 {pk(TMP[h])}, {pk(TMP[h])}, s[6:7], v[16:17] op_sel_hi:[1,1,0]")
            for h in range(4): A(f"v_pk_mul_f32 {pk(G+2*h)}, {pk(G+2*h)}, {pk(TMP[h])}")
            for h in range(8): A(f"v_exp_f32 v{G+h}, v{G+h}")
            for h in range(4): A(f"v_pk_add_f32 {pk(G+2*h)}, {pk(G+2*h)}, 1.0 op_sel_hi:[1,0]")
            for h in range(8): A(f"v_rcp_f32 v{G+h}, v{G+h}")
            for h in range(4): A(f"v_pk_mul_f32 {pk(U+2*h)}, {pk(U+2*h)}, {pk(G+2*h)}")
            for h in (0, 2, 1, 3): A(f"v_cvt_pk_bf16_f32 v{G+h}, v{U+2*h}, v{U+2*h+1}")
            A(f"v_permlane16_swap_b32 v{G}, v{G+2}\ns_nop 0\nv_permlane16_swap_b32 v{G+1}, v{G+3}")
            A(f"buffer_store_dwordx4 v[{G}:{G+3}], v{vH}, s[{sWS}:{sWS+3}], s{40+(p>>1)} offen offset:{(p&1)*512 + i0*1024}{SC}")
            if b >= ESLOT: nst_after += 1
        pstamp(A, opt, 1, 5)
        A(f"s_cmp_ge_u32 s{sWV}, {NXW}\ns_cbranch_scc1 L_k2_nox2{nm}")
        A(f"s_mov_b32 s55, 0x40000\ns_waitcnt vmcnt({nst_after})")
        A(f"L_k2_poll{nm}:\nv_mov_b32 v18, 1")
        for d in range(7): A(f"v_min3_u32 v18, v18, v{ER+4*d+1}, v{ER+4*d+3}")
        A(f"v_cmp_ne_u32 vcc, 1, v18\ns_cbranch_vccz L_k2_got{nm}\ns_sleep 1")
        for x in eloads: A(x)
        A(f"s_waitcnt vmcnt(0)\ns_sub_u32 s55, s55, 1\ns_cmp_lg_u32 s55, 0\ns_cbranch_scc1 L_k2_poll{nm}\nL_k2_got{nm}:")
        A(f"v_accvgpr_read_b32 v18, a{PAR+32}\nv_accvgpr_read_b32 v19, a{PAR+33}")
        for d in range(7): A(f"v_mov_b32 v{ER+4*d+1}, v{ER+4*d+2}")
        for d in range(1, 7):
            for x in cfma(ER+4*d, ER+4*(d-1), 18): A(x)
        A(f"ds_write_b64 v{vC}, {pk(ER+24)} offset:{HL}\ns_waitcnt lgkmcnt(0)")
        A(f"L_k2_nox2{nm}:")

        def finish(ffn, u):
            if ffn: setup3(True)
            A("s_waitcnt vmcnt(0)\ns_barrier")
            signal(A, sWV, sWS, f"s_lshl_b32 s3, s2, 7\ns_add_u32 s3, s3, {CNT_H}", 28, f"h{u}")
            pstamp(A, opt, 1, 6)
            CY, HH, PW_, CF, LM = 32, 44, 56, 68, 80
            vW, vRd = 28, 29
            A("v_and_b32 v90, 15, v0\nv_lshlrev_b32 v90, 3, v90")
            for q in range(NS):
                A(f"ds_read_b64 {pk(CY+2*q)}, v{vE} offset:{PL+q*128}\nds_read_b64 {pk(HH+2*q)}, v90 offset:{HL+q*128}")
            for q in range(NS):
                for h in range(2): A(f"v_accvgpr_read_b32 v{PW_+2*q+h}, a{PAR+q*6+4+h}\nv_accvgpr_read_b32 v{CF+2*q+h}, a{PAR+q*6+2+h}\nv_accvgpr_read_b32 v{LM+2*q+h}, a{PAR+q*6+h}")
            TB0 = 110592; TQ = 32*144
            A(f"s_mul_i32 s3, s{sWV}, {2*TQ}\ns_add_u32 s3, s3, {TB0}")
            A(f"v_and_b32 v{vW}, 15, v0\nv_mul_u32_u24 v{vW}, 144, v{vW}\nv_bfe_u32 v91, v0, 4, 2\nv_lshl_add_u32 v{vW}, v91, 5, v{vW}\nv_add_u32 v{vW}, s3, v{vW}")
            A(f"v_bfe_u32 v{vRd}, v0, 5, 1\nv_bfe_u32 v91, v0, 2, 2\nv_lshl_add_u32 v{vRd}, v{vRd}, 3, v91\nv_mul_u32_u24 v{vRd}, 144, v{vRd}\nv_and_b32 v91, 3, v0\nv_lshl_add_u32 v{vRd}, v91, 5, v{vRd}\nv_bfe_u32 v91, v0, 4, 1\nv_lshl_add_u32 v{vRd}, v91, 3, v{vRd}\nv_add_u32 v{vRd}, s3, v{vRd}")
            A(f"s_lshl_b32 s40, s{sTB}, 18\ns_add_u32 s40, s40, {HS_OFF}\ns_lshr_b32 s41, s{sCh}, 4")
            A("s_waitcnt lgkmcnt(0)")
            for h in range(2):
                for q in range(NS): A(cfma(CY+2*q, HH+2*q, PW_+2*q)[h])
            if NS == 1: ST, O0, OB, LD0, LB = 44, 96, 0, 112, 0
            else: ST, O0, OB, LD0, LB = 44, 96, 32, 112, 32
            def calc(q):
                OR_, OI_ = O0 + (q & 1)*OB, O0 + 8 + (q & 1)*OB
                o = []
                for n in range(16):
                    i, r = n >> 2, n & 3
                    c_ = ST + 2*(n & 1); p_ = CY + 2*q if n == 0 else ST + 2*((n-1) & 1); o_ = ST + 4 + 2*(n & 1)
                    o += [rd(c_, jre(q), i, r), rd(c_+1, jim(q), i, r)] + cfma(c_, p_, LM+2*q)
                    o += [f"v_pk_mul_f32 {pk(o_)}, {pk(c_)}, {pk(CF+2*q)} op_sel_hi:[1,0]", cfma(o_, c_, CF+2*q)[1]]
                    if n & 1: o += [f"v_cvt_pk_bf16_f32 v{OR_+(n>>1)}, v{ST+4}, v{ST+6}", f"v_cvt_pk_bf16_f32 v{OI_+(n>>1)}, v{ST+5}, v{ST+7}"]
                return o
            def wr(q):
                o = []
                for part in range(2):
                    b = O0 + 8*part + (q & 1)*OB; off = (q & 1)*TQ + part*16*144
                    o += [f"ds_write_b128 v{vW}, v[{b}:{b+3}] offset:{off}", f"ds_write_b128 v{vW}, v[{b+4}:{b+7}] offset:{off+16}"]
                for part in range(2):
                    for k in range(2):
                        d = LD0 + (q & 1)*LB + (part*2+k)*4
                        o += [f"ds_read_b64_tr_b16 v[{d+2*h}:{d+2*h+1}], v{vRd} offset:{(q & 1)*TQ + (part*16 + 4*h)*144 + k*16}" for h in range(2)]
                return o
            def st(q):
                o = [f"s_add_u32 s42, s41, {q}\ns_lshr_b32 s43, s42, 1\ns_lshl_b32 s43, s43, 12\ns_and_b32 s42, s42, 1\ns_lshl_b32 s42, s42, 9\ns_add_u32 s43, s43, s42\ns_add_u32 s43, s43, s40\ns_add_u32 s42, s43, {32*4096}\ns_waitcnt lgkmcnt(0)"]
                for part in range(2):
                    for k in range(2):
                        d = LD0 + (q & 1)*LB + (part*2+k)*4
                        o.append(f"buffer_store_dwordx4 v[{d}:{d+3}], v{vH}, s[{sWS}:{sWS+3}], s{43-part} offen offset:{k*2048}{SC}")
                return o
            for q in range(NS + 1):
                c = calc(q) if q < NS else []
                side = (wr(q-1) + st(q-1)) if q > 0 else []
                step = max(1, len(c) // max(1, len(side)))
                k = 0
                for n_, x in enumerate(c):
                    A(x)
                    if side and n_ % step == step - 1 and k < len(side): A(side[k]); k += 1
                for x in side[k:]: A(x)
            pstamp(A, opt, 1, 7)
            pstamp(A, opt, 2, 0)
            if ffn:
                A("s_branch L_k3_ffn")
            else:
                A("s_branch L_k3_ssm")
        if NP == 8:
            A(f"s_cmp_eq_u32 s{qRole}, 0\ns_cbranch_scc1 L_finAs")
            finish(True, "Af")
            A("L_finAs:")
            finish(False, "As")
        else:
            finish(False, "B")
    body(8, 1, "A")
    A("L_k2_B:")
    body(4, 5, "B")

    A("L_k3_code:")
    def role(ffn):
        nm = "ffn" if ffn else "ssm"
        A(f"L_k3_{nm}:")
        def frag_reads(j, st, hk, f):
            d = BF + j*4
            if f: return [Op(f"ds_read_b64_tr_b16 a[{d+2*h}:{d+2*h+1}], v{vR[j]} offset:{st*16384 + hk*8192 + h*1024}", 'lds', f"f{j}") for h in range(2)]
            return [Op(f"ds_read_b128 a[{d}:{d+3}], v{vR2[(j>>2)*2 + hk]} offset:{st*16384 + (j&3)*2048}", 'lds', f"f{j}")]
        if not ffn: setup3(False)
        A(f"v_and_b32 v{vFO}, 31, v0\nv_lshlrev_b32 v{vFO}, 7, v{vFO}")
        A(mload(qCnt))
        for j in range(8): emit(frag_reads(j, 0, 0, True))
        wait_all(qCnt, "ch" + nm)
        emit(proa)
        pstamp(A, opt, 2, 1)
        A(f"s_mov_b32 s{sTrip}, 0\ns_barrier\ns_waitcnt vmcnt(0) lgkmcnt(0)")
        signal(A, sWV, sWS, sigS_addr, t0, "s" + nm)
        if ffn:
            extra = []
            for n in range(8):
                extra += [Op(f"s_add_u32 m0, s{qXL}, {n*1024}"), Op(f"s_add_u32 s3, s{qXo}, {n*16384}"),
                          Op(f"buffer_load_dwordx4 v{vXD}, s[{qO}:{qO+3}], s3 offen lds", 'vm', 'e')]
            for k in range(16):
                if k % 4 == 0 and k: extra.append(Op("s_add_u32 s66, s66, 4096"))
                extra.append(Op(f"buffer_load_dwordx4 v[{SR+k*4}:{SR+k*4+3}], v{vA}, s[{sWS}:{sWS+3}], s66 offen offset:{(k&3)*1024} sc1", 'vm', 'e'))
        else:
            extra = []
            for h in range(2):
                extra.append(Op(f"s_add_u32 m0, s{qXL}, {h*4096}"))
                if h: extra.append(Op(f"s_add_u32 s{qXo}, s{qXo}, 4096"))
                for n in range(4): extra.append(Op(f"buffer_load_dwordx4 v{vA}, s[{sWS}:{sWS+3}], s{qXo} offen offset:{n*1024} sc1 lds", 'vm', 'e'))
            for m in range(4): extra.append(Op(f"global_load_ushort v{28+m}, v{vXL}, s[44:45] offset:{m*32}", 'vm', 'e'))
        BARG = opt.get('barg3', 2)
        def trip(cur, nxt, kind):
            body = []
            ex = list(extra) if kind == 'last' else []
            for t in range(8):
                mf = []
                for j in range(8):
                    order = range(4) if j % 2 == 0 else range(3, -1, -1)
                    for n, i in enumerate(order):
                        if kind == 'F': c = f"v[{64+(j*4+i)*4}:{64+(j*4+i)*4+3}]" if j < 4 else f"a[{160+((j-4)*4+i)*4}:{160+((j-4)*4+i)*4+3}]"
                        else: c = f"v[{acc3(j,i)}:{acc3(j,i)+3}]"
                        cin = "0" if (kind in ('F', 'S0') and t == 0) else c
                        mf.append(Op(f"v_mfma_f32_16x16x32_bf16 {c}, a[{AB+t*16+i*4}:{AB+t*16+i*4+3}], a[{BF+j*4}:{BF+j*4+3}], {cin}",
                                     need_vm=(f"x{t}" if (j == 0 and n == 0) else None), need_lds=(f"f{j}" if n == 0 else None)))
                vmo = []
                if kind == 'F' and t + AD == 8:
                    vmo.append(Op(f"s_mov_b32 s55, 0x40000\nL_wcs:\nv_cmp_ne_u32 vcc, 1, v{vFL}\ns_cbranch_vccnz L_k3_spin\nL_gcs:", need_vm='cs'))
                if kind == 'S0' and t >= 4:
                    if t < 7: vmo += a3(AD + 4 + 2*(t-4)) + a3(AD + 5 + 2*(t-4))
                elif kind == 'S1' and t < 2: pass
                elif t + AD < 8 or nxt is not None: vmo += a3(t + AD, switch=(kind == 'F'))
                if kind == 'S0' and t == 7:
                    for k in range(16):
                        if k % 4 == 0 and k: vmo.append(Op("s_add_u32 s66, s66, 4096"))
                        vmo.append(Op(f"buffer_store_dwordx4 v[{64+4*k}:{67+4*k}], v{vA}, s[{sWS}:{sWS+3}], s66 offen offset:{(k&3)*1024} sc1", 'vm', 'ps'))
                sg = (t + 5) >> 1
                if sg < 4: vmo += dma3(sg, (t + 1) % 2, cur)
                elif nxt is not None: vmo += dma3(sg % 4, (t + 1) % 2, nxt)
                if kind == 'F' and t + AD == 6: vmo.append(Op(mload(qCnt2), 'vm', 'cs'))
                if ffn and kind == 'loop' and t == 4: vmo.append(Op(cload(vFL, 67), 'vm', 'fl'))
                if kind == 'last':
                    nv = sum(1 for o in vmo if o.kind == 'vm')
                    while ex and nv < 8 and t >= 3:
                        o = ex.pop(0); vmo.append(o); nv += o.kind == 'vm'
                    if ffn and t == 7: vmo.append(Op(cload(vFL, qFL), 'vm', 'fl'))
                fin = nxt is None and t == 7
                if t % 2 == 0: st, hk, first = t >> 1, 1, 0
                else: st, hk, first = ((t >> 1) + 1) % 4, 0, BARG*4 - 1
                rd = []
                if not fin:
                    for j in range(8):
                        for o in frag_reads(j, st, hk, nxt if t == 7 else cur): rd.append((max(j*4 + 3, first), o))
                sp = 30.0 / max(1, len(vmo))
                vm = [(int(k*sp), o) for k, o in enumerate(vmo)]
                px = []
                if kind == 'S0':
                    if t in (0, 4):
                        r_ = t >> 2
                        px = [(6 + 3*k, Op(f"ds_write_b128 v{vXD}, a[{160+32*r_+4*k}:{160+32*r_+4*k+3}] offset:{k*1024}", 'lds', 'pw')) for k in range(8)]
                    if t in (1, 2, 5, 6):
                        r_ = t >> 2; k0 = 4*((t - 1) & 1); base = first + 1
                        px = [(base + k, Op(f"ds_read_b128 v[{44+4*k}:{47+4*k}], v27 offset:{(k0+k)*1024}", 'lds', f"pr{k}")) for k in range(4)]
                        for k in range(4):
                            y = 64 + (8*r_ + k0 + k)*4
                            e = base + 9 + 3*k + (k if t % 2 == 0 else 0)
                            px.append((e, Op(f"v_pk_add_f32 {pk(y)}, {pk(y)}, {pk(44+4*k)}\nv_pk_add_f32 {pk(y+2)}, {pk(y+2)}, {pk(46+4*k)}", need_lds=f"pr{k}")))
                slots = spread(32, [rd, vm], per_gap=1)
                slots2 = spread(32, [px], per_gap=1)
                for m in range(32):
                    body.append(mf[m])
                    if t % 2 == 1 and m == first and not fin:
                        body.append(Op("s_waitcnt lgkmcnt(0)", 'lgkm0', need_vm=f"d{st}"))
                        body.append(Op("s_barrier"))
                        if kind == 'S1' and t == 5:
                            body.append(Op(f"s_cmp_eq_u32 s{sWV}, 0\ns_cbranch_scc1 L_k3_sig\nL_k3_sigret:"))
                    body.extend(slots[m]); body.extend(slots2[m])
            assert not ex, len(ex)
            return body
        loop = trip(ffn, ffn, 'loop'); fin = trip(ffn, None, 'last')
        pstamp(A, opt, 2, 2)
        if not ffn:
            tF = trip(True, False, 'F'); tS = trip(False, False, 'S0')
            put(resolve_seq(trip(True, True, 'x'), tF, lgkm_slack=4))
            pstamp(A, opt, 0, 2)
            put(resolve_seq(tF, tS, lgkm_slack=4))
            pstamp(A, opt, 0, 3)
            tS1 = trip(False, False, 'S1')
            put(resolve_seq(tS, tS1, lgkm_slack=4))
            put(resolve_seq(tS1, loop, lgkm_slack=4))
        else:
            A(f".p2align 6\nL_k3_{nm}_loop:")
            put(resolve_loop(loop, lgkm_slack=4))
            A(f"s_add_u32 s{sTrip}, s{sTrip}, 1\ns_cmp_lt_u32 s{sTrip}, 5\ns_cbranch_scc1 L_k3_{nm}_loop")
        if ffn:
            nafter = 0
            for o in reversed(loop):
                if o.tag == 'fl': break
                nafter += o.kind == 'vm'
            wait_word(vFL, 67, 1, "fp", nafter)
        pstamp(A, opt, 0, 4)
        if opt.get('cpf', 1):
            A(f"s_getpc_b64 s[58:59]\nL_pc3{nm}:\ns_add_u32 s58, s58, L_k3_epi{nm}-L_pc3{nm}\ns_addc_u32 s59, s59, 0\nv_lshlrev_b32 v{t0}, 5, v0\nv_min_u32 v{t0}, L_text_end-L_k3_epi{nm}-4, v{t0}\nglobal_load_dword a238, v{t0}, s[58:59]")
        put(resolve_seq(loop, fin, lgkm_slack=4))
        A(f"L_k3_epi{nm}:")
        pstamp(A, opt, 2, 3)
        A(f"s_lshl_b32 s3, s{qKH}, 16\ns_lshl_b32 s4, s{qMH}, 14\ns_add_u32 s3, s3, s4\nv_add_u32 v2, s3, v{vA}\nv_xor_b32 v3, 0x10000, v2")
        XR = 32
        E = acc3(4, 0)
        def sloads():
            for k in range(16):
                if k % 4 == 0 and k: A(f"s_add_u32 s{qS}, s{qS}, 4096")
                A(f"buffer_load_dwordx4 v[{SR+k*4}:{SR+k*4+3}], v{vA}, s[{sWS}:{sWS+3}], s{qS} offen offset:{(k&3)*1024} sc1")
        A("s_nop 4")
        for k in range(16):
            r = E + k*4
            A(f"ds_write_b128 v2, v[{r}:{r+3}] offset:{k*1024}")
        A("s_waitcnt vmcnt(0)")
        for k in range(16):
            m, i = k >> 2, k & 3
            off = (i*512 + m*32) if ffn else ((m >> 1)*4096 + i*1024 + (m & 1)*512)
            A(f"ds_read_b64_tr_b16 v[{XR+2*k}:{XR+2*k+1}], v{vXR} offset:{off}")
        if ffn:
            for k in range(32): A(f"v_pk_add_f32 {pk(ACC+2*k)}, {pk(ACC+2*k)}, {pk(SR+2*k)}")
            A(f"v_readfirstlane_b32 s54, v{vFL}\ns_cmp_eq_u32 s54, 0\ns_cbranch_scc1 L_k3_late")
            sloads()
            A("L_k3_late:")
        A("s_waitcnt lgkmcnt(0)\ns_barrier")
        pstamp(A, opt, 2, 4)
        for k in range(16): A(f"ds_read_b128 v[{E+k*4}:{E+k*4+3}], v3 offset:{k*1024}")
        if not ffn: pstamp(A, opt, 2, 5)
        if ffn:
            srd(A, qO, 46, 47, 2048*1024*4)
            A(f"s_mov_b32 s4, {hx(f2u(-LOG2E))}\ns_mov_b32 s5, s4\ns_lshl_b32 s{qXo}, s{qXo}, 1")
            for r in range(16): A(f"s_add_u32 s{27+r}, s{qXo}, {r*4096}")
            KS = opt.get('ks', 6)
            def gate(k):
                y = ACC + k*4; e = E + k*4; xr = XR + 2*k
                o = [f"s_waitcnt lgkmcnt({15-k})"]
                o += [f"v_pk_add_f32 {pk(y+h)}, {pk(y+h)}, {pk(e+h)}" for h in (0, 2)]
                o += [f"v_pk_mul_f32 {pk(e+h)}, {pk(y+h)}, s[4:5]" for h in (0, 2)]
                o += [f"v_exp_f32 v{e+h}, v{e+h}" for h in range(4)] + ["s_nop 0"]
                o += [f"v_pk_add_f32 {pk(e+h)}, {pk(e+h)}, 1.0 op_sel_hi:[1,0]" for h in (0, 2)]
                o += [f"v_rcp_f32 v{e+h}, v{e+h}" for h in range(4)] + ["s_nop 0"]
                o += [f"v_pk_mul_f32 {pk(y+h)}, {pk(y+h)}, {pk(e+h)}" for h in (0, 2)]
                o += [f"v_lshlrev_b32 v{e}, 16, v{xr}", f"v_and_b32 v{e+1}, 0xffff0000, v{xr}", f"v_lshlrev_b32 v{e+2}, 16, v{xr+1}", f"v_and_b32 v{e+3}, 0xffff0000, v{xr+1}"]
                return o
            def outp(k):
                m, i = k >> 2, k & 3
                y = ACC + k*4; e = E + k*4; s_ = SR + k*4
                o = [f"s_waitcnt vmcnt({min(63, 15-k+4*k)})\n" + "\n".join(f"v_pk_fma_f32 {pk(e+h)}, {pk(y+h)}, {pk(s_+h)}, {pk(e+h)}" for h in (0, 2))]
                o += [f"buffer_store_dword v{e+r}, v{vXL}, s[{qO}:{qO+3}], s{27+4*i+r} offen offset:{m*64}{OSC}" for r in range(4)]
                return o
            A(cload(vFL, qFL))
            for k in range(KS - 3):
                for x in gate(k): A(x)
            pstamp(A, opt, 2, 5)
            A("s_cmp_lg_u32 s54, 0\ns_cbranch_scc1 L_k3_have")
            wait_word(vFL, qFL, 1, "fs", 0)
            sloads()
            A("L_k3_have:")
            for k in range(KS - 3, KS):
                for x in gate(k): A(x)
            gs = [(k, x) for k in range(KS, 16) for x in gate(k)]
            os_ = [(k, x) for k in range(16) for x in outp(k)]
            oi = 0
            for n_, (k, x) in enumerate(gs):
                A(x)
                if n_ % 3 == 2 and oi < len(os_) and os_[oi][0] < k: A(os_[oi][1]); oi += 1
            for k, x in os_[oi:]: A(x)
            pstamp(A, opt, 2, 6)
            if opt.get('prof'): A("s_waitcnt vmcnt(0)")
            pstamp(A, opt, 2, 7)
            A("s_endpgm")
        else:
            A(f"s_cmp_eq_u32 s{qKH}, 0\ns_cselect_b32 s4, 2.0, -2.0\ns_mov_b32 s5, s4")
            for k in range(16):
                m, i = k >> 2, k & 3
                y = ACC + k*4; e = E + k*4; xr = XR + 2*k
                if i == 0: A(f"v_lshlrev_b32 v10, 16, v{28+m}")
                A(f"v_lshlrev_b32 v4, 16, v{xr}\nv_and_b32 v5, 0xffff0000, v{xr}\nv_lshlrev_b32 v6, 16, v{xr+1}\nv_and_b32 v7, 0xffff0000, v{xr+1}")
                A("v_pk_mul_f32 v[4:5], v[4:5], v[10:11] op_sel_hi:[1,0]\nv_pk_mul_f32 v[6:7], v[6:7], v[10:11] op_sel_hi:[1,0]")
                A("v_cvt_pk_bf16_f32 v12, v4, v5\nv_cvt_pk_bf16_f32 v13, v6, v7")
                A("v_lshlrev_b32 v4, 16, v12\nv_and_b32 v5, 0xffff0000, v12\nv_lshlrev_b32 v6, 16, v13\nv_and_b32 v7, 0xffff0000, v13")
                A(f"s_waitcnt lgkmcnt({15-k})")
                for h in (0, 2): A(f"v_pk_add_f32 {pk(y+h)}, {pk(y+h)}, {pk(e+h)} neg_lo:[0,1] neg_hi:[0,1]")
                for h in (0, 2): A(f"v_pk_fma_f32 {pk(y+h)}, {pk(y+h)}, s[4:5], {pk(4+h)}")
                if k % 4 == 0 and k: A(f"s_add_u32 s{qS}, s{qS}, 4096")
                A(f"buffer_store_dwordx4 v[{y}:{y+3}], v{vA}, s[{sWS}:{sWS+3}], s{qS} offen offset:{(k&3)*1024} sc1")
            pstamp(A, opt, 2, 6)
            A("s_waitcnt vmcnt(0)\ns_barrier")
            signal(A, sWV, sWS, f"s_mov_b32 s3, s{qFL}", 2, "fl")
            pstamp(A, opt, 2, 7)
            A("s_endpgm")
            A("L_k3_sig:")
            signal(A, sWV, sWS, "s_mov_b32 s3, s67", t0, "pf")
            A("s_branch L_k3_sigret")
            A("L_k3_spin:\ns_sleep 1\n" + mload(qCnt2) + "\ns_waitcnt vmcnt(0)\ns_sub_u32 s55, s55, 1\ns_cmp_lg_u32 s55, 0\ns_cbranch_scc1 L_wcs\ns_branch L_gcs")
    role(True)
    role(False)
    A("L_end:\ns_endpgm")
    return kernel_desc("recurrent_scan__ssm_conv_s5__glu_gated_geglu__prompt_kernel", 512, 256, 102)
```

```python
from gen import *

def pstamp(A, opt, k, n, early=False):
    if not opt.get('prof'): return
    A("s_memtime s[96:97]\ns_memrealtime s[98:99]\ns_waitcnt lgkmcnt(0)")
    if early: A("s_mov_b32 s94, s96\ns_mov_b32 s95, s98"); return
    A(f"v_accvgpr_write_b32 a254, s96\nv_accvgpr_write_b32 a255, s98\ns_add_u32 s101, s100, {k*0x10000}\nbuffer_store_dwordx2 a[254:255], off, s[20:23], s101 offset:{n*8}")

def gen_main(A, opt):
    kernel_head(A, "recurrent_scan__ssm_conv_s5__glu_gated_geglu__prompt_kernel")
    pk = lambda r: f"v[{r}:{r+1}]"
    WSZ = WS_SIZE if opt.get('prof') else WSB + 0x2300000 + 0x800000
    WF = 64; XB = 136; PAR = 200; STASH = 240
    vWD = list(range(1, 10)); vX = 10
    vRW = [11, 12]; vRB = [[13, 14], [15, 16]]
    L = 18; t0, t1, t2, t3 = 19, 20, 21, 22
    vP = [23, 24]
    sW, sB, sX, sWS = 8, 12, 16, 20
    sRB, sU, sWV = 24, 25, 26
    sWoff, sBoff, sXoff = 27, 28, 29
    sM = [30, 31]; sMB = [32, 33]
    sDelta, sTrip, sTB, sCol, sCh = 34, 35, 36, 37, 38
    XD = 3
    WNT = " nt" if opt.get('wnt', 1) else ""
    SC = " sc1"
    PF = opt.get('pft', 9) == 9
    ACC = 128
    acc3 = lambda j, i: ACC + (j*4+i)*4
    BF = 0; AB = 32
    AD = opt.get('ad3', 2)
    OSC = ["", " sc1", " nt"][opt.get('osc', 1)]
    vD = list(range(1, 9)); vA = 9; vR = list(range(10, 18))
    vXL, vXD, vXR, vFL = 23, 24, 25, 26
    vSW, vSR, vNR, vDK = 20, 21, 22, 27; qXx = 39
    SR = 64; XLDS = 131072
    qRB, qCB, qKH, qMH, qRole, qTB = 60, 61, 62, 63, 64, 65
    qB = 68; qPB = [72, 73, 74, 75]; qM, qBb, qBoff, qRho = 76, 77, 78, 79
    qA, qO, qC = 20, 12, 8
    vD2 = list(range(32, 40)); vR2 = list(range(40, 44)); qPC = [16, 17, 18, 19]; qCb, qAb2, qCnt2 = 91, 92, 93
    P_OFF = WSB + 0x2300000
    qPA = [80, 81, 82, 83]; qAb, qAoff, qFL, qS, qXo, qXL, qCnt = 84, 85, 86, 87, 88, 89, 90
    CNT_H = FL_OFF + 256*128; CNT_S = FL_OFF + 512*128; vFO = 44; CNT_X = FL_OFF + 768*128
    def put(lines):
        prev = ""
        for x in lines:
            if ' m0,' in prev and x.endswith('lds'): A("s_nop 0")
            A(x); prev = x
    emit = lambda ops: put([o.text for o in ops])

    A("s_cmp_ge_u32 s2, 256\ns_cbranch_scc1 L_end")
    pstamp(A, opt, 1, 0, early=True)
    A(f"s_load_dwordx2 s[60:61], s[0:1], {KA['x']}")
    A(f"s_load_dwordx4 s[48:51], s[0:1], {KA['dbg']}")
    A(f"s_load_dwordx4 s[40:43], s[0:1], {KA['wg']}")
    A(f"s_load_dwordx4 s[44:47], s[0:1], {KA['bre']}")
    A(f"s_load_dwordx4 s[64:67], s[0:1], {KA['lre']}")
    A(f"s_load_dwordx2 s[62:63], s[0:1], {KA['ldt']}")
    A(f"s_load_dwordx4 s[52:55], s[0:1], {KA['cre']}")
    A(f"s_load_dwordx2 s[56:57], s[0:1], {KA['wd']}")
    vLS, vLW, vLR, vCH = 25, 26, 27, 28
    PB = 4*STAGE2; PWL = PB + 1280; LNL = PB + 11520
    A("v_and_b32 v29, 7, v0\nv_lshrrev_b32 v30, 3, v0")
    A("s_lshr_b32 s68, s2, 3\ns_bfe_u32 s69, s2, 0x10002\ns_and_b32 s70, s2, 3")
    A("s_lshl_b32 s71, s68, 6\ns_lshl_b32 s3, s69, 5\ns_add_u32 s71, s71, s3\ns_lshl_b32 s3, s70, 2\ns_add_u32 s71, s71, s3")
    A(f"v_lshrrev_b32 v{t0}, 2, v29\nv_lshlrev_b32 v{t0}, 4, v{t0}\nv_and_b32 v{t1}, 3, v29\nv_add3_u32 v{t0}, v{t0}, v{t1}, s71\nv_lshlrev_b32 v{t0}, 11, v{t0}\nv_lshl_add_u32 v{t0}, v30, 4, v{t0}")
    A("s_waitcnt lgkmcnt(0)")
    srd(A, sWS, 50, 51, WSZ)
    A("s_cmp_ge_u32 s2, 16\ns_cbranch_scc1 L_noclr")
    A("s_cmp_lt_u32 s2, 7\ns_cselect_b32 s3, 1, 0\nv_mov_b32 v32, 0\nv_mov_b32 v33, s3\nv_mov_b32 v34, 0\nv_mov_b32 v35, s3\nv_lshlrev_b32 v36, 4, v0\nv_mov_b32 v60, 0\nv_mov_b32 v61, 0\nv_mov_b32 v62, 0\nv_mov_b32 v63, 0")
    A(f"s_lshl_b32 s3, s2, 13\ns_add_u32 s3, s3, {FL_OFF}\nbuffer_store_dwordx4 v[60:63], v36, s[{sWS}:{sWS+3}], s3 offen sc1\ns_add_u32 s3, s3, 4096\nbuffer_store_dwordx4 v[60:63], v36, s[{sWS}:{sWS+3}], s3 offen sc1")
    A(f"s_lshl_b32 s3, s2, 14\ns_add_u32 s3, s3, {EX_OFF}")
    for k in range(4): A(f"buffer_store_dwordx4 v[32:35], v36, s[{sWS}:{sWS+3}], s3 offen sc1\ns_add_u32 s3, s3, 4096")
    A("L_noclr:")
    for m in range(4): A(f"global_load_dwordx4 v[{40+4*m}:{43+4*m}], v{t0}, s[60:61] offset:{m*512}")
    A(f"v_lshrrev_b32 v17, 6, v0\nv_and_b32 v{L}, 63, v0")
    A(f"s_and_b32 s3, s2, 7\ns_bfe_u32 s{sU}, s2, 0x20003\ns_lshr_b32 s{sRB}, s2, 5")
    A(f"v_readfirstlane_b32 s{sWV}, v17")
    A(f"s_lshr_b32 s4, s3, 1\ns_lshl_b32 s6, s4, 2\ns_add_u32 s6, s6, s{sU}")
    A(f"s_lshl_b32 s4, s4, 1\ns_and_b32 s7, s{sU}, 1\ns_add_u32 s4, s4, s7\ns_add_u32 s7, s4, 16")
    A(f"s_bitcmp{0 if opt.get('flip', 0) else 1}_b32 s2, 0\ns_cselect_b32 s6, s7, s6\ns_cselect_b32 s{sU}, s{sU}, 0\ns_or_b32 s{sU}, s{sU}, 1")
    A(f"s_lshl_b32 s{sCol}, s6, 7\ns_lshl_b32 s{sCh}, s6, 4\ns_lshl_b32 s6, s4, 6\ns_add_u32 s6, s6, 3072\ns_mul_i32 s7, s4, 80\ns_add_u32 s7, s7, 384")
    A(f"s_cmp_eq_u32 s{sU}, 3\ns_cselect_b32 s{sCol}, s6, s{sCol}\ns_cselect_b32 s{sCh}, s7, s{sCh}")
    A(f"v_lshlrev_b32 v{vX}, 4, v{L}")
    A(f"s_lshl_b32 s{sTB}, s{sRB}, 2\ns_add_u32 s{sTB}, s{sTB}, s{sWV}\ns_lshl_b32 s{sXoff}, s{sTB}, 17")
    if XN_OFF: A(f"s_add_u32 s{sXoff}, s{sXoff}, {XN_OFF}")
    A(f"s_mov_b32 s{sWoff}, 0\ns_mov_b32 s{sBoff}, 0\ns_mov_b32 s{sDelta}, {2*STAGE2}")
    A(f"s_mov_b32 s{sW+2}, {1024*3584*2}\ns_mov_b32 s{sW+3}, 0x00020000\ns_mov_b32 s{sB+2}, {1024*1024*2}\ns_mov_b32 s{sB+3}, 0x00020000")
    A(f"s_and_b32 s5, s{sWV}, 1\ns_mul_i32 s6, s5, {32*7168}\ns_lshl_b32 s7, s{sCol}, 1\ns_add_u32 s6, s6, s7\ns_movk_i32 s7, 7168")
    A(f"s_cmp_eq_u32 s{sU}, 3\ns_cselect_b32 s3, 79, 15\nv_min_u32 v{vCH}, s3, v0\nv_add_lshl_u32 v{t1}, v{vCH}, s{sCh}, 1\nv_lshlrev_b32 v{vCH}, 3, v{vCH}")
    A(f"s_cmp_lt_u32 s{sWV}, 2\ns_cselect_b32 s{sW}, s40, s42\ns_cselect_b32 s{sW+1}, s41, s43\ns_cselect_b32 s{sB}, s44, s46\ns_cselect_b32 s{sB+1}, s45, s47")
    A(f"s_cselect_b32 s52, s52, s54\ns_cselect_b32 s53, s53, s55")
    A(f"global_load_ushort v56, v{t1}, s[64:65]\nglobal_load_ushort v57, v{t1}, s[66:67]\nglobal_load_ushort v58, v{t1}, s[62:63]")
    NE = 3
    PFR = opt.get('pfr', 4)
    if PFR:
        RW = 4*PFR
        A(f"s_cmp_eq_u32 s{sU}, 3\ns_cselect_b32 s3, 0, 1\ns_cselect_b32 s4, 10, 2")
        A(f"v_lshrrev_b32 v{t2}, 1, v{L}\nv_min_u32 v{t2}, {RW-1}, v{t2}\nv_mul_u32_u24 v{t2}, s7, v{t2}\nv_and_b32 v{t3}, s3, v{L}\nv_lshl_add_u32 v{t2}, v{t3}, 7, v{t2}")
        A(f"s_mul_i32 s3, s{sRB}, {RW*7168}\ns_lshl_b32 s71, s{sCol}, 1\ns_add_u32 s3, s3, s71\nbuffer_load_dword a236, v{t2}, s[{sW}:{sW+3}], s3 offen")
        A(f"s_mul_i32 s3, s{sRB}, s4\ns_add_u32 s3, s3, s{sCh}\ns_lshl_b32 s3, s3, 11\ns_sub_u32 s4, s4, 1")
        A(f"v_lshrrev_b32 v{t2}, 2, v{L}\nv_min_u32 v{t2}, s4, v{t2}\nv_lshlrev_b32 v{t2}, 11, v{t2}\nv_and_b32 v{t3}, 3, v{L}\nv_min_u32 v{t3}, {PFR//2-1}, v{t3}\nv_lshl_add_u32 v{t2}, v{t3}, 7, v{t2}")
        A(f"buffer_load_dword a236, v{t2}, s[{sB}:{sB+3}], s3 offen")
        NE += 2
    if opt.get('cpf', 1):
        code_prefetch(A, "L_noclr", "L_text_end", 58, t2, "a237", opt.get("cpfn", 24), "1", back=True); NE += 1
    A("s_cmp_ge_u32 s2, 16\ns_cbranch_scc1 L_noclr2")
    A(f"s_waitcnt vmcnt({4+NE})\ns_barrier\ns_cmp_lg_u32 s{sWV}, 0\ns_cbranch_scc1 L_noclr2")
    A("s_lshl_b32 s3, s2, 2\nv_mov_b32 v36, s3\nv_mov_b32 v37, 1\ns_mov_b64 exec, 1\nglobal_store_dword v36, v37, s[48:49] sc1\ns_mov_b64 exec, -1")
    A("L_noclr2:")
    A(f"s_lshl_b32 s71, s68, 17\ns_lshl_b32 s3, s70, 10\ns_add_u32 s71, s71, s3\ns_lshl_b32 s3, s69, 7\ns_add_u32 s71, s71, s3")
    if XN_OFF: A(f"s_add_u32 s71, s71, {XN_OFF}")
    A(f"v_lshrrev_b32 v{vLS}, 2, v30\nv_lshlrev_b32 v{vLS}, 12, v{vLS}\nv_and_b32 v{t2}, 3, v30\nv_lshlrev_b32 v{t2}, 8, v{t2}\nv_add3_u32 v{vLS}, v{vLS}, v{t2}, s71\nv_lshl_add_u32 v{vLS}, v29, 4, v{vLS}")
    A(f"v_lshlrev_b32 v{vLR}, 4, v29\nv_add_u32 v{vLR}, {LNL}, v{vLR}\nv_lshl_add_u32 v{vLW}, v17, 2, v{vLR}")
    A(f"s_cmp_eq_u32 s{sU}, 3\ns_cbranch_scc1 L_k2_B")

    def dma3(st, part, ffn=True):
        D, B, PB, Bb, BSH = (vD, qB, qPB, qBb, 17) if ffn else (vD2, qC, qPC, qCb, 7)
        o = []
        if part == 0: o.append(Op(f"s_add_u32 s{qBoff}, s{Bb}, s{PB[st]}"))
        o.append(Op(f"s_add_u32 m0, s{qM}, {st*16384 + part*4096}"))
        for n in range(4*part, 4*part+4):
            o.append(Op(f"buffer_load_dwordx4 v{D[n]}, s[{B}:{B+3}], s{qBoff} offen offset:{(n&3)*1024} lds", 'vm', f"d{st}"))
        if part == 1 and st == 3: o.append(Op(f"s_add_u32 s{Bb}, s{Bb}, {4 << BSH}"))
        return o
    def a3(ts, switch=False):
        ts %= 8
        o = [Op(f"s_add_u32 s{qAoff}, s{qAb}, s{qPA[ts >> 1]}") if ts % 2 == 0 else Op(f"s_add_u32 s{qAoff}, s{qAoff}, 4096")]
        for i in range(4):
            r = AB + ts*16 + i*4
            o.append(Op(f"buffer_load_dwordx4 a[{r}:{r+3}], v{vA}, s[{qA}:{qA+3}], s{qAoff} offen offset:{i*1024} sc1", 'vm', f"x{ts}"))
        if ts == 7: o.append(Op(f"s_mov_b32 s{qAb}, s{qAb2}") if switch else Op(f"s_add_u32 s{qAb}, s{qAb}, 32768"))
        return o
    def early3(nm, can_ffn):
        A(f"s_and_b32 s{qRole}, s2, 1\ns_xor_b32 s{qRole}, s{qRole}, {0 if opt.get('flip', 0) else 1}")
        A(f"s_lshr_b32 s4, s2, 5\ns_bfe_u32 s6, s2, 0x20003")
        A(f"s_bfe_u32 s3, s2, 0x10002\ns_lshl_b32 s3, s3, 3\ns_add_u32 s{qRB}, s3, s4\ns_bfe_u32 s3, s2, 0x10001\ns_lshl_b32 s3, s3, 2\ns_add_u32 s{qCB}, s3, s6")
        A(f"s_add_u32 s{qRho}, s4, s6\ns_and_b32 s{qRho}, s{qRho}, 3")
        A(f"s_lshr_b32 s{qKH}, s{sWV}, 1\ns_and_b32 s{qMH}, s{sWV}, 1\ns_lshl_b32 s{qTB}, s{qRB}, 1\ns_add_u32 s{qTB}, s{qTB}, s{qMH}")
        A(f"s_lshl_b32 s{qM}, s{qKH}, 16\ns_lshl_b32 s3, s{qMH}, 13\ns_add_u32 s{qM}, s{qM}, s3\ns_mov_b32 s{qB+3}, 0x00020000")
        for n in range(4): A(f"s_xor_b32 s{qPB[n]}, s{qRho}, {n}\ns_lshl_b32 s{qPB[n]}, s{qPB[n]}, 17")
        A(f"s_lshl_b32 s3, s{qMH}, 16\ns_lshl_b32 s4, s{qCB}, 8\ns_add_u32 s3, s3, s4")
        A(f"v_lshrrev_b32 v{t0}, 4, v{L}\nv_bfe_u32 v{t1}, v{L}, 1, 3\nv_xor_b32 v{t1}, v{t1}, v{t0}\nv_and_b32 v{t2}, 1, v{L}")
        A(f"v_lshlrev_b32 v{t2}, 4, v{t2}\nv_lshl_add_u32 v{t2}, v{t0}, 11, v{t2}\nv_add_u32 v{t2}, s3, v{t2}")
        A(f"v_lshl_add_u32 v{t0}, v{t1}, 5, v{t2}\nv_xor_b32 v{t1}, 4, v{t1}\nv_lshl_add_u32 v{t1}, v{t1}, 5, v{t2}")
        for n in range(8):
            A(f"v_add_u32 v{t2}, {n*8192 - (n&3)*1024}, v{t1 if (n>>1)&1 else t0}\nv_accvgpr_write_b32 a{STASH+n}, v{t2}")
        A(f"s_mul_i32 s{qBb}, s{qKH}, {1792*2048}\ns_lshl_b32 s3, s{qRole}, 19\ns_add_u32 s{qBb}, s{qBb}, s3")
        A(f"s_mov_b32 s{qB}, s56\ns_mov_b32 s{qB+1}, s57\ns_mov_b32 s{qB+2}, {3584*1024*2}")
    def setup3(ffn):
        A(f"s_load_dwordx2 s[44:45], s[0:1], {KA['dsk']}\ns_load_dwordx2 s[46:47], s[0:1], {KA['out']}\ns_load_dwordx2 s[58:59], s[0:1], {KA['x']}")
        for n in range(8): A(f"v_accvgpr_read_b32 v{vD[n]}, a{STASH+n}")
        A(f"v_and_b32 v{L}, 63, v0\nv_lshlrev_b32 v{vA}, 4, v{L}")
        for n in range(4): A(f"s_xor_b32 s{qPA[n]}, s{qRho}, {n}\ns_lshl_b32 s{qPA[n]}, s{qPA[n]}, 13")
        A(f"s_lshl_b32 s3, s{qRB}, 3\ns_add_u32 s3, s3, s{qCB}\ns_lshl_b32 s{qFL}, s3, 7\ns_add_u32 s{qFL}, s{qFL}, {FL_OFF}")
        A(f"s_lshl_b32 s{qS}, s3, 16\ns_lshl_b32 s3, s{sWV}, 14\ns_add_u32 s{qS}, s{qS}, s3\ns_add_u32 s{qS}, s{qS}, {S_OFF}")
        A(f"s_lshr_b32 s{qCnt}, s{qRB}, 1\ns_lshl_b32 s{qCnt}, s{qCnt}, 12\ns_add_u32 s{qCnt2}, s{qCnt}, {CNT_S}\ns_add_u32 s{qCnt}, s{qCnt}, {CNT_H}")
        A(f"s_lshl_b32 s{qXL}, s{sWV}, 13\ns_add_u32 s{qXL}, s{qXL}, {XLDS}")
        A(f"s_mul_i32 s{qAb}, s{qTB}, 112\ns_mul_i32 s3, s{qKH}, 56\ns_add_u32 s{qAb}, s{qAb}, s3\ns_lshl_b32 s{qAb}, s{qAb}, 12\ns_add_u32 s{qAb}, s{qAb}, {H_OFF + (32768 if ffn else 0)}")
        A(f"v_bfe_u32 v{t0}, v{L}, 2, 2\nv_lshrrev_b32 v{t1}, 4, v{L}\nv_lshl_add_u32 v{t2}, v{t1}, 3, v{t0}\nv_lshlrev_b32 v{t2}, 8, v{t2}")
        A(f"v_and_b32 v{t3}, 3, v{L}\nv_lshl_add_u32 v{t2}, v{t3}, 3, v{t2}\ns_lshl_b32 s3, s{qKH}, 16\nv_add_u32 v{t2}, s3, v{t2}")
        A(f"v_bfe_u32 v{t0}, v{L}, 2, 3\ns_lshl_b32 s3, s{qKH}, 2\nv_xor_b32 v{t0}, s3, v{t0}")
        for j in range(8): A(f"v_xor_b32 v{t1}, {j}, v{t0}\nv_lshl_add_u32 v{vR[j]}, v{t1}, 5, v{t2}")
        if ffn:
            for r in range(128, 256): A(f"v_mov_b32 v{r}, 0")
        else:
            for n in range(4): A(f"s_lshr_b32 s{qPC[n]}, s{qPA[n]}, 6")
            A(f"s_lshl_b32 s3, s{qCB}, 18\ns_lshl_b32 s4, s{qMH}, 17\ns_add_u32 s3, s3, s4")
            A(f"v_lshrrev_b32 v{t0}, 4, v{L}\nv_and_b32 v{t1}, 7, v{L}\nv_xor_b32 v{t1}, v{t1}, v{t0}\nv_lshrrev_b32 v{t2}, 3, v{L}")
            A(f"v_lshlrev_b32 v{t2}, 11, v{t2}\nv_add_u32 v{t2}, s3, v{t2}")
            A(f"v_lshl_add_u32 v{t0}, v{t1}, 4, v{t2}\nv_xor_b32 v{t1}, 4, v{t1}\nv_lshl_add_u32 v{t1}, v{t1}, 4, v{t2}")
            for n in range(8): A(f"v_add_u32 v{vD2[n]}, {n*16384 - (n&3)*1024}, v{t1 if n&1 else t0}")
            A(f"s_mov_b32 s{qCb}, 0")
            srd(A, qC, 52, 53, 1024*1024*2)
            A(f"s_lshl_b32 s{qAb2}, s{qTB}, 1\ns_add_u32 s{qAb2}, s{qAb2}, s{qKH}\ns_lshl_b32 s{qAb2}, s{qAb2}, 17\ns_add_u32 s{qAb2}, s{qAb2}, {HS_OFF}")
            A(f"v_and_b32 v{t0}, 15, v{L}\nv_lshrrev_b32 v{t1}, 1, v{t0}\nv_lshrrev_b32 v{t2}, 4, v{L}\nv_xor_b32 v{t1}, v{t1}, v{t2}\nv_lshlrev_b32 v{t1}, 4, v{t1}")
            A(f"v_lshl_add_u32 v{t0}, v{t0}, 7, v{t1}\ns_mul_i32 s3, s{qKH}, {65536+8192}\nv_add_u32 v{vR2[0]}, s3, v{t0}\nv_xor_b32 v{vR2[1]}, 64, v{vR2[0]}")
            A(f"v_xor_b32 v{vR2[2]}, 8192, v{vR2[0]}\nv_xor_b32 v{vR2[3]}, 8192, v{vR2[1]}")
        M0_ = 0 if ffn else 2
        A(f"s_lshl_b32 s{qXo}, s{qTB}, 5\ns_lshl_b32 s3, s{qCB}, 2\ns_add_u32 s{qXo}, s{qXo}, s3\ns_lshl_b32 s3, s{qKH}, 1\ns_add_u32 s{qXo}, s{qXo}, s3\ns_lshl_b32 s{qXo}, s{qXo}, 12\ns_add_u32 s{qXo}, s{qXo}, {XN_OFF + (M0_ >> 1)*4096}")
        A(f"s_lshl_b32 s3, s{qCB}, 8\ns_lshl_b32 s4, s{qKH}, 7\ns_add_u32 s3, s3, s4\ns_add_u32 s3, s3, {M0_*32}\ns_lshl_b32 s{qXx}, s{qTB}, 17\ns_add_u32 s{qXx}, s{qXx}, s3")
        u0, u1 = 19, 26
        A(f"v_and_b32 v{u0}, 15, v{L}\nv_lshl_add_u32 v{vDK}, v{u0}, 1, s3")
        A(f"v_lshrrev_b32 v{u1}, 4, v{L}\nv_lshlrev_b32 v{u1}, 16, v{u1}\nv_lshl_add_u32 v{vXL}, v{u0}, 2, v{u1}")
        A(f"v_add_u32 v{vSW}, s{qXL}, v{vA}\nv_xor_b32 v{vSR}, 0x4000, v{vSW}")
        A(f"v_bfe_u32 v{u0}, v{L}, 1, 1\nv_lshlrev_b32 v{u0}, 8, v{u0}\nv_lshrrev_b32 v{u1}, 2, v{L}\nv_lshl_add_u32 v{u0}, v{u1}, 4, v{u0}")
        A(f"v_lshlrev_b32 v{vXD}, 11, v{u1}\nv_and_b32 v{u1}, 1, v{L}\nv_lshl_add_u32 v{u0}, v{u1}, 3, v{u0}\nv_add_u32 v{vNR}, s{qXL}, v{u0}")
        A(f"v_and_b32 v{u1}, 3, v{L}\nv_lshl_add_u32 v{vXD}, v{u1}, 4, v{vXD}")
        A(f"v_lshrrev_b32 v{u0}, 4, v{L}\nv_lshlrev_b32 v{u0}, 10, v{u0}\nv_lshl_add_u32 v{u0}, v{u1}, 3, v{u0}\nv_bfe_u32 v{u1}, v{L}, 2, 2\nv_lshl_add_u32 v{u0}, v{u1}, 6, v{u0}\nv_add_u32 v{vXR}, s{qXL}, v{u0}")
        A(f"s_add_u32 s66, s{qS}, {P_OFF - S_OFF}\ns_add_u32 s67, s{qFL}, {128*128}")
        A("s_waitcnt lgkmcnt(0)")
        srd(A, qO, 58, 59, 2048*1024*2)
    cload = lambda v, s_: f"buffer_load_dword v{v}, off, s[{sWS}:{sWS+3}], s{s_} sc1"
    def wait_word(v, s_, target, uid, first_wait):
        A(f"s_mov_b32 s55, 0x40000\ns_waitcnt vmcnt({first_wait})")
        A(f"L_w{uid}:\nv_readfirstlane_b32 s3, v{v}\ns_cmp_ge_u32 s3, {target}\ns_cbranch_scc1 L_g{uid}\ns_sleep 1")
        A(cload(v, s_) + "\ns_waitcnt vmcnt(0)")
        A(f"s_sub_u32 s55, s55, 1\ns_cmp_lg_u32 s55, 0\ns_cbranch_scc1 L_w{uid}\nL_g{uid}:")
    sigS_addr = f"s_lshl_b32 s3, s2, 7\ns_add_u32 s3, s3, {CNT_S}"
    mload = lambda s_: f"buffer_load_dword v{vFL}, v{vFO}, s[{sWS}:{sWS+3}], s{s_} offen sc1"
    def wait_all(s_, uid):
        A(f"s_mov_b32 s55, 0x40000\ns_waitcnt vmcnt(0)")
        A(f"L_w{uid}:\nv_cmp_ne_u32 vcc, 1, v{vFL}\ns_cbranch_vccz L_g{uid}\ns_sleep 1")
        A(mload(s_) + "\ns_waitcnt vmcnt(0)")
        A(f"s_sub_u32 s55, s55, 1\ns_cmp_lg_u32 s55, 0\ns_cbranch_scc1 L_w{uid}\nL_g{uid}:")
    proa = []
    for t_ in range(-AD, 0): proa += a3(t_ + AD)

    def body(NP, NS, nm):
        NT = 2*NP + 2*NS
        NWI = 8 if NP == 8 else 4
        WB = 8448 if NP == 8 else 4224
        BOFF = 4*WB
        NCH = 16*NS
        def acc(j, i): return ('v', 32 + (j*4+i)*4) if j < 14 else ('a', ((j-14)*4+i)*4)
        def rd(dst, j, i, r):
            f, b = acc(j, i)
            return f"v_mov_b32 v{dst}, v{b+r}" if f == 'v' else f"v_accvgpr_read_b32 v{dst}, a{b+r}"
        jre = lambda q: 2*NP + q
        jim = lambda q: 2*NP + NS + q
        if NP == 8:
            A(f"v_bfe_u32 v{t0}, v{L}, 4, 1\nv_bfe_u32 v{t1}, v{L}, 5, 1\nv_lshlrev_b32 v{t0}, 2, v{t0}\nv_lshl_or_b32 v{t0}, v{t1}, 4, v{t0}\nv_and_b32 v{t1}, 15, v{L}")
        else:
            A(f"v_bfe_u32 v{t0}, v{L}, 3, 1\nv_bfe_u32 v{t1}, v{L}, 4, 1\nv_lshlrev_b32 v{t0}, 3, v{t0}\nv_lshl_or_b32 v{t0}, v{t1}, 2, v{t0}\nv_bfe_u32 v{t1}, v{L}, 5, 1\nv_lshl_or_b32 v{t0}, v{t1}, 4, v{t0}\nv_and_b32 v{t1}, 7, v{L}")
        A(f"v_mul_u32_u24 v{t0}, s7, v{t0}\nv_lshl_add_u32 v{t0}, v{t1}, 4, v{t0}\nv_add_u32 v{vWD[0]}, s6, v{t0}")
        for n in range(1, NWI): A(f"v_add_u32 v{vWD[n]}, {((n&3) + 8*(n>>2))*7168 - (n&3)*1056}, v{vWD[0]}")
        vBD = vWD[NWI:NWI+NS]
        A(f"s_mul_i32 s3, s5, {8*NS}\ns_add_u32 s3, s3, s{sCh}\ns_lshl_b32 s3, s3, 11\ns_lshl_b32 s4, s5, 2")
        A(f"v_lshrrev_b32 v{t0}, 4, v{L}\nv_and_b32 v{t1}, 7, v{L}\nv_xor_b32 v{t1}, v{t1}, v{t0}\nv_xor_b32 v{t1}, s4, v{t1}\nv_lshrrev_b32 v{t2}, 3, v{L}\nv_lshlrev_b32 v{t2}, 11, v{t2}\nv_add_u32 v{t2}, s3, v{t2}")
        A(f"v_lshl_add_u32 v{vBD[0]}, v{t1}, 4, v{t2}")
        if NS > 1:
            A(f"v_xor_b32 v{t1}, 64, v{vBD[0]}")
            for n in range(1, NS): A(f"v_add_u32 v{vBD[n]}, {n*16384 - (n&3)*1024}, v{t1 if n&1 else vBD[0]}")
        A(f"s_mul_i32 s{sM[0]}, s{sWV}, {WB}\ns_add_u32 s{sM[1]}, s{sM[0]}, {STAGE2}")
        A(f"s_mul_i32 s{sMB[0]}, s{sWV}, {NS*1024}\ns_add_u32 s{sMB[0]}, s{sMB[0]}, {BOFF}\ns_add_u32 s{sMB[1]}, s{sMB[0]}, {STAGE2}")
        srd(A, sX, 50, 51, XN_OFF + 2048*1024*2)
        def dma_ops(par, part):
            tag = f"d{par}"
            wl = lambda n: Op(f"buffer_load_dwordx4 v{vWD[n]}, s[{sW}:{sW+3}], s{sWoff} offen offset:{(n&3)*1056}{WNT} lds", 'vm', tag)
            bl = lambda n: Op(f"buffer_load_dwordx4 v{vBD[n]}, s[{sB}:{sB+3}], s{sBoff} offen offset:{(n&3)*1024}{WNT} lds", 'vm', tag + "e")
            o = []
            if part == 0:
                o.append(Op(f"s_mov_b32 m0, s{sM[par]}")); o += [wl(n) for n in range(4)]
            else:
                if NWI == 8:
                    o.append(Op(f"s_add_u32 m0, s{sM[par]}, {4*1056}")); o += [wl(n) for n in range(4, 8)]
                o.append(Op(f"s_mov_b32 m0, s{sMB[par]}"))
                o.append(Op(f"s_add_u32 s{sWoff}, s{sWoff}, {64*7168}"))
                o += [bl(n) for n in range(min(NS, 4))]
                if NS == 5:
                    o.append(Op(f"s_add_u32 m0, s{sMB[par]}, 4096")); o.append(bl(4))
                o.append(Op(f"s_add_u32 s{sBoff}, s{sBoff}, 128"))
                o.append(Op(f"s_add_u32 s{sM[par]}, s{sM[par]}, s{sDelta}"))
                o.append(Op(f"s_add_u32 s{sMB[par]}, s{sMB[par]}, s{sDelta}"))
            return o
        def x_ops(buf):
            o = []
            for i in range(4):
                r = XB + buf*16 + i*4
                o.append(Op(f"buffer_load_dwordx4 a[{r}:{r+3}], v{vX}, s[{sX}:{sX+3}], s{sXoff} offen offset:{i*1024} sc1", 'vm', f"x{buf}"))
            o.append(Op(f"s_add_u32 s{sXoff}, s{sXoff}, 4096"))
            return o
        if opt.get('prof'):
            A(f"s_lshl_b32 s100, s2, 2\ns_add_u32 s100, s100, s{sWV}\ns_lshl_b32 s100, s100, 6\ns_add_u32 s100, s100, {PROF_OFF}")
        A(f"s_waitcnt vmcnt({NE})")
        pstamp(A, opt, 0, 6)
        X = 64
        for r in range(16): A(f"v_lshlrev_b32 v{X+2*r}, 16, v{40+r}\nv_and_b32 v{X+2*r+1}, 0xffff0000, v{40+r}")
        def reduce(off, side):
            A("v_add_f32 v32, v32, v33\ns_nop 1\nv_add_f32_dpp v32, v32, v32 row_ror:8 row_mask:0xf bank_mask:0xf")
            A("v_mov_b32 v33, v32\ns_nop 1\nv_permlane16_swap_b32 v32, v33\ns_nop 1\nv_add_f32 v32, v32, v33")
            A("v_mov_b32 v33, v32\ns_nop 1\nv_permlane32_swap_b32 v32, v33\ns_nop 1\nv_add_f32 v32, v32, v33")
            A(f"ds_write_b32 v{vLW}, v32 offset:{off}")
            emit(side)
            A(f"s_waitcnt lgkmcnt(0)\ns_barrier\nds_read_b128 v[32:35], v{vLR} offset:{off}\ns_waitcnt lgkmcnt(0)")
            A("v_pk_add_f32 v[32:33], v[32:33], v[34:35]\nv_add_f32 v32, v32, v33")
        A(f"v_pk_add_f32 v[32:33], {pk(X)}, {pk(X+2)}\nv_pk_add_f32 v[34:35], {pk(X+4)}, {pk(X+6)}")
        for r in range(4, 16): A(f"v_pk_add_f32 {pk(32+2*(r&1))}, {pk(32+2*(r&1))}, {pk(X+2*r)}")
        A("v_pk_add_f32 v[32:33], v[32:33], v[34:35]")
        reduce(0, [])
        A(f"v_mul_f32 v38, {hx(f2u(-1.0/1024))}, v32")
        for r in range(16):
            t = 96 + 2*(r & 3); d = 32 + 2*(r & 1)
            A(f"v_pk_add_f32 {pk(t)}, {pk(X+2*r)}, v[38:39] op_sel_hi:[1,0]")
            A(f"v_pk_mul_f32 {pk(d)}, {pk(t)}, {pk(t)}" if r < 2 else f"v_pk_fma_f32 {pk(d)}, {pk(t)}, {pk(t)}, {pk(d)}")
        A("v_pk_add_f32 v[32:33], v[32:33], v[34:35]")
        reduce(128, [])
        A(f"v_mul_f32 v39, {hx(f2u(1.0/1024))}, v32\nv_cvt_pk_bf16_f32 v36, v38, v39\nv_lshlrev_b32 v38, 16, v36\nv_and_b32 v36, 0xffff0000, v36")
        A(f"v_add_f32 v36, {hx(f2u(1e-5))}, v36\nv_cvt_pk_bf16_f32 v36, v36, v36\nv_lshlrev_b32 v36, 16, v36")
        A("v_sqrt_f32 v36, v36\ns_nop 0\nv_cvt_pk_bf16_f32 v36, v36, v36\nv_lshlrev_b32 v36, 16, v36\nv_rcp_f32 v36, v36")
        for m in range(4):
            rs = range(4*m, 4*m+4)
            for r in rs: A(f"v_pk_add_f32 {pk(X+2*r)}, {pk(X+2*r)}, v[38:39] op_sel_hi:[1,0]")
            for r in rs: A(f"v_cvt_pk_bf16_f32 v{40+r}, v{X+2*r}, v{X+2*r+1}")
            for r in rs: A(f"v_lshlrev_b32 v{X+2*r}, 16, v{40+r}\nv_and_b32 v{X+2*r+1}, 0xffff0000, v{40+r}")
            for r in rs: A(f"v_pk_mul_f32 {pk(X+2*r)}, {pk(X+2*r)}, v[36:37] op_sel_hi:[1,0]")
            for r in rs: A(f"v_cvt_pk_bf16_f32 v{40+r}, v{X+2*r}, v{X+2*r+1}")
            A(f"s_mov_b32 s3, {m*32768}\nbuffer_store_dwordx4 v[{40+4*m}:{43+4*m}], v{vLS}, s[{sWS}:{sWS+3}], s3 offen sc1")
        A(f"v_and_b32 v{vLS}, 15, v0\nv_lshlrev_b32 v{vLS}, 2, v{vLS}\nglobal_load_dword v59, v{vLS}, s[48:49] sc1")
        c_hi = struct.unpack("<f", struct.pack("<f", 1/(2*math.pi)))[0]; c_lo = 1/(2*math.pi) - c_hi
        A(f"s_mov_b32 s3, {hx(f2u(LOG2E))}\ns_mov_b32 s4, {hx(f2u(c_hi))}\ns_mov_b32 s6, {hx(f2u(c_lo))}")
        emit(dma_ops(0, 0) + dma_ops(0, 1))
        A("s_waitcnt vmcnt(14)")
        lr, li, ld = 56, 57, 58
        la, lb, cr, ci = 64, 65, 66, 67
        dt, zr, zi, hi, lo, mag = range(68, 74)
        A(f"v_lshlrev_b32 v{lr}, 16, v{lr}\nv_lshlrev_b32 v{li}, 16, v{li}\nv_lshlrev_b32 v{ld}, 16, v{ld}")
        A(f"v_mul_f32 v{dt}, s3, v{ld}\nv_exp_f32 v{dt}, v{dt}\ns_nop 0\nv_cvt_pk_bf16_f32 v{dt}, v{dt}, v{dt}\nv_lshlrev_b32 v{dt}, 16, v{dt}")
        A(f"v_mul_f32 v{zr}, v{dt}, v{lr}\nv_mul_f32 v{zi}, v{dt}, v{li}")
        A(f"v_mul_f32 v{mag}, s3, v{zr}\nv_exp_f32 v{mag}, v{mag}")
        A(f"v_mul_f32 v{hi}, s4, v{zi}\nv_fma_f32 v{lo}, v{zi}, s4, -v{hi}\nv_fma_f32 v{lo}, v{zi}, s6, v{lo}")
        A(f"v_rndne_f32 v{la}, v{hi}\nv_sub_f32 v{hi}, v{hi}, v{la}\nv_add_f32 v{hi}, v{hi}, v{lo}")
        A(f"v_cos_f32 v{la}, v{hi}\nv_sin_f32 v{lb}, v{hi}\ns_nop 0\nv_mul_f32 v{la}, v{la}, v{mag}\nv_mul_f32 v{lb}, v{lb}, v{mag}")
        am1, den = dt, zr
        A(f"v_add_f32 v{am1}, -1.0, v{la}\nv_mul_f32 v{den}, v{lr}, v{lr}\nv_fmac_f32 v{den}, v{li}, v{li}\nv_rcp_f32 v{den}, v{den}")
        A(f"v_mul_f32 v{cr}, v{am1}, v{lr}\nv_fmac_f32 v{cr}, v{lb}, v{li}\nv_mul_f32 v{ci}, v{lb}, v{lr}\nv_fma_f32 v{ci}, -v{am1}, v{li}, v{ci}")
        A(f"v_mul_f32 v{cr}, v{cr}, v{den}\nv_mul_f32 v{ci}, v{ci}, v{den}")
        def cmul(d, a, b):
            A(f"v_pk_mul_f32 {pk(d)}, {pk(a)}, {pk(b)} op_sel_hi:[1,0]")
            A(f"v_pk_fma_f32 {pk(d)}, {pk(a)}, {pk(b)}, {pk(d)} op_sel:[1,1,0] op_sel_hi:[0,1,1] neg_lo:[0,1,0]")
        A(f"v_lshlrev_b32 v74, 1, v{vCH}\nv_add_u32 v74, {PB}, v74\nv_add_u32 v75, {PWL}, v{vCH}\nds_write_b128 v74, v[64:67]")
        cmul(76, 64, 64); cmul(78, 76, 76); cmul(76, 78, 78); cmul(78, 76, 76)
        A(f"v_mov_b32 v80, 1.0\nv_mov_b32 v81, 0\nds_write_b64 v75, v[80:81]\nds_write_b64 v75, v[78:79] offset:640")
        for k in range(2, 17):
            d = 80 + 2*(k % 4); p_ = 78 if k == 2 else 80 + 2*((k-1) % 4)
            cmul(d, p_, 78)
            if k < 16: A(f"ds_write_b64 v75, {pk(d)} offset:{k*640}")
        A(f"v_accvgpr_write_b32 a{PAR+30}, v78\nv_accvgpr_write_b32 a{PAR+31}, v79\nv_accvgpr_write_b32 a{PAR+32}, v80\nv_accvgpr_write_b32 a{PAR+33}, v81")
        A(f"s_mov_b32 s55, 0x40000\ns_waitcnt vmcnt(9)")
        A(f"L_wc{nm}:\nv_cmp_ne_u32 vcc, 1, v59\ns_cbranch_vccz L_gc{nm}\ns_sleep 1\nglobal_load_dword v59, v{vLS}, s[48:49] sc1\ns_waitcnt vmcnt(0)")
        A(f"s_sub_u32 s55, s55, 1\ns_cmp_lg_u32 s55, 0\ns_cbranch_scc1 L_wc{nm}\nL_gc{nm}:")
        A("s_waitcnt lgkmcnt(0)\ns_barrier")
        signal(A, sWV, sWS, f"s_lshl_b32 s3, s2, 7\ns_add_u32 s3, s3, {CNT_X}", 59, f"x{nm}")
        pstamp(A, opt, 0, 7)
        emit(dma_ops(1, 0) + dma_ops(1, 1) + dma_ops(0, 0))
        A(f"v_and_b32 v{t0}, 15, v{L}\nv_lshlrev_b32 v{t1}, 4, v{t0}\nv_add_u32 v{t1}, {PB}, v{t1}\nv_lshrrev_b32 v{t2}, 4, v0\nv_mul_u32_u24 v{t2}, 640, v{t2}\nv_lshl_add_u32 v{t2}, v{t0}, 3, v{t2}\nv_add_u32 v{t2}, {PWL}, v{t2}")
        for q in range(NS):
            pa = PAR + q*6
            A(f"ds_read_b128 a[{pa}:{pa+3}], v{t1} offset:{q*256}\nds_read_b64 a[{pa+4}:{pa+5}], v{t2} offset:{q*128}")
        for r in range(32, 256): A(f"v_mov_b32 v{r}, 0")
        A(f"v_and_b32 v{vLW}, 31, v0\nv_lshlrev_b32 v{vLW}, 7, v{vLW}\ns_lshl_b32 s58, s{sRB}, 12\ns_add_u32 s58, s58, {CNT_X}")
        xpoll = f"buffer_load_dword v{vLR}, v{vLW}, s[{sWS}:{sWS+3}], s58 offen sc1"
        A(xpoll)
        for r in range(64): A(f"v_accvgpr_write_b32 a{r}, 0")
        if NP == 8: A(f"v_bfe_u32 v{t0}, v{L}, 2, 3\nv_mul_u32_u24 v{t0}, 1056, v{t0}")
        else: A(f"v_bfe_u32 v{t0}, v{L}, 2, 2\nv_mul_u32_u24 v{t0}, 1056, v{t0}\nv_bfe_u32 v{t1}, v{L}, 4, 1\nv_lshl_add_u32 v{t0}, v{t1}, 7, v{t0}")
        A(f"v_bfe_u32 v{t1}, v{L}, 5, 1\nv_lshl_add_u32 v{t0}, v{t1}, 9, v{t0}\nv_and_b32 v{t1}, 3, v{L}\nv_lshl_add_u32 v{vRW[0]}, v{t1}, 3, v{t0}\nv_add_u32 v{vRW[1]}, {STAGE2}, v{vRW[0]}")
        A(f"v_and_b32 v{t0}, 15, v{L}\nv_lshrrev_b32 v{t1}, 1, v{t0}\nv_lshrrev_b32 v{t2}, 4, v{L}\nv_xor_b32 v{t1}, v{t1}, v{t2}\nv_lshlrev_b32 v{t1}, 4, v{t1}")
        A(f"v_lshl_add_u32 v{t0}, v{t0}, 7, v{t1}\nv_xor_b32 v{t1}, 64, v{t0}\nv_add_u32 v{vRB[0][0]}, {BOFF}, v{t0}\nv_add_u32 v{vRB[0][1]}, {BOFF}, v{t1}")
        A(f"v_add_u32 v{vRB[1][0]}, {STAGE2}, v{vRB[0][0]}\nv_add_u32 v{vRB[1][1]}, {STAGE2}, v{vRB[0][1]}")
        if PF:
            A(f"s_lshl_b32 s3, s2, 2\ns_add_u32 s3, s3, s{sWV}\ns_lshl_b32 s4, s3, 3\nv_and_b32 v{t0}, 7, v{L}\nv_add_lshl_u32 v{vP[0]}, v{t0}, s4, 7")
            A(f"s_lshl_b32 s3, s2, 1\ns_add_u32 s3, s3, s5\ns_lshl_b32 s3, s3, 2\nv_and_b32 v{t0}, 3, v{L}\nv_add_lshl_u32 v{vP[1]}, v{t0}, s3, 7")
        def frag_reads(j, par, kh, tag):
            d = WF + j*4
            if j < 2*NP:
                p, gu = j >> 1, j & 1
                return [Op(f"ds_read_b64_tr_b16 a[{d+2*h}:{d+2*h+1}], v{vRW[par]} offset:{gu*2*WB + kh*WB + h*256 + p*32}", 'lds', tag) for h in range(2)]
            return [Op(f"ds_read_b128 a[{d}:{d+3}], v{vRB[par][kh]} offset:{(j-2*NP)*2048}", 'lds', tag)]
        pfC = [Op(f"global_load_dword a236, v{vP[1]}, s[52:53]", 'vm', 'pf'), Op(f"v_add_u32 v{vP[1]}, {2048*128}, v{vP[1]}")]
        pfW = [Op(f"global_load_dword a236, v{vP[0]}, s[56:57]", 'vm', 'pf'), Op(f"v_add_u32 v{vP[0]}, {8192*128}, v{vP[0]}")]
        if opt.get('prof'):
            A(f"v_accvgpr_write_b32 a254, s94\nv_accvgpr_write_b32 a255, s95\ns_add_u32 s101, s100, 0x10000\nbuffer_store_dwordx2 a[254:255], off, s[20:23], s101")
            A("s_getreg_b32 s96, hwreg(HW_REG_XCC_ID)\ns_getreg_b32 s98, hwreg(HW_REG_HW_ID)\nv_accvgpr_write_b32 a254, s96\nv_accvgpr_write_b32 a255, s98\nbuffer_store_dwordx2 a[254:255], off, s[20:23], s100 offset:40")
        A("s_waitcnt vmcnt(14)\ns_barrier")
        for j in range(NT): emit(frag_reads(j, 0, 0, None))
        A(f"s_mov_b32 s55, 0x40000\ns_waitcnt vmcnt(0)")
        A(f"L_wx{nm}:\nv_cmp_ne_u32 vcc, 1, v{vLR}\ns_cbranch_vccz L_gx{nm}\ns_sleep 1\n{xpoll}\ns_waitcnt vmcnt(0)")
        A(f"s_sub_u32 s55, s55, 1\ns_cmp_lg_u32 s55, 0\ns_cbranch_scc1 L_wx{nm}\nL_gx{nm}:")
        pstamp(A, opt, 1, 1)
        emit(x_ops(0) + x_ops(1) + x_ops(2))
        if PF: emit(pfC)
        early3(nm, NP == 8)
        A(f"s_mov_b32 s{sDelta}, {hx(-2*STAGE2)}\ns_mov_b32 s{sTrip}, 0\ns_waitcnt vmcnt({1 if PF else 0}) lgkmcnt(0)")
        BARG = opt.get('barg', 3)
        def mfma(j, i, wreg, xreg, **kw):
            f, b = acc(j, i); c = f"{f}[{b}:{b+3}]"
            w = f"a[{wreg}:{wreg+3}]"; x = f"a[{xreg}:{xreg+3}]"
            return Op(f"v_mfma_f32_16x16x32_bf16 {c}, {w}, {x}, {c}" if j < 2*NP else f"v_mfma_f32_16x16x32_bf16 {c}, {x}, {w}, {c}", **kw)
        def trip(n):
            out = []
            for t in range(4):
                gs = 4*n + t
                mf = []
                for j in range(NT):
                    order = range(4) if j % 2 == 0 else range(3, -1, -1)
                    for k, i in enumerate(order):
                        mf.append(mfma(j, i, WF+j*4, XB+t*16+i*4, need_vm=(f"x{t}" if (j == 0 and k == 0) else None), need_lds=(f"f{j}" if k == 0 else None)))
                if t % 2 == 0: par, kh, firstm = t >> 1, 1, 0
                else: par, kh, firstm = ((t >> 1) + 1) % 2, 0, BARG*4 - 1
                fin = gs == 31
                rds = []
                if not fin:
                    for j in range(NT):
                        for o in frag_reads(j, par, kh, f"f{j}"): rds.append((max(j*4 + 3, firstm), o))
                vmo = []
                if gs + XD < 32: vmo += x_ops((t + XD) % 4)
                if (gs + 5) >> 1 < 16: vmo += dma_ops(((t + 5) >> 1) % 2, (t + 1) % 2)
                if PF and n < 7 and t == 1: vmo += pfW
                if PF and n < 7 and t == 3: vmo += pfC
                if gs == 29: vmo += [Op(f"v_accvgpr_read_b32 v{vD[k]}, a{STASH+k}") for k in range(8)]
                if gs == 30: vmo += [Op(o.text, o.kind, 'k3') for o in dma3(0, 0) + dma3(0, 1) + dma3(1, 0)]
                if gs == 31: vmo += [Op(o.text, o.kind, 'k3') for o in dma3(1, 1) + dma3(2, 0)]
                sp = 68.0 / max(1, len(vmo))
                vm = [(1 + int(k*sp), o) for k, o in enumerate(vmo)]
                misc = []
                if n != 7:
                    if t == 2: misc += [(40, Op(f"v_subrev_u32 v{r}, s{sDelta}, v{r}")) for r in (vRW[0], vRB[0][0], vRB[0][1])]
                    if t == 3: misc += [(2, Op(f"v_subrev_u32 v{r}, s{sDelta}, v{r}")) for r in (vRW[1], vRB[1][0], vRB[1][1])]
                    if t == 3: misc += [(60, Op(f"s_sub_u32 s{sDelta}, 0, s{sDelta}"))]
                slots = spread(72, [rds, vm, misc], per_gap=1)
                for m in range(72):
                    out.append(mf[m])
                    if t % 2 == 1 and m == firstm and not fin:
                        out.append(Op("s_waitcnt lgkmcnt(0)", 'lgkm0', need_vm=f"d{par}e"))
                        out.append(Op("s_barrier"))
                    out.extend(slots[m])
            return out
        b0, b6, b7 = trip(0), trip(6), trip(7)
        pstamp(A, opt, 1, 2)
        A(f".p2align 6\nL_k2_loop{nm}:"); put(resolve_loop(b0))
        A(f"s_add_u32 s{sTrip}, s{sTrip}, 1\ns_cmp_lt_u32 s{sTrip}, 6\ns_cbranch_scc1 L_k2_loop{nm}")
        put(resolve_seq(b0, b6))
        if opt.get('cpf', 1):
            code_prefetch(A, "L_k3_code", "L_text_end", 58, t0, "a237", opt.get("cpfn3", 11), "2" + nm)
            A(f"s_getpc_b64 s[58:59]\nL_pce{nm}:\ns_add_u32 s58, s58, L_k2_epi{nm}-L_pce{nm}\ns_addc_u32 s59, s59, 0\nv_lshlrev_b32 v{t0}, 6, v0\nglobal_load_dword a238, v{t0}, s[58:59]")
        put(resolve_seq(b6, b7))
        A(f"L_k2_epi{nm}:")
        pstamp(A, opt, 1, 3)
        LAM = [2 + 2*q for q in range(NS)]
        for q in range(NS): A(f"v_accvgpr_read_b32 v{LAM[q]}, a{PAR+q*6}\nv_accvgpr_read_b32 v{LAM[q]+1}, a{PAR+q*6+1}")
        def cfma(d, h, c):
            return [f"v_pk_fma_f32 {pk(d)}, {pk(h)}, {pk(c)}, {pk(d)} op_sel_hi:[1,0,1]",
                    f"v_pk_fma_f32 {pk(d)}, {pk(h)}, {pk(c)}, {pk(d)} op_sel:[1,1,0] op_sel_hi:[0,1,1] neg_lo:[0,1,0]"]
        A("s_nop 7")
        T = lambda q, n: 12 + 4*q + 2*(n & 1)
        for n in range(16):
            i, r = n >> 2, n & 3
            for q in range(NS): A(rd(T(q, n), jre(q), i, r) + "\n" + rd(T(q, n)+1, jim(q), i, r))
            if n > 0:
                for h in range(2):
                    for q in range(NS): A(cfma(T(q, n), T(q, n-1), LAM[q])[h])
        EL, PL, HL, EP = 45056, 45056 + 10240, 36864, 640
        vE = 1
        A(f"v_lshrrev_b32 v12, 4, v0\nv_mul_u32_u24 v12, {EP}, v12\nv_and_b32 v{vE}, 15, v0\nv_lshl_add_u32 v{vE}, v{vE}, 3, v12")
        for q in range(NS): A(f"ds_write_b64 v{vE}, {pk(T(q, 15))} offset:{EL + q*128}")
        A("s_waitcnt lgkmcnt(0)\ns_barrier")
        NXW = (NCH + 63) // 64
        NL2 = opt.get('l2pf', 0)
        if NL2:
            A(f"v_bfe_u32 v12, v0, 3, 2\nv_bfe_u32 v13, v0, 5, 1\nv_lshl_add_u32 v12, v13, 8, v12\nv_lshlrev_b32 v12, 11, v12\nv_and_b32 v13, 7, v0\nv_lshl_add_u32 v12, v13, 7, v12")
            A(f"s_mul_i32 s3, s{qKH}, 1792\ns_lshr_b32 s4, s2, 3\ns_lshl_b32 s4, s4, 3\ns_add_u32 s3, s3, s4\ns_lshl_b32 s4, s{qMH}, 2\ns_add_u32 s3, s3, s4\ns_add_u32 s3, s3, 512\ns_lshl_b32 s3, s3, 11\ns_and_b32 s4, s2, 1\ns_lshl_b32 s4, s4, 10\ns_add_u32 s3, s3, s4")
            A(f"buffer_load_dword a236, v12, s[{qB}:{qB+3}], s3 offen")
            if NL2 > 2: A(f"s_add_u32 s3, s3, {512*2048}\nbuffer_load_dword a236, v12, s[{qB}:{qB+3}], s3 offen")
            A(f"v_bfe_u32 v12, v0, 3, 3\nv_lshlrev_b32 v12, 11, v12\nv_lshl_add_u32 v12, v13, 7, v12")
            A(f"s_and_b32 s3, s2, 1\ns_lshl_b32 s3, s3, 9\ns_lshr_b32 s4, s2, 3\ns_lshl_b32 s4, s4, 4\ns_add_u32 s3, s3, s4\ns_lshl_b32 s4, s{qMH}, 3\ns_add_u32 s3, s3, s4\ns_lshl_b32 s3, s3, 11\nv_add_u32 v12, s3, v12")
            A(f"global_load_dword a237, v12, s[52:53]")
            if NL2 > 2: A(f"global_load_dword a237, v12, s[52:53] offset:1024")
        vC = 12
        A(f"v_min_u32 v{vC}, {NCH-1}, v0\nv_lshlrev_b32 v{vC}, 3, v{vC}")
        A(f"s_lshl_b32 s39, s{sRB}, 14\ns_lshl_b32 s3, s{sCh}, 4\ns_add_u32 s39, s39, s3\ns_add_u32 s39, s39, {EX_OFF}")
        A(f"s_cmp_ge_u32 s{sWV}, {NXW}\ns_cbranch_scc1 L_k2_nox1{nm}")
        for s_ in range(16): A(f"ds_read_b64 a[{WF+2*s_}:{WF+2*s_+1}], v{vC} offset:{EL + s_*EP}")
        A(f"v_accvgpr_read_b32 v14, a{PAR+30}\nv_accvgpr_read_b32 v15, a{PAR+31}")
        A(f"v_mov_b32 v16, 0\nv_mov_b32 v17, 0\nds_write_b64 v{vC}, v[16:17] offset:{PL}\ns_waitcnt lgkmcnt(0)")
        R = [16, 18, 20, 22]
        for s_ in range(16):
            p_ = R[s_ % 4]; c_ = R[(s_+1) % 4]
            A(f"v_accvgpr_read_b32 v{c_}, a{WF+2*s_}\nv_accvgpr_read_b32 v{c_+1}, a{WF+2*s_+1}")
            for x in cfma(c_, p_, 14): A(x)
            if s_ < 15: A(f"ds_write_b64 v{vC}, {pk(c_)} offset:{PL+(s_+1)*EP}")
        A(f"v_mov_b32 v24, v16\nv_mov_b32 v25, 1\nv_mov_b32 v26, v17\nv_mov_b32 v27, 1\nv_lshlrev_b32 v13, 1, v{vC}\ns_add_u32 s3, s39, {7*16384}")
        A(f"buffer_store_dwordx4 v[24:27], v13, s[{sWS}:{sWS+3}], s3 offen sc1")
        A(f"L_k2_nox1{nm}:")
        pstamp(A, opt, 1, 4)
        C1 = -2.0*math.sqrt(2/math.pi)*LOG2E; C2 = C1*0.044715
        A(f"s_mov_b32 s4, {hx(f2u(C1))}\ns_mov_b32 s6, {hx(f2u(C2))}\ns_mov_b32 s7, s6")
        vH = 30
        A(f"v_bfe_u32 v16, v0, 4, 1\nv_bfe_u32 v17, v0, 5, 1\nv_and_b32 v18, 15, v0\nv_lshlrev_b32 v{vH}, 10, v16\nv_lshl_add_u32 v{vH}, v17, 8, v{vH}\nv_lshl_add_u32 v{vH}, v18, 4, v{vH}")
        A(f"v_mov_b32 v16, s4\nv_lshlrev_b32 v13, 1, v12\nv_mov_b32 v31, v{vE}")
        vE = 31
        A(f"s_mul_i32 s40, s{sTB}, {112*4096}\ns_add_u32 s40, s40, {H_OFF}\ns_lshl_b32 s41, s{sCol}, 7\ns_add_u32 s40, s40, s41")
        for k in range(1, NP // 2): A(f"s_add_u32 s{40+k}, s40, {k*4096}")
        TMP = [18, 20, 22, 28]
        NB = 2*NP
        ER = 32
        eloads = []
        for d in range(7):
            eloads.append(f"s_add_u32 s3, s39, {d*16384}")
            eloads.append(f"buffer_load_dwordx4 v[{ER+4*d}:{ER+4*d+3}], v13, s[{sWS}:{sWS+3}], s3 offen sc1")
        ESLOT = NB - opt.get('eslot', 4)
        nst_after = 0
        for b in range(NB):
            p, i0 = b >> 1, (b & 1)*2
            if 2*p < 14:
                G = acc(2*p, i0)[1]; U = acc(2*p+1, i0)[1]
            else:
                G = acc(4, i0)[1]; U = acc(5, i0)[1]
                for h in range(8): A(rd(G+h, 2*p, i0 + (h >> 2), h & 3) + "\n" + rd(U+h, 2*p+1, i0 + (h >> 2), h & 3))
            if b == ESLOT:
                A(f"s_cmp_ge_u32 s{sWV}, {NXW}\ns_cbranch_scc1 L_k2_noel{nm}")
                for x in eloads: A(x)
                A(f"L_k2_noel{nm}:")
            for h in range(4): A(f"v_pk_mul_f32 {pk(TMP[h])}, {pk(G+2*h)}, {pk(G+2*h)}")
            for h in range(4): A(f"v_pk_mul_f32 {pk(U+2*h)}, {pk(U+2*h)}, {pk(G+2*h)}")
            for h in range(4): A(f"v_pk_fma_f32 {pk(TMP[h])}, {pk(TMP[h])}, s[6:7], v[16:17] op_sel_hi:[1,1,0]")
            for h in range(4): A(f"v_pk_mul_f32 {pk(G+2*h)}, {pk(G+2*h)}, {pk(TMP[h])}")
            for h in range(8): A(f"v_exp_f32 v{G+h}, v{G+h}")
            for h in range(4): A(f"v_pk_add_f32 {pk(G+2*h)}, {pk(G+2*h)}, 1.0 op_sel_hi:[1,0]")
            for h in range(8): A(f"v_rcp_f32 v{G+h}, v{G+h}")
            for h in range(4): A(f"v_pk_mul_f32 {pk(U+2*h)}, {pk(U+2*h)}, {pk(G+2*h)}")
            for h in (0, 2, 1, 3): A(f"v_cvt_pk_bf16_f32 v{G+h}, v{U+2*h}, v{U+2*h+1}")
            A(f"v_permlane16_swap_b32 v{G}, v{G+2}\ns_nop 0\nv_permlane16_swap_b32 v{G+1}, v{G+3}")
            A(f"buffer_store_dwordx4 v[{G}:{G+3}], v{vH}, s[{sWS}:{sWS+3}], s{40+(p>>1)} offen offset:{(p&1)*512 + i0*1024}{SC}")
            if b >= ESLOT: nst_after += 1
        pstamp(A, opt, 1, 5)
        A(f"s_cmp_ge_u32 s{sWV}, {NXW}\ns_cbranch_scc1 L_k2_nox2{nm}")
        A(f"s_mov_b32 s55, 0x40000\ns_waitcnt vmcnt({nst_after})")
        A(f"L_k2_poll{nm}:\nv_mov_b32 v18, 1")
        for d in range(7): A(f"v_min3_u32 v18, v18, v{ER+4*d+1}, v{ER+4*d+3}")
        A(f"v_cmp_ne_u32 vcc, 1, v18\ns_cbranch_vccz L_k2_got{nm}\ns_sleep 1")
        for x in eloads: A(x)
        A(f"s_waitcnt vmcnt(0)\ns_sub_u32 s55, s55, 1\ns_cmp_lg_u32 s55, 0\ns_cbranch_scc1 L_k2_poll{nm}\nL_k2_got{nm}:")
        A(f"v_accvgpr_read_b32 v18, a{PAR+32}\nv_accvgpr_read_b32 v19, a{PAR+33}")
        for d in range(7): A(f"v_mov_b32 v{ER+4*d+1}, v{ER+4*d+2}")
        for d in range(1, 7):
            for x in cfma(ER+4*d, ER+4*(d-1), 18): A(x)
        A(f"ds_write_b64 v{vC}, {pk(ER+24)} offset:{HL}\ns_waitcnt lgkmcnt(0)")
        A(f"L_k2_nox2{nm}:")

        def finish(ffn, u):
            if ffn: setup3(True)
            A("s_waitcnt vmcnt(0)\ns_barrier")
            signal(A, sWV, sWS, f"s_lshl_b32 s3, s2, 7\ns_add_u32 s3, s3, {CNT_H}", 28, f"h{u}")
            pstamp(A, opt, 1, 6)
            CY, HH, PW_, CF, LM = 32, 44, 56, 68, 80
            vW, vRd = 28, 29
            A("v_and_b32 v90, 15, v0\nv_lshlrev_b32 v90, 3, v90")
            for q in range(NS):
                A(f"ds_read_b64 {pk(CY+2*q)}, v{vE} offset:{PL+q*128}\nds_read_b64 {pk(HH+2*q)}, v90 offset:{HL+q*128}")
            for q in range(NS):
                for h in range(2): A(f"v_accvgpr_read_b32 v{PW_+2*q+h}, a{PAR+q*6+4+h}\nv_accvgpr_read_b32 v{CF+2*q+h}, a{PAR+q*6+2+h}\nv_accvgpr_read_b32 v{LM+2*q+h}, a{PAR+q*6+h}")
            TB0 = 110592; TQ = 32*144
            A(f"s_mul_i32 s3, s{sWV}, {2*TQ}\ns_add_u32 s3, s3, {TB0}")
            A(f"v_and_b32 v{vW}, 15, v0\nv_mul_u32_u24 v{vW}, 144, v{vW}\nv_bfe_u32 v91, v0, 4, 2\nv_lshl_add_u32 v{vW}, v91, 5, v{vW}\nv_add_u32 v{vW}, s3, v{vW}")
            A(f"v_bfe_u32 v{vRd}, v0, 5, 1\nv_bfe_u32 v91, v0, 2, 2\nv_lshl_add_u32 v{vRd}, v{vRd}, 3, v91\nv_mul_u32_u24 v{vRd}, 144, v{vRd}\nv_and_b32 v91, 3, v0\nv_lshl_add_u32 v{vRd}, v91, 5, v{vRd}\nv_bfe_u32 v91, v0, 4, 1\nv_lshl_add_u32 v{vRd}, v91, 3, v{vRd}\nv_add_u32 v{vRd}, s3, v{vRd}")
            A(f"s_lshl_b32 s40, s{sTB}, 18\ns_add_u32 s40, s40, {HS_OFF}\ns_lshr_b32 s41, s{sCh}, 4")
            A("s_waitcnt lgkmcnt(0)")
            for h in range(2):
                for q in range(NS): A(cfma(CY+2*q, HH+2*q, PW_+2*q)[h])
            if NS == 1: ST, O0, OB, LD0, LB = 44, 96, 0, 112, 0
            else: ST, O0, OB, LD0, LB = 44, 96, 32, 112, 32
            def calc(q):
                OR_, OI_ = O0 + (q & 1)*OB, O0 + 8 + (q & 1)*OB
                o = []
                for n in range(16):
                    i, r = n >> 2, n & 3
                    c_ = ST + 2*(n & 1); p_ = CY + 2*q if n == 0 else ST + 2*((n-1) & 1); o_ = ST + 4 + 2*(n & 1)
                    o += [rd(c_, jre(q), i, r), rd(c_+1, jim(q), i, r)] + cfma(c_, p_, LM+2*q)
                    o += [f"v_pk_mul_f32 {pk(o_)}, {pk(c_)}, {pk(CF+2*q)} op_sel_hi:[1,0]", cfma(o_, c_, CF+2*q)[1]]
                    if n & 1: o += [f"v_cvt_pk_bf16_f32 v{OR_+(n>>1)}, v{ST+4}, v{ST+6}", f"v_cvt_pk_bf16_f32 v{OI_+(n>>1)}, v{ST+5}, v{ST+7}"]
                return o
            def wr(q):
                o = []
                for part in range(2):
                    b = O0 + 8*part + (q & 1)*OB; off = (q & 1)*TQ + part*16*144
                    o += [f"ds_write_b128 v{vW}, v[{b}:{b+3}] offset:{off}", f"ds_write_b128 v{vW}, v[{b+4}:{b+7}] offset:{off+16}"]
                for part in range(2):
                    for k in range(2):
                        d = LD0 + (q & 1)*LB + (part*2+k)*4
                        o += [f"ds_read_b64_tr_b16 v[{d+2*h}:{d+2*h+1}], v{vRd} offset:{(q & 1)*TQ + (part*16 + 4*h)*144 + k*16}" for h in range(2)]
                return o
            def st(q):
                o = [f"s_add_u32 s42, s41, {q}\ns_lshr_b32 s43, s42, 1\ns_lshl_b32 s43, s43, 12\ns_and_b32 s42, s42, 1\ns_lshl_b32 s42, s42, 9\ns_add_u32 s43, s43, s42\ns_add_u32 s43, s43, s40\ns_add_u32 s42, s43, {32*4096}\ns_waitcnt lgkmcnt(0)"]
                for part in range(2):
                    for k in range(2):
                        d = LD0 + (q & 1)*LB + (part*2+k)*4
                        o.append(f"buffer_store_dwordx4 v[{d}:{d+3}], v{vH}, s[{sWS}:{sWS+3}], s{43-part} offen offset:{k*2048}{SC}")
                return o
            for q in range(NS + 1):
                c = calc(q) if q < NS else []
                side = (wr(q-1) + st(q-1)) if q > 0 else []
                step = max(1, len(c) // max(1, len(side)))
                k = 0
                for n_, x in enumerate(c):
                    A(x)
                    if side and n_ % step == step - 1 and k < len(side): A(side[k]); k += 1
                for x in side[k:]: A(x)
            pstamp(A, opt, 1, 7)
            pstamp(A, opt, 2, 0)
            if ffn:
                A("s_branch L_k3_ffn")
            else:
                A("s_branch L_k3_ssm")
        if NP == 8:
            A(f"s_cmp_eq_u32 s{qRole}, 0\ns_cbranch_scc1 L_finAs")
            finish(True, "Af")
            A("L_finAs:")
            finish(False, "As")
        else:
            finish(False, "B")
    body(8, 1, "A")
    A("L_k2_B:")
    body(4, 5, "B")

    A("L_k3_code:")
    def role(ffn):
        nm = "ffn" if ffn else "ssm"
        A(f"L_k3_{nm}:")
        def frag_reads(j, st, hk, f):
            d = BF + j*4
            if f: return [Op(f"ds_read_b64_tr_b16 a[{d+2*h}:{d+2*h+1}], v{vR[j]} offset:{st*16384 + hk*8192 + h*1024}", 'lds', f"f{j}") for h in range(2)]
            return [Op(f"ds_read_b128 a[{d}:{d+3}], v{vR2[(j>>2)*2 + hk]} offset:{st*16384 + (j&3)*2048}", 'lds', f"f{j}")]
        if not ffn: setup3(False)
        A(f"v_and_b32 v{vFO}, 31, v0\nv_lshlrev_b32 v{vFO}, 7, v{vFO}")
        A(mload(qCnt))
        for j in range(8): emit(frag_reads(j, 0, 0, True))
        wait_all(qCnt, "ch" + nm)
        emit(proa)
        pstamp(A, opt, 2, 1)
        A(f"s_mov_b32 s{sTrip}, 0\ns_barrier\ns_waitcnt vmcnt(0) lgkmcnt(0)")
        signal(A, sWV, sWS, sigS_addr, t0, "s" + nm)
        extra = []; late = []
        BARG = opt.get('barg3', 2)
        def trip(cur, nxt, kind):
            body = []
            ex = list(extra) if kind == 'last' else []
            for t in range(8):
                mf = []
                for j in range(8):
                    order = range(4) if j % 2 == 0 else range(3, -1, -1)
                    for n, i in enumerate(order):
                        if kind == 'F': c = f"v[{64+(j*4+i)*4}:{64+(j*4+i)*4+3}]" if j < 4 else f"a[{160+((j-4)*4+i)*4}:{160+((j-4)*4+i)*4+3}]"
                        else: c = f"v[{acc3(j,i)}:{acc3(j,i)+3}]"
                        cin = "0" if (kind in ('F', 'S0') and t == 0) else c
                        mf.append(Op(f"v_mfma_f32_16x16x32_bf16 {c}, a[{AB+t*16+i*4}:{AB+t*16+i*4+3}], a[{BF+j*4}:{BF+j*4+3}], {cin}",
                                     need_vm=(f"x{t}" if (j == 0 and n == 0) else None), need_lds=(f"f{j}" if n == 0 else None)))
                vmo = []
                if kind == 'F' and t + AD == 8:
                    vmo.append(Op(f"s_mov_b32 s55, 0x40000\nL_wcs:\nv_cmp_ne_u32 vcc, 1, v{vFL}\ns_cbranch_vccnz L_k3_spin\nL_gcs:", need_vm='cs'))
                if kind == 'S0' and t >= 4:
                    if t < 7: vmo += a3(AD + 4 + 2*(t-4)) + a3(AD + 5 + 2*(t-4))
                elif kind == 'S1' and t < 2: pass
                elif t + AD < 8 or nxt is not None: vmo += a3(t + AD, switch=(kind == 'F'))
                if kind == 'S0' and t == 7:
                    for k in range(8):
                        if k % 4 == 0 and k: vmo.append(Op("s_add_u32 s66, s66, 4096"))
                        vmo.append(Op(f"buffer_store_dwordx4 v[{64+4*k}:{67+4*k}], v{vA}, s[{sWS}:{sWS+3}], s66 offen offset:{(k&3)*1024} sc1", 'vm', 'ps'))
                sg = (t + 5) >> 1
                if sg < 4: vmo += dma3(sg, (t + 1) % 2, cur)
                elif nxt is not None: vmo += dma3(sg % 4, (t + 1) % 2, nxt)
                if kind == 'F' and t + AD == 6: vmo.append(Op(mload(qCnt2), 'vm', 'cs'))
                if ffn and kind == 'loop' and t == 4: vmo.append(Op(cload(vFL, 67), 'vm', 'fl'))
                if kind == 'last':
                    nv = sum(1 for o in vmo if o.kind == 'vm')
                    while ex and nv < 8 and t >= 3:
                        o = ex.pop(0); vmo.append(o); nv += o.kind == 'vm'
                    if t == 6: vmo += late
                fin = nxt is None and t == 7
                if t % 2 == 0: st, hk, first = t >> 1, 1, 0
                else: st, hk, first = ((t >> 1) + 1) % 4, 0, BARG*4 - 1
                rd = []
                if not fin:
                    for j in range(8):
                        for o in frag_reads(j, st, hk, nxt if t == 7 else cur): rd.append((max(j*4 + 3, first), o))
                sp = 30.0 / max(1, len(vmo))
                vm = [(int(k*sp), o) for k, o in enumerate(vmo)]
                px = []
                if kind == 'S0':
                    if t in (0, 4):
                        r_ = t >> 2
                        px = [(6 + 3*k, Op(f"ds_write_b128 v{vSW}, a[{160+32*r_+4*k}:{160+32*r_+4*k+3}] offset:{k*1024}", 'lds', 'pw')) for k in range(8)]
                    if t in (1, 2, 5, 6):
                        r_ = t >> 2; k0 = 4*((t - 1) & 1); base = first + 1
                        px = [(base + k, Op(f"ds_read_b128 v[{44+4*k}:{47+4*k}], v{vSR} offset:{(k0+k)*1024}", 'lds', f"pr{k}")) for k in range(4)]
                        for k in range(4):
                            y = 64 + (8*r_ + k0 + k)*4
                            e = base + 9 + 3*k + (k if t % 2 == 0 else 0)
                            px.append((e, Op(f"v_pk_add_f32 {pk(y)}, {pk(y)}, {pk(44+4*k)}\nv_pk_add_f32 {pk(y+2)}, {pk(y+2)}, {pk(46+4*k)}", need_lds=f"pr{k}")))
                slots = spread(32, [rd, vm], per_gap=1)
                slots2 = spread(32, [px], per_gap=1)
                for m in range(32):
                    body.append(mf[m])
                    if t % 2 == 1 and m == first and not fin:
                        body.append(Op("s_waitcnt lgkmcnt(0)", 'lgkm0', need_vm=f"d{st}"))
                        body.append(Op("s_barrier"))
                        if kind == 'S1' and t == 5:
                            body.append(Op(f"s_cmp_eq_u32 s{sWV}, 0\ns_cbranch_scc1 L_k3_sig\nL_k3_sigret:"))
                    body.extend(slots[m]); body.extend(slots2[m])
            assert not ex, len(ex)
            return body
        loop = trip(ffn, ffn, 'loop')
        pstamp(A, opt, 2, 2)
        if not ffn:
            tF = trip(True, False, 'F'); tS = trip(False, False, 'S0')
            put(resolve_seq(trip(True, True, 'x'), tF, lgkm_slack=4))
            if not opt.get('st2'): pstamp(A, opt, 0, 2)
            put(resolve_seq(tF, tS, lgkm_slack=4))
            if not opt.get('st2'): pstamp(A, opt, 0, 3)
            tS1 = trip(False, False, 'S1')
            put(resolve_seq(tS, tS1, lgkm_slack=4))
            if opt.get('cpf', 1): A(f"s_getpc_b64 s[58:59]\nL_pc3{nm}:\ns_add_u32 s58, s58, L_k3_last{nm}-L_pc3{nm}\ns_addc_u32 s59, s59, 0\nv_lshlrev_b32 v{t0}, 6, v0\nv_min_u32 v{t0}, {min(0,0)}+L_k3_stop{nm}-L_k3_last{nm}-4, v{t0}\nglobal_load_dword a238, v{t0}, s[58:59]")
            put(resolve_seq(tS1, loop, lgkm_slack=4))
        else:
            A(f".p2align 6\nL_k3_{nm}_loop:")
            put(resolve_loop(loop, lgkm_slack=4))
            A(f"s_add_u32 s{sTrip}, s{sTrip}, 1")
            if opt.get('cpf', 1):
                A(f"s_cmp_lg_u32 s{sTrip}, 4\ns_cbranch_scc1 L_k3_nocp")
                A(f"s_getpc_b64 s[58:59]\nL_pc3{nm}:\ns_add_u32 s58, s58, L_k3_last{nm}-L_pc3{nm}\ns_addc_u32 s59, s59, 0\nv_lshlrev_b32 v{t0}, 6, v0\nv_min_u32 v{t0}, {min(0,0)}+L_k3_stop{nm}-L_k3_last{nm}-4, v{t0}\nglobal_load_dword a238, v{t0}, s[58:59]")
                A("L_k3_nocp:")
            A(f"s_cmp_lt_u32 s{sTrip}, 5\ns_cbranch_scc1 L_k3_{nm}_loop")
        if ffn:
            nafter = 0
            for o in reversed(loop):
                if o.tag == 'fl': break
                nafter += o.kind == 'vm'
            wait_word(vFL, 67, 1, "fp", nafter)
        pstamp(A, opt, 0, 4)
        A(f"L_k3_last{nm}:")
        E = acc3(4, 0)
        Y = lambda k: ACC + 4*k
        EE = lambda k: E + 4*k
        M0_ = 0 if ffn else 2; H0 = 2 - M0_
        own = list(range(4*M0_, 4*M0_ + 8)); hand = list(range(4*H0, 4*H0 + 8))
        PY, RR = (64, 96) if ffn else (96, 64)
        A(f"s_lshl_b32 s3, s{sWV}, 2\ns_add_u32 s{qFL}, s{qFL}, s3\ns_add_u32 s67, s67, s3\ns_add_u32 s67, s67, 32\ns_add_u32 s42, s{qS}, 8192")
        fS, fR, bS, bR = (67, qFL, 42, qS) if ffn else (qFL, 67, qS, 42)
        A(f"s_add_u32 s43, s{bS}, 4096\ns_add_u32 s54, s{bR}, 4096\ns_cmp_eq_u32 s{qKH}, 0\ns_cselect_b32 s40, 2.0, -2.0\ns_mov_b32 s41, s40\nv_mov_b32 v31, 1")
        def comb(k):
            y = Y(k); e = EE(k)
            if ffn: return [f"v_pk_add_f32 {pk(y+h)}, {pk(y+h)}, {pk(e+h)}" for h in (0, 2)]
            return [f"v_pk_add_f32 {pk(y+h)}, {pk(y+h)}, {pk(e+h)} neg_lo:[0,1] neg_hi:[0,1]" for h in (0, 2)] + [f"v_pk_mul_f32 {pk(y+h)}, {pk(y+h)}, s[40:41]" for h in (0, 2)]
        def twopass():
            body = []
            tl = [[H0, H0+1, H0+4, H0+5], [M0_, M0_+1, M0_+4, M0_+5]]
            fr = lambda g, n: tl[g & 1][n]
            def reads(g):
                p_, t = g >> 3, g & 7
                o = []
                for n in range(4):
                    for x in frag_reads(tl[p_][n], t >> 1, t & 1, ffn):
                        d0 = BF + tl[p_][n]*4; d1 = BF + fr(g, n)*4
                        a_, b_ = [int(z) for z in x.text.split('a[')[1].split(']')[0].split(':')]
                        o.append(Op(x.text.replace(f"a[{a_}:{b_}]", f"a[{a_-d0+d1}:{b_-d0+d1}]"), 'lds', f"f{fr(g, n)}"))
                return o
            vq = a3(2) + dma3(2, 1, ffn) + a3(3) + dma3(3, 0, ffn) + a3(4) + dma3(3, 1, ffn) + a3(5) + a3(6) + a3(7)
            assert AD == 2
            vq += [Op(f"global_load_ushort v{28+m}, v{vDK}, s[44:45] offset:{m*32}", 'vm', 'e') for m in range(2)]
            if ffn:
                for k in range(8):
                    if k == 4: vq.append(Op("s_add_u32 s66, s66, 4096"))
                    vq.append(Op(f"buffer_load_dwordx4 v[{PY+k*4}:{PY+k*4+3}], v{vA}, s[{sWS}:{sWS+3}], s66 offen offset:{(k&3)*1024} sc1", 'vm', 'e'))
            WS_, B1, SS, XS, FQ = opt.get('q_w', 2), opt.get('q_b1', 20), opt.get('q_s', 3), opt.get('q_x', 8), opt.get('q_f', 112)
            barop = lambda: Op("s_waitcnt lgkmcnt(0)\ns_barrier", 'lgkm0')
            sched2 = [(3 + WS_*k, Op(f"ds_write_b128 v{vSW}, v[{EE(kk)}:{EE(kk)+3}] offset:{k*1024}", 'lds', 'w')) for k, kk in enumerate(hand)]
            sched2.append((B1, barop()))
            sched2 += [(B1 + 1 + k, Op(f"ds_read_b128 v[{EE(kk)}:{EE(kk)+3}], v{vSR} offset:{k*1024}", 'lds', f"e{k}")) for k, kk in enumerate(hand)]
            for k, kk in enumerate(hand):
                sched2.append((B1 + 12 + SS*k, Op("\n".join(comb(kk)), need_lds=f"e{k}")))
                sched2.append((B1 + 13 + SS*k, Op(f"buffer_store_dwordx4 v[{Y(kk)}:{Y(kk)+3}], v{vA}, s[{sWS}:{sWS+3}], s{bS if k < 4 else 43} offen offset:{(k&3)*1024} sc1", 'vm', 'hs')))
            X0 = B1 + 12 + SS*8
            sched2.append((X0, barop()))
            for n in range(4):
                sched2.append((X0 + 1 + XS*n, Op(f"s_add_u32 m0, s{qXL}, {n*1024}\ns_add_u32 s3, s{qXx}, {n*32768}")))
                sched2.append((X0 + 2 + XS*n, Op(f"buffer_load_dwordx4 v{vXD}, s[{qO}:{qO+3}], s3 offen lds", 'vm', 'e')))
            sched2.append((X0 + 1 + XS*4, Op(f"s_add_u32 m0, s{qXL}, 4096")))
            for n in range(4): sched2.append((X0 + 2 + XS*4 + (XS//2+1)*n, Op(f"buffer_load_dwordx4 v{vA}, s[{sWS}:{sWS+3}], s{qXo} offen offset:{n*1024} sc1 lds", 'vm', 'e')))
            sched2.append((FQ, Op(f"buffer_store_dword v31, off, s[{sWS}:{sWS+3}], s{fS} sc1", 'vm', 'fl', need_vm='hs')))
            sched2.sort(key=lambda z: z[0])
            assert sched2[-1][0] < 128 and sched2[-1][1].tag == 'fl'
            for g in range(16):
                p_, t = g >> 3, g & 7
                mf = []
                for n in range(4):
                    j = tl[p_][n]
                    order = range(4) if n % 2 == 0 else range(3, -1, -1)
                    for c_, i in enumerate(order):
                        c = f"v[{acc3(j,i)}:{acc3(j,i)+3}]"; f_ = BF + fr(g, n)*4
                        mf.append(Op(f"v_mfma_f32_16x16x32_bf16 {c}, a[{AB+t*16+i*4}:{AB+t*16+i*4+3}], a[{f_}:{f_+3}], {c}",
                                     need_vm=(f"x{t}" if (p_ == 0 and n == 0 and c_ == 0) else None), need_lds=(f"f{fr(g, n)}" if c_ == 0 else None)))
                bar = None
                if p_ == 0 and t in (1, 3, 5): bar = f"d{(t+1) >> 1}"
                rd = [(1 + (k if ffn else 2*k), o) for k, o in enumerate(reads(g + 1))] if g < 15 else []
                side = []
                if p_ == 0:
                    nv = 0
                    while vq and nv < (7 if t < 5 else 4):
                        o = vq.pop(0); side.append(o); nv += o.kind == 'vm'
                    side = [(int(k*15/max(1, len(side))), o) for k, o in enumerate(side)]
                if p_ == 1: side = [(q - 16*t, o) for q, o in sched2 if 16*t <= q < 16*t + 16]
                if opt.get('prof') and opt.get('st2') and g in (opt.get('st2'), opt.get('st3')):
                    T_ = Asm(); pstamp(T_, opt, 0, 2 if g == opt.get('st2') else 3); body.append(Op(T_.text(), 'lgkm0'))
                s1 = spread(16, [rd], per_gap=1); s2 = spread(16, [side], per_gap=1)
                for m in range(16):
                    body.append(mf[m])
                    if bar is not None and m == 0:
                        body.append(Op("s_waitcnt lgkmcnt(0)", 'lgkm0', need_vm=(bar or None)))
                        body.append(Op("s_barrier"))
                    body.extend(s1[m]); body.extend(s2[m])
            assert not vq
            return body
        put(resolve_seq(loop, twopass(), lgkm_slack=4))
        A(f"L_k3_epi{nm}:")
        pstamp(A, opt, 2, 3)
        A(cload(vFL, fR))
        A(f"v_add_u32 v2, s{qM}, v{vA}\nv_xor_b32 v3, 0x10000, v2")
        srd(A, qO, 46, 47, 2048*1024*4)
        A(f"s_lshl_b32 s{qXx}, s{qXx}, 1\ns_mov_b32 s4, {hx(f2u(-LOG2E))}\ns_mov_b32 s5, s4\ns_waitcnt vmcnt(2)")
        for n in range(8): A(f"ds_read_b64_tr_b16 v[{48+2*n}:{49+2*n}], v{vNR} offset:{4096 + (n & 3)*1024 + (n >> 2)*512}")
        for n in range(8): A(f"ds_read_b64_tr_b16 v[{32+2*n}:{33+2*n}], v{vXR} offset:{(n & 3)*256 + (n >> 2)*32}")
        for n, k in enumerate(own): A(f"ds_write_b128 v2, v[{EE(k)}:{EE(k)+3}] offset:{n*1024}")
        A(f"s_mov_b32 s60, s{qXx}")
        for r in range(1, 16): A(f"s_add_u32 s{60+r}, s60, {r*4096}") if False else None
        def rloads():
            for n in range(8): A(f"buffer_load_dwordx4 v[{RR+4*n}:{RR+4*n+3}], v{vA}, s[{sWS}:{sWS+3}], s{bR if n < 4 else 54} offen offset:{(n&3)*1024} sc1")
        A(f"s_waitcnt vmcnt(0)\nv_readfirstlane_b32 s61, v{vFL}\ns_cmp_eq_u32 s61, 0\ns_cbranch_scc1 L_late{nm}")
        rloads()
        A(f"L_late{nm}:\ns_waitcnt lgkmcnt(0)\ns_barrier")
        pstamp(A, opt, 2, 4)
        for n, k in enumerate(own): A(f"ds_read_b128 v[{EE(k)}:{EE(k)+3}], v3 offset:{n*1024}")
        for r in range(16): A(f"s_add_u32 s{68+r}, s60, {r*4096}")
        A("v_lshlrev_b32 v10, 16, v28\nv_lshlrev_b32 v12, 16, v29")
        XD_ = lambda n: Y(hand[n]); XX = lambda n: EE(hand[n])
        for n in range(8):
            d = XD_(n); xr = 48 + 2*n; ds_ = 10 + 2*(n >> 2); e = XX(n); q_ = 32 + 2*n
            A(f"v_lshlrev_b32 v{d}, 16, v{xr}\nv_and_b32 v{d+1}, 0xffff0000, v{xr}\nv_lshlrev_b32 v{d+2}, 16, v{xr+1}\nv_and_b32 v{d+3}, 0xffff0000, v{xr+1}")
            A(f"v_pk_mul_f32 {pk(d)}, {pk(d)}, {pk(ds_)} op_sel_hi:[1,0]\nv_pk_mul_f32 {pk(d+2)}, {pk(d+2)}, {pk(ds_)} op_sel_hi:[1,0]")
            A(f"v_cvt_pk_bf16_f32 v{xr}, v{d}, v{d+1}\nv_cvt_pk_bf16_f32 v{xr+1}, v{d+2}, v{d+3}")
            A(f"v_lshlrev_b32 v{d}, 16, v{xr}\nv_and_b32 v{d+1}, 0xffff0000, v{xr}\nv_lshlrev_b32 v{d+2}, 16, v{xr+1}\nv_and_b32 v{d+3}, 0xffff0000, v{xr+1}")
            A(f"v_lshlrev_b32 v{e}, 16, v{q_}\nv_and_b32 v{e+1}, 0xffff0000, v{q_}\nv_lshlrev_b32 v{e+2}, 16, v{q_+1}\nv_and_b32 v{e+3}, 0xffff0000, v{q_+1}")
        A("s_waitcnt lgkmcnt(0)")
        A(cload(vFL, fR))
        def sig_(e, yy):
            return [f"v_pk_mul_f32 {pk(e+h)}, {pk(yy+h)}, s[4:5]" for h in (0, 2)] + [f"v_exp_f32 v{e+h}, v{e+h}" for h in range(4)] + ["s_nop 0"] + \
                   [f"v_pk_add_f32 {pk(e+h)}, {pk(e+h)}, 1.0 op_sel_hi:[1,0]" for h in (0, 2)] + [f"v_rcp_f32 v{e+h}, v{e+h}" for h in range(4)] + ["s_nop 0"] + \
                   [f"v_pk_mul_f32 {pk(yy+h)}, {pk(yy+h)}, {pk(e+h)}" for h in (0, 2)]
        pre = []; post = []
        NG = opt.get('ng', 4)
        for n, k in enumerate(own):
            y = Y(k); e = EE(k); p_ = PY + 4*n; r_ = RR + 4*n; d = XD_(n); xx = XX(n)
            if ffn:
                a_ = comb(k) + [f"v_pk_add_f32 {pk(y+h)}, {pk(y+h)}, {pk(p_+h)}" for h in (0, 2)] + sig_(e, y)
                b_ = ["WAIT"] + [f"v_pk_add_f32 {pk(r_+h)}, {pk(r_+h)}, {pk(d+h)}" for h in (0, 2)]
            else:
                a_ = comb(k) + [f"v_pk_add_f32 {pk(y+h)}, {pk(y+h)}, {pk(d+h)}" for h in (0, 2)]
                b_ = ["WAIT"] + [f"v_pk_add_f32 {pk(r_+h)}, {pk(r_+h)}, {pk(p_+h)}" for h in (0, 2)] + sig_(e, r_)
            b_ += [f"v_pk_fma_f32 {pk(xx+h)}, {pk(y+h)}, {pk(r_+h)}, {pk(xx+h)}" for h in (0, 2)]
            pre.append(a_); post.append(b_)
        npre = NG if ffn else 8
        for a_ in pre[:npre]:
            for x in a_: A(x)
        pstamp(A, opt, 2, 5)
        A(f"s_cmp_lg_u32 s61, 0\ns_cbranch_scc1 L_have{nm}")
        wait_word(vFL, fR, 1, "r" + nm, 0)
        rloads()
        A(f"L_have{nm}:")
        pend = []; nst = 0
        for n in range(8):
            o = (pre[n + npre] if n + npre < 8 else []) + post[n]
            ev = max(1, len(o) // 4)
            for n_, x in enumerate(o):
                if x == "WAIT": x = f"s_waitcnt vmcnt({7-n+nst})"
                A(x)
                if pend and n_ % ev == ev - 1: A(pend.pop(0)); nst += 1
            for x in pend: A(x); nst += 1
            pend = [f"buffer_store_dword v{XX(n)+r}, v{vXL}, s[{qO}:{qO+3}], s{68+4*(n&3)+r} offen offset:{(n>>2)*64}{OSC}" for r in range(4)]
        for x in pend: A(x)
        pstamp(A, opt, 2, 6)
        if opt.get('prof'): A("s_waitcnt vmcnt(0)")
        pstamp(A, opt, 2, 7)
        A(f"s_endpgm\nL_k3_stop{nm}:")
        if not ffn:
            A("L_k3_sig:")
            signal(A, sWV, sWS, "s_mov_b32 s3, s67", t0, "pf")
            A("s_branch L_k3_sigret")
            A("L_k3_spin:\ns_sleep 1\n" + mload(qCnt2) + "\ns_waitcnt vmcnt(0)\ns_sub_u32 s55, s55, 1\ns_cmp_lg_u32 s55, 0\ns_cbranch_scc1 L_wcs\ns_branch L_gcs")
    role(True)
    role(False)
    A("L_end:\ns_endpgm")
    return kernel_desc("recurrent_scan__ssm_conv_s5__glu_gated_geglu__prompt_kernel", 512, 256, 102)
```

```python
from gen import *

def gen_k2(A, opt):
    kernel_head(A, "up_kernel")
    WF = 64; XB = 136; PAR = 200
    vWD = list(range(1, 10)); vX = 10
    vRW = [11, 12]; vRB = [[13, 14], [15, 16]]
    vT = 17; L = 18
    t0, t1, t2, t3 = 19, 20, 21, 22
    vP = [23, 24]; vPD = 25
    sW, sB, sX, sWS = 8, 12, 16, 20
    sRB, sU, sWV = 24, 25, 26
    sWoff, sBoff, sXoff = 27, 28, 29
    sM = [30, 31]; sMB = [32, 33]
    sDelta, sTB, sCol, sCh = 34, 36, 37, 38
    XD = 3
    WNT = " nt" if opt.get('wnt', 1) else ""
    SC = " sc1" if opt.get('sc1', 1) else ""
    PF = opt.get('pft', 9) == 9
    pk = lambda r: f"v[{r}:{r+1}]"
    A("s_cmp_ge_u32 s2, 256\ns_cbranch_scc1 L_k2_end")
    stamp(A, opt, 0)
    A(f"s_load_dwordx4 s[40:43], s[0:1], {KA['wg']}")
    A(f"s_load_dwordx4 s[44:47], s[0:1], {KA['bre']}")
    A(f"s_load_dwordx2 s[48:49], s[0:1], {KA['ws']}")
    A(f"s_load_dwordx4 s[52:55], s[0:1], {KA['cre']}")
    A(f"s_load_dwordx2 s[56:57], s[0:1], {KA['wd']}")
    A(f"v_lshrrev_b32 v{vT}, 6, v0\nv_and_b32 v{L}, 63, v0")
    A(f"s_and_b32 s3, s2, 7\ns_bfe_u32 s{sU}, s2, 0x20003\ns_lshr_b32 s{sRB}, s2, 5")
    A(f"v_readfirstlane_b32 s{sWV}, v{vT}")
    A(f"s_mul_i32 s{sCol}, s3, 448\ns_lshl_b32 s4, s{sU}, 7\ns_add_u32 s{sCol}, s{sCol}, s4")
    A(f"s_lshl_b32 s{sCh}, s3, 7\ns_lshl_b32 s4, s{sU}, 4\ns_add_u32 s{sCh}, s{sCh}, s4")
    A(f"v_lshlrev_b32 v{vX}, 4, v{L}")
    A(f"s_lshl_b32 s{sTB}, s{sRB}, 2\ns_add_u32 s{sTB}, s{sTB}, s{sWV}\ns_lshl_b32 s{sXoff}, s{sTB}, 17")
    if XN_OFF: A(f"s_add_u32 s{sXoff}, s{sXoff}, {XN_OFF}")
    A(f"s_mov_b32 s{sWoff}, 0\ns_mov_b32 s{sBoff}, 0\ns_mov_b32 s{sDelta}, {2*STAGE2}")
    A(f"s_mov_b32 s{sW+2}, {1024*3584*2}\ns_mov_b32 s{sW+3}, 0x00020000\ns_mov_b32 s{sB+2}, {1024*1024*2}\ns_mov_b32 s{sB+3}, 0x00020000")
    A(f"s_and_b32 s5, s{sWV}, 1\ns_mul_i32 s6, s5, {32*7168}\ns_lshl_b32 s7, s{sCol}, 1\ns_add_u32 s6, s6, s7\ns_movk_i32 s7, 7168")
    A(f"s_cmp_eq_u32 s{sU}, 3\ns_cbranch_scc1 L_k2_B")

    def body(NP, NS, nm):
        NT = 2*NP + 2*NS
        NWI = 8 if NP == 8 else 4
        WB = 8448 if NP == 8 else 4224
        BOFF = 4*WB
        NCH = 16*NS
        def acc(j, i):
            return ('v', 32 + (j*4+i)*4) if j < 14 else ('a', ((j-14)*4+i)*4)
        def rd(dst, j, i, r):
            f, b = acc(j, i)
            return f"v_mov_b32 v{dst}, v{b+r}" if f == 'v' else f"v_accvgpr_read_b32 v{dst}, a{b+r}"
        jre = lambda q: 2*NP + q
        jim = lambda q: 2*NP + NS + q
        if NP == 8:
            A(f"v_bfe_u32 v{t0}, v{L}, 4, 1\nv_bfe_u32 v{t1}, v{L}, 5, 1\nv_lshlrev_b32 v{t0}, 2, v{t0}\nv_lshl_or_b32 v{t0}, v{t1}, 4, v{t0}\nv_and_b32 v{t1}, 15, v{L}")
        else:
            A(f"v_bfe_u32 v{t0}, v{L}, 3, 1\nv_bfe_u32 v{t1}, v{L}, 4, 1\nv_lshlrev_b32 v{t0}, 3, v{t0}\nv_lshl_or_b32 v{t0}, v{t1}, 2, v{t0}\nv_bfe_u32 v{t1}, v{L}, 5, 1\nv_lshl_or_b32 v{t0}, v{t1}, 4, v{t0}\nv_and_b32 v{t1}, 7, v{L}")
        A(f"v_mul_u32_u24 v{t0}, s7, v{t0}\nv_lshl_add_u32 v{t0}, v{t1}, 4, v{t0}\nv_add_u32 v{vWD[0]}, s6, v{t0}")
        for n in range(1, NWI):
            A(f"v_add_u32 v{vWD[n]}, {((n&3) + 8*(n>>2))*7168 - (n&3)*1056}, v{vWD[0]}")
        vBD = vWD[NWI:NWI+NS]
        A(f"s_mul_i32 s3, s5, {8*NS}\ns_add_u32 s3, s3, s{sCh}\ns_lshl_b32 s3, s3, 11\ns_lshl_b32 s4, s5, 2")
        A(f"v_lshrrev_b32 v{t0}, 4, v{L}\nv_and_b32 v{t1}, 7, v{L}\nv_xor_b32 v{t1}, v{t1}, v{t0}\nv_xor_b32 v{t1}, s4, v{t1}\nv_lshrrev_b32 v{t2}, 3, v{L}\nv_lshlrev_b32 v{t2}, 11, v{t2}\nv_add_u32 v{t2}, s3, v{t2}")
        A(f"v_lshl_add_u32 v{vBD[0]}, v{t1}, 4, v{t2}")
        if NS > 1:
            A(f"v_xor_b32 v{t1}, 64, v{vBD[0]}")
            for n in range(1, NS): A(f"v_add_u32 v{vBD[n]}, {n*16384 - (n&3)*1024}, v{t1 if n&1 else vBD[0]}")
        A(f"s_mul_i32 s{sM[0]}, s{sWV}, {WB}\ns_add_u32 s{sM[1]}, s{sM[0]}, {STAGE2}")
        A(f"s_mul_i32 s{sMB[0]}, s{sWV}, {NS*1024}\ns_add_u32 s{sMB[0]}, s{sMB[0]}, {BOFF}\ns_add_u32 s{sMB[1]}, s{sMB[0]}, {STAGE2}")
        A("s_waitcnt lgkmcnt(0)")
        A(f"s_cmp_lt_u32 s{sWV}, 2\ns_cselect_b32 s{sW}, s40, s42\ns_cselect_b32 s{sW+1}, s41, s43\ns_cselect_b32 s{sB}, s44, s46\ns_cselect_b32 s{sB+1}, s45, s47")
        A(f"s_cselect_b32 s52, s52, s54\ns_cselect_b32 s53, s53, s55")
        srd(A, sX, 48, 49, XN_OFF + 2048*1024*2)

        def dma_ops(par, part):
            tag = f"d{par}"
            wl = lambda n: Op(f"buffer_load_dwordx4 v{vWD[n]}, s[{sW}:{sW+3}], s{sWoff} offen offset:{(n&3)*1056}{WNT} lds", 'vm', tag)
            bl = lambda n: Op(f"buffer_load_dwordx4 v{vBD[n]}, s[{sB}:{sB+3}], s{sBoff} offen offset:{(n&3)*1024}{WNT} lds", 'vm', tag + "e")
            o = []
            if part == 0:
                o.append(Op(f"s_mov_b32 m0, s{sM[par]}"))
                o += [wl(n) for n in range(4)]
            else:
                if NWI == 8:
                    o.append(Op(f"s_add_u32 m0, s{sM[par]}, {4*1056}"))
                    o += [wl(n) for n in range(4, 8)]
                o.append(Op(f"s_mov_b32 m0, s{sMB[par]}"))
                o.append(Op(f"s_add_u32 s{sWoff}, s{sWoff}, {64*7168}"))
                o += [bl(n) for n in range(min(NS, 4))]
                if NS == 5:
                    o.append(Op(f"s_add_u32 m0, s{sMB[par]}, 4096"))
                    o.append(bl(4))
                o.append(Op(f"s_add_u32 s{sBoff}, s{sBoff}, 128"))
                o.append(Op(f"s_add_u32 s{sM[par]}, s{sM[par]}, s{sDelta}"))
                o.append(Op(f"s_add_u32 s{sMB[par]}, s{sMB[par]}, s{sDelta}"))
            return o
        def x_ops(buf):
            o = []
            for i in range(4):
                r = XB + buf*16 + i*4
                o.append(Op(f"buffer_load_dwordx4 a[{r}:{r+3}], v{vX}, s[{sX}:{sX+3}], s{sXoff} offen offset:{i*1024}", 'vm', f"x{buf}"))
            o.append(Op(f"s_add_u32 s{sXoff}, s{sXoff}, 4096"))
            return o
        def put(lines):
            prev = ""
            for x in lines:
                if ' m0,' in prev and x.endswith('lds'): A("s_nop 0")
                A(x); prev = x
        emit = lambda ops: put([o.text for o in ops])
        emit(dma_ops(0, 0) + dma_ops(0, 1) + x_ops(0))
        srd(A, sWS, 48, 49, WS_END)
        for r in range(32, 256): A(f"v_mov_b32 v{r}, 0")
        A(f"v_and_b32 v{t0}, 15, v{L}\nv_add_u32 v{t0}, s{sCh}, v{t0}\nv_lshlrev_b32 v{t1}, 5, v{t0}")
        A(f"v_lshrrev_b32 v{t2}, 4, v0\nv_lshlrev_b32 v{t2}, 13, v{t2}\nv_lshl_add_u32 v{t2}, v{t0}, 3, v{t2}\ns_mov_b32 s3, {PT_OFF}\ns_mov_b32 s4, {PW_OFF}")
        A(f"v_min_u32 v{t3}, {NCH-1}, v0\nv_add_lshl_u32 v{t3}, v{t3}, s{sCh}, 5")
        for q in range(NS):
            pa = PAR + q*6
            A(f"buffer_load_dwordx4 a[{pa}:{pa+3}], v{t1}, s[{sWS}:{sWS+3}], s3 offen offset:{q*512}")
            A(f"buffer_load_dwordx2 a[{pa+4}:{pa+5}], v{t2}, s[{sWS}:{sWS+3}], s4 offen offset:{q*128}")
        A(f"buffer_load_dwordx4 a[{PAR+30}:{PAR+33}], v{t3}, s[{sWS}:{sWS+3}], s3 offen offset:16")
        NPAR = 2*NS + 1
        for r in range(64): A(f"v_accvgpr_write_b32 a{r}, 0")
        if NP == 8:
            A(f"v_bfe_u32 v{t0}, v{L}, 2, 3\nv_mul_u32_u24 v{t0}, 1056, v{t0}")
        else:
            A(f"v_bfe_u32 v{t0}, v{L}, 2, 2\nv_mul_u32_u24 v{t0}, 1056, v{t0}\nv_bfe_u32 v{t1}, v{L}, 4, 1\nv_lshl_add_u32 v{t0}, v{t1}, 7, v{t0}")
        A(f"v_bfe_u32 v{t1}, v{L}, 5, 1\nv_lshl_add_u32 v{t0}, v{t1}, 9, v{t0}\nv_and_b32 v{t1}, 3, v{L}\nv_lshl_add_u32 v{vRW[0]}, v{t1}, 3, v{t0}\nv_add_u32 v{vRW[1]}, {STAGE2}, v{vRW[0]}")
        A(f"v_and_b32 v{t0}, 15, v{L}\nv_lshrrev_b32 v{t1}, 1, v{t0}\nv_lshrrev_b32 v{t2}, 4, v{L}\nv_xor_b32 v{t1}, v{t1}, v{t2}\nv_lshlrev_b32 v{t1}, 4, v{t1}")
        A(f"v_lshl_add_u32 v{t0}, v{t0}, 7, v{t1}\nv_xor_b32 v{t1}, 64, v{t0}\nv_add_u32 v{vRB[0][0]}, {BOFF}, v{t0}\nv_add_u32 v{vRB[0][1]}, {BOFF}, v{t1}")
        A(f"v_add_u32 v{vRB[1][0]}, {STAGE2}, v{vRB[0][0]}\nv_add_u32 v{vRB[1][1]}, {STAGE2}, v{vRB[0][1]}")
        if PF:
            A(f"s_lshl_b32 s3, s2, 2\ns_add_u32 s3, s3, s{sWV}\ns_mul_i32 s4, s3, 7\nv_min_u32 v{t0}, 6, v{L}\nv_add_lshl_u32 v{vP[0]}, v{t0}, s4, 7")
            A(f"s_lshl_b32 s3, s2, 1\ns_add_u32 s3, s3, s5\ns_lshl_b32 s3, s3, 2\nv_and_b32 v{t0}, 3, v{L}\nv_add_lshl_u32 v{vP[1]}, v{t0}, s3, 7")
        def frag_reads(j, par, kh, tag, d=None):
            if d is None: d = WF + j*4
            if j < 2*NP:
                p, gu = j >> 1, j & 1
                return [Op(f"ds_read_b64_tr_b16 a[{d+2*h}:{d+2*h+1}], v{vRW[par]} offset:{gu*2*WB + kh*WB + h*256 + p*32}", 'lds', tag) for h in range(2)]
            return [Op(f"ds_read_b128 a[{d}:{d+3}], v{vRB[par][kh]} offset:{(j-2*NP)*2048}", 'lds', tag)]
        rest = []
        for t in range(-3, 0):
            if 1 <= t + XD: rest += x_ops(t + XD)
            rest += dma_ops(((t + 5) >> 1) % 2, (t + 1) % 2)
            if PF and t == -1: rest.append(Op(f"global_load_dword a236, v{vP[1]}, s[52:53]", 'vm', 'pf'))
        stamp(A, opt, 1)
        A(f"s_waitcnt vmcnt({NPAR})\ns_barrier")
        for j in range(NT): emit(frag_reads(j, 0, 0, None))
        emit(rest)
        A(f"s_mov_b32 s{sDelta}, {hx(-2*STAGE2)}")
        A(f"s_waitcnt lgkmcnt(0)")
        BARG = opt.get('barg', 3)
        def mfma(j, i, wreg, xreg, **kw):
            f, b = acc(j, i); c = f"{f}[{b}:{b+3}]"
            w = f"a[{wreg}:{wreg+3}]"; x = f"a[{xreg}:{xreg+3}]"
            return Op(f"v_mfma_f32_16x16x32_bf16 {c}, {w}, {x}, {c}" if j < 2*NP else f"v_mfma_f32_16x16x32_bf16 {c}, {x}, {w}, {c}", **kw)
        def trip(n):
            out = []
            for t in range(4):
                gs = 4*n + t
                mf = []
                for j in range(NT):
                    order = range(4) if j % 2 == 0 else range(3, -1, -1)
                    for k, i in enumerate(order):
                        mf.append(mfma(j, i, WF+j*4, XB+t*16+i*4, need_vm=(f"x{t}" if (j == 0 and k == 0) else None), need_lds=(f"f{j}" if k == 0 else None)))
                if t % 2 == 0: par, kh, firstm = t >> 1, 1, 0
                else: par, kh, firstm = ((t >> 1) + 1) % 2, 0, BARG*4 - 1
                fin = gs == 31
                rds = []
                if not fin:
                    for j in range(NT):
                        for o in frag_reads(j, par, kh, f"f{j}"): rds.append((max(j*4 + 3, firstm), o))
                vmo = []
                if gs + XD < 32: vmo += x_ops((t + XD) % 4)
                if (gs + 5) >> 1 < 16: vmo += dma_ops(((t + 5) >> 1) % 2, (t + 1) % 2)
                if PF and t == 1: vmo += [Op(f"global_load_dword a236, v{vP[0]}, s[56:57]", 'vm', 'pf'), Op(f"v_add_u32 v{vP[0]}, {7168*128}, v{vP[0]}")]
                if PF and t == 3 - (n == 7): vmo += [Op(f"global_load_dword a236, v{vP[1]}, s[52:53]", 'vm', 'pf'), Op(f"v_add_u32 v{vP[1]}, {2048*128}, v{vP[1]}")]
                sp = 68.0 / max(1, len(vmo))
                vm = [(1 + int(k*sp), o) for k, o in enumerate(vmo)]
                misc = []
                if n != 7:
                    if t == 2: misc += [(40, Op(f"v_subrev_u32 v{r}, s{sDelta}, v{r}")) for r in (vRW[0], vRB[0][0], vRB[0][1])]
                    if t == 3: misc += [(2, Op(f"v_subrev_u32 v{r}, s{sDelta}, v{r}")) for r in (vRW[1], vRB[1][0], vRB[1][1])]
                    if t == 3: misc += [(60, Op(f"s_sub_u32 s{sDelta}, 0, s{sDelta}"))]
                slots = spread(72, [rds, vm, misc], per_gap=1)
                for m in range(72):
                    out.append(mf[m])
                    if t % 2 == 1 and m == firstm and not fin:
                        out.append(Op("s_waitcnt lgkmcnt(0)", 'lgkm0', need_vm=f"d{par}e"))
                        out.append(Op("s_barrier"))
                    out.extend(slots[m])
            return out
        b0, b6, b7 = trip(0), trip(6), trip(7)
        put0 = put
        def put(lines):
            o = []
            for x in lines:
                if opt.get('y_nolds') and x.startswith('ds_read'): continue
                if opt.get('y_halflds') and x.startswith('ds_read') and (int(x.split('[')[1].split(':')[0]) // 4) % 2: continue
                if opt.get('y_nox') and x.startswith('buffer_load_dwordx4 a['): continue
                if opt.get('y_nodma') and x.endswith('lds'): continue
                o.append(x)
            put0(o)
        stamp(A, opt, 2)
        if opt.get('rept', 0):
            A(".rept 6"); put(resolve_loop(b0)); A(".endr")
        else:
            A(f"s_mov_b32 s35, 0\n.p2align 6\nL_k2_loop{nm}:"); put(resolve_loop(b0))
            A(f"s_add_u32 s35, s35, 1\ns_cmp_lt_u32 s35, 6\ns_cbranch_scc1 L_k2_loop{nm}")
        put(resolve_seq(b0, b6))
        if opt.get('cpf', 1): code_prefetch(A, "down_kernel", "L_text_end", 58, t0, "a237", opt.get("cpfn3", 8), "2" + nm)
        if opt.get('cpf', 1):
            A(f"s_getpc_b64 s[58:59]\nL_pce{nm}:\ns_add_u32 s58, s58, L_k2_epi{nm}-L_pce{nm}\ns_addc_u32 s59, s59, 0\nv_lshlrev_b32 v{t0}, 6, v0\nglobal_load_dword a238, v{t0}, s[58:59]")
        put(resolve_seq(b6, b7))
        A(f"L_k2_epi{nm}:")
        stamp(A, opt, 3)
        LAM = [2 + 2*q for q in range(NS)]
        for q in range(NS):
            A(f"v_accvgpr_read_b32 v{LAM[q]}, a{PAR+q*6}\nv_accvgpr_read_b32 v{LAM[q]+1}, a{PAR+q*6+1}")
        def cfma(d, h, c):
            return [f"v_pk_fma_f32 {pk(d)}, {pk(h)}, {pk(c)}, {pk(d)} op_sel_hi:[1,0,1]",
                    f"v_pk_fma_f32 {pk(d)}, {pk(h)}, {pk(c)}, {pk(d)} op_sel:[1,1,0] op_sel_hi:[0,1,1] neg_lo:[0,1,0]"]
        A("s_nop 7")
        T = lambda q, n: 12 + 4*q + 2*(n & 1)
        for n in range(16):
            i, r = n >> 2, n & 3
            for q in range(NS): A(rd(T(q, n), jre(q), i, r) + "\n" + rd(T(q, n)+1, jim(q), i, r))
            if n > 0:
                for h in range(2):
                    for q in range(NS): A(cfma(T(q, n), T(q, n-1), LAM[q])[h])
        vE = 1
        A(f"v_lshrrev_b32 v12, 4, v0\nv_lshlrev_b32 v12, 10, v12\nv_and_b32 v{vE}, 15, v0\nv_lshl_add_u32 v{vE}, v{vE}, 3, v12")
        for q in range(NS): A(f"ds_write_b64 v{vE}, {pk(T(q, 15))} offset:{q*128}")
        A("s_waitcnt lgkmcnt(0)\ns_barrier")
        NXW = (NCH + 63) // 64
        vC = 12
        A(f"v_min_u32 v{vC}, {NCH-1}, v0\nv_lshlrev_b32 v{vC}, 3, v{vC}")
        A(f"s_lshl_b32 s39, s{sRB}, 14\ns_lshl_b32 s3, s{sCh}, 4\ns_add_u32 s39, s39, s3\ns_add_u32 s39, s39, {EX_OFF}")
        A(f"s_cmp_ge_u32 s{sWV}, {NXW}\ns_cbranch_scc1 L_k2_nox1{nm}")
        for s_ in range(16): A(f"ds_read_b64 a[{WF+2*s_}:{WF+2*s_+1}], v{vC} offset:{s_*1024}")
        A(f"v_accvgpr_read_b32 v14, a{PAR+30}\nv_accvgpr_read_b32 v15, a{PAR+31}")
        A(f"v_mov_b32 v16, 0\nv_mov_b32 v17, 0\nds_write_b64 v{vC}, v[16:17] offset:16384\ns_waitcnt lgkmcnt(0)")
        R = [16, 18, 20, 22]
        for s_ in range(16):
            p_ = R[s_ % 4]; c_ = R[(s_+1) % 4]
            A(f"v_accvgpr_read_b32 v{c_}, a{WF+2*s_}\nv_accvgpr_read_b32 v{c_+1}, a{WF+2*s_+1}")
            for x in cfma(c_, p_, 14): A(x)
            if s_ < 15: A(f"ds_write_b64 v{vC}, {pk(c_)} offset:{16384+(s_+1)*1024}")
        A(f"v_mov_b32 v24, v16\nv_mov_b32 v25, 1\nv_mov_b32 v26, v17\nv_mov_b32 v27, 1\nv_lshlrev_b32 v13, 1, v{vC}\ns_add_u32 s3, s39, {7*16384}")
        A(f"buffer_store_dwordx4 v[24:27], v13, s[{sWS}:{sWS+3}], s3 offen sc1")
        A(f"L_k2_nox1{nm}:")
        stamp(A, opt, 4)
        C1 = -2.0*math.sqrt(2/math.pi)*LOG2E; C2 = C1*0.044715
        A(f"s_mov_b32 s4, {hx(f2u(C1))}\ns_mov_b32 s6, {hx(f2u(C2))}\ns_mov_b32 s7, s6")
        vH = 14
        A(f"v_bfe_u32 v16, v0, 4, 1\nv_bfe_u32 v17, v0, 5, 1\nv_and_b32 v18, 15, v0\nv_lshlrev_b32 v{vH}, 10, v16\nv_lshl_add_u32 v{vH}, v17, 8, v{vH}\nv_lshl_add_u32 v{vH}, v18, 4, v{vH}")
        A("v_mov_b32 v16, s4\nv_lshlrev_b32 v13, 1, v12")
        A(f"s_mul_i32 s40, s{sTB}, {112*4096}\ns_add_u32 s40, s40, {H_OFF}\ns_lshl_b32 s41, s{sCol}, 7\ns_add_u32 s40, s40, s41")
        for k in range(1, NP // 2): A(f"s_add_u32 s{40+k}, s40, {k*4096}")
        TMP = [18, 20, 22, 28]
        NB = 2*NP
        ER = 32
        eloads = []
        for d in range(7):
            eloads.append(f"s_add_u32 s3, s39, {d*16384}")
            eloads.append(f"buffer_load_dwordx4 v[{ER+4*d}:{ER+4*d+3}], v13, s[{sWS}:{sWS+3}], s3 offen sc1")
        ESLOT = NB - opt.get('eslot', 4)
        nst_after = 0
        for b in range(NB):
            p, i0 = b >> 1, (b & 1)*2
            if 2*p < 14:
                G = acc(2*p, i0)[1]; U = acc(2*p+1, i0)[1]
            else:
                G = acc(4, i0)[1]; U = acc(5, i0)[1]
                for h in range(8): A(rd(G+h, 2*p, i0 + (h >> 2), h & 3) + "\n" + rd(U+h, 2*p+1, i0 + (h >> 2), h & 3))
            if b == ESLOT:
                A(f"s_cmp_ge_u32 s{sWV}, {NXW}\ns_cbranch_scc1 L_k2_noel{nm}")
                for x in eloads: A(x)
                A(f"L_k2_noel{nm}:")
            for h in range(4): A(f"v_pk_mul_f32 {pk(TMP[h])}, {pk(G+2*h)}, {pk(G+2*h)}")
            for h in range(4): A(f"v_pk_mul_f32 {pk(U+2*h)}, {pk(U+2*h)}, {pk(G+2*h)}")
            for h in range(4): A(f"v_pk_fma_f32 {pk(TMP[h])}, {pk(TMP[h])}, s[6:7], v[16:17] op_sel_hi:[1,1,0]")
            for h in range(4): A(f"v_pk_mul_f32 {pk(G+2*h)}, {pk(G+2*h)}, {pk(TMP[h])}")
            for h in range(8): A(f"v_exp_f32 v{G+h}, v{G+h}")
            for h in range(4): A(f"v_pk_add_f32 {pk(G+2*h)}, {pk(G+2*h)}, 1.0 op_sel_hi:[1,0]")
            for h in range(8): A(f"v_rcp_f32 v{G+h}, v{G+h}")
            for h in range(4): A(f"v_pk_mul_f32 {pk(U+2*h)}, {pk(U+2*h)}, {pk(G+2*h)}")
            for h in (0, 2, 1, 3): A(f"v_cvt_pk_bf16_f32 v{G+h}, v{U+2*h}, v{U+2*h+1}")
            A(f"v_permlane16_swap_b32 v{G}, v{G+2}\ns_nop 0\nv_permlane16_swap_b32 v{G+1}, v{G+3}")
            A(f"buffer_store_dwordx4 v[{G}:{G+3}], v{vH}, s[{sWS}:{sWS+3}], s{40+(p>>1)} offen offset:{(p&1)*512 + i0*1024}{SC}")
            if b >= ESLOT: nst_after += 1
        stamp(A, opt, 5)
        A(f"s_cmp_ge_u32 s{sWV}, {NXW}\ns_cbranch_scc1 L_k2_nox2{nm}")
        A(f"s_mov_b32 s44, 0x40000\ns_waitcnt vmcnt({nst_after})")
        A(f"L_k2_poll{nm}:\nv_mov_b32 v18, 1")
        for d in range(7): A(f"v_min3_u32 v18, v18, v{ER+4*d+1}, v{ER+4*d+3}")
        A(f"v_cmp_ne_u32 vcc, 1, v18\ns_cbranch_vccz L_k2_got{nm}\ns_sleep 1")
        for x in eloads: A(x)
        A(f"s_waitcnt vmcnt(0)\ns_sub_u32 s44, s44, 1\ns_cmp_lg_u32 s44, 0\ns_cbranch_scc1 L_k2_poll{nm}\nL_k2_got{nm}:")
        A(f"v_accvgpr_read_b32 v18, a{PAR+32}\nv_accvgpr_read_b32 v19, a{PAR+33}")
        for d in range(7): A(f"v_mov_b32 v{ER+4*d+1}, v{ER+4*d+2}")
        for d in range(1, 7):
            for x in cfma(ER+4*d, ER+4*(d-1), 18): A(x)
        A(f"ds_write_b64 v{vC}, {pk(ER+24)} offset:32768\ns_waitcnt lgkmcnt(0)")
        A(f"L_k2_nox2{nm}:\ns_barrier")
        stamp(A, opt, 6)
        CY = 32; HH = 44; PW_ = 56; CF = 68
        A("v_and_b32 v13, 15, v0\nv_lshlrev_b32 v13, 3, v13")
        for q in range(NS):
            A(f"ds_read_b64 {pk(CY+2*q)}, v{vE} offset:{16384+q*128}\nds_read_b64 {pk(HH+2*q)}, v13 offset:{32768+q*128}")
        for q in range(NS):
            for h in range(2): A(f"v_accvgpr_read_b32 v{PW_+2*q+h}, a{PAR+q*6+4+h}\nv_accvgpr_read_b32 v{CF+2*q+h}, a{PAR+q*6+2+h}")
        TB0 = 36864
        A(f"s_mul_i32 s3, s{sWV}, {2*NCH*144}\ns_add_u32 s3, s3, {TB0}")
        A("v_and_b32 v16, 15, v0\nv_mul_u32_u24 v16, 144, v16\nv_bfe_u32 v17, v0, 4, 2\nv_lshl_add_u32 v16, v17, 5, v16\nv_add_u32 v16, s3, v16")
        A("v_bfe_u32 v17, v0, 5, 1\nv_bfe_u32 v18, v0, 2, 2\nv_lshl_add_u32 v17, v17, 3, v18\nv_mul_u32_u24 v17, 144, v17\nv_and_b32 v18, 3, v0\nv_lshl_add_u32 v17, v18, 5, v17\nv_bfe_u32 v18, v0, 4, 1\nv_lshl_add_u32 v17, v18, 3, v17\nv_add_u32 v17, s3, v17")
        A(f"s_lshl_b32 s40, s{sTB}, 18\ns_add_u32 s40, s40, {HS_OFF}\ns_lshr_b32 s41, s{sCh}, 4")
        A("s_waitcnt lgkmcnt(0)")
        for h in range(2):
            for q in range(NS): A(cfma(CY+2*q, HH+2*q, PW_+2*q)[h])
        ST = 80
        for q in range(NS):
            OR_, OI_ = 88 + (q & 1)*32, 96 + (q & 1)*32
            for n in range(16):
                i, r = n >> 2, n & 3
                c_ = ST + 2*(n & 1); p_ = CY + 2*q if n == 0 else ST + 2*((n-1) & 1); o_ = 84 + 2*(n & 1)
                A(rd(c_, jre(q), i, r) + "\n" + rd(c_+1, jim(q), i, r))
                for x in cfma(c_, p_, LAM[q]): A(x)
                A(f"v_pk_mul_f32 {pk(o_)}, {pk(c_)}, {pk(CF+2*q)} op_sel_hi:[1,0]")
                A(cfma(o_, c_, CF+2*q)[1])
                if n & 1: A(f"v_cvt_pk_bf16_f32 v{OR_+(n>>1)}, v84, v86\nv_cvt_pk_bf16_f32 v{OI_+(n>>1)}, v85, v87")
            for part, b in ((0, OR_), (1, OI_)):
                off = (part*NCH + q*16)*144
                A(f"ds_write_b128 v16, v[{b}:{b+3}] offset:{off}\nds_write_b128 v16, v[{b+4}:{b+7}] offset:{off+16}")
            def flush(qq, wait):
                LD = 104 + (qq & 1)*32
                A(f"s_add_u32 s42, s41, {qq}\ns_lshr_b32 s43, s42, 1\ns_lshl_b32 s43, s43, 12\ns_and_b32 s42, s42, 1\ns_lshl_b32 s42, s42, 9\ns_add_u32 s43, s43, s42\ns_add_u32 s43, s43, s40\ns_add_u32 s42, s43, {32*4096}")
                A(f"s_waitcnt lgkmcnt({wait})")
                for part in range(2):
                    for k in range(2):
                        d = LD + (part*2+k)*4
                        A(f"buffer_store_dwordx4 v[{d}:{d+3}], v{vH}, s[{sWS}:{sWS+3}], s{43-part} offen offset:{k*2048}{SC}")
            if q > 0: flush(q-1, 4)
            LD = 104 + (q & 1)*32
            for part in range(2):
                for k in range(2):
                    d = LD + (part*2+k)*4
                    for h in range(2):
                        A(f"ds_read_b64_tr_b16 v[{d+2*h}:{d+2*h+1}], v17 offset:{(part*NCH + q*16 + 4*h)*144 + k*16}")
        flush(NS-1, 0)
        stamp_out(A, opt, 8, 1, sWV, 48, 49)
    body(8, 1, "A")
    A("s_endpgm\nL_k2_B:")
    body(4, 5, "B")
    A("L_k2_end:\ns_endpgm")
    return kernel_desc("up_kernel", 256+240, 256, 102)
```
